```python
import torch

def _softmax(x, axis=-1):
    return torch.softmax(x, dim=axis)

def _gelu(x):
    return torch.nn.functional.gelu(x, approximate='tanh')

def _silu(x):
    return torch.nn.functional.silu(x)

def _sigmoid(x):
    return torch.sigmoid(x)

def _layernorm(x, axis=-1, eps=1e-05):
    m = x.mean(dim=axis, keepdim=True)
    v = x.var(dim=axis, keepdim=True, unbiased=False)
    return (x - m) / torch.sqrt(v + eps)

def _scatter_add(tgt, idx, src, axis=0):
    return tgt.clone().index_add_(axis, idx, src)

def _segment_sum(src, seg, n):
    out = torch.zeros((n,) + src.shape[1:], dtype=src.dtype)
    return out.index_add_(0, seg, src)

def _pad(x, pw):
    flat = tuple((v for pair in reversed(pw) for v in pair))
    return torch.nn.functional.pad(x, flat)
kernel_name = 'gated_mix__memory_aug_recurrent_mem_tr__swiglu_ffn__prompt'

def setup_inputs():

    _w = lambda a: (lambda t: t.to(torch.bfloat16) if t.is_floating_point() else t)(torch.as_tensor(a))

    def _A_setup():
        B, S, Dm = (1, 2048, 448)
        H, Dh = (16, 256)
        M, seg = (8, 32)
        seg = min(seg, S)
        S = S // seg * seg
        return {'x': _w((lambda *s: torch.randn(*s, dtype=torch.bfloat16) * 0.05)(B, S, Dm)), 'mem0': _w((lambda *s: torch.randn(*s, dtype=torch.bfloat16) * 0.4)(B, M, Dm)), 'Wq': _w((lambda *s: torch.randn(*s, dtype=torch.bfloat16) * 6.4)(Dm, H, Dh) * Dm ** (-0.5)), 'Wk': _w((lambda *s: torch.randn(*s, dtype=torch.bfloat16) * 6.4)(Dm, H, Dh) * Dm ** (-0.5)), 'Wv': _w((lambda *s: torch.randn(*s, dtype=torch.bfloat16) * 0.4)(Dm, H, Dh) * Dm ** (-0.5)), 'Wo': _w((lambda *s: torch.randn(*s, dtype=torch.bfloat16) * 0.4)(H, Dh, Dm) * (H * Dh) ** (-0.5)), 'seg_len': seg}
    _A_in = _A_setup()

    def _B_setup():
        B, S, D, F = (1, 2048, 448, 1792)
        return {'x': _w((lambda *s: torch.randn(*s, dtype=torch.bfloat16) * 0.05)(B, S, D)), 'w_gate': _w((lambda *s: torch.randn(*s, dtype=torch.bfloat16) * 0.05)(D, F)), 'w_up': _w((lambda *s: torch.randn(*s, dtype=torch.bfloat16) * 0.05)(D, F)), 'w_down': _w((lambda *s: torch.randn(*s, dtype=torch.bfloat16) * 0.05)(F, D))}
    _B_in = _B_setup()
    return {'A_x': _A_in['x'], 'A_mem0': _A_in['mem0'], 'A_Wq': _A_in['Wq'], 'A_Wk': _A_in['Wk'], 'A_Wv': _A_in['Wv'], 'A_Wo': _A_in['Wo'], 'A_seg_len': _A_in['seg_len'], 'B_x': _B_in['x'], 'B_w_gate': _B_in['w_gate'], 'B_w_up': _B_in['w_up'], 'B_w_down': _B_in['w_down'], 'gate_w': _w((lambda *s: torch.randn(*s, dtype=torch.bfloat16) * 0.05)(448) * 16.0)}

def reference(A_x, A_mem0, A_Wq, A_Wk, A_Wv, A_Wo, A_seg_len, B_x, B_w_gate, B_w_up, B_w_down, gate_w):

    def _A_ref(x, mem0, Wq, Wk, Wv, Wo, seg_len):
        B, S, Dm = x.shape
        H, Dh = (Wq.shape[1], Wq.shape[2])
        M = mem0.shape[1]
        scale = Dh ** (-0.5)
        n_seg = S // seg_len
        L = M + seg_len
        idx = torch.arange(L)
        mask = (idx[:, None] < M) | (idx[:, None] >= idx[None, :])
        mem = mem0
        outs = []
        for s in range(n_seg):
            xs = x[:, s * seg_len:(s + 1) * seg_len, :].clone()
            h = torch.concatenate([mem, xs], axis=1)
            q = torch.einsum('btd,dhe->bhte', h, Wq)
            k = torch.einsum('btd,dhe->bhte', h, Wk)
            v = torch.einsum('btd,dhe->bhte', h, Wv)
            scores = torch.einsum('bhqe,bhke->bhqk', q, k) * scale
            scores = torch.where(mask[None, None], scores, -1000000000.0)
            p = _softmax(scores, axis=-1)
            o = torch.einsum('bhqk,bhke->bhqe', p, v)
            o = torch.einsum('bhte,hed->btd', o, Wo)
            mem = o[:, :M, :].clone()
            outs.append(o[:, M:, :])
        return torch.concatenate(outs, axis=1)

    def _B_ref(x, w_gate, w_up, w_down):
        g = _silu(x @ w_gate)
        u = x @ w_up
        return g * u @ w_down
    x = A_x
    g = _sigmoid((x * gate_w).sum(-1, keepdims=True))
    a = _A_ref(x, A_mem0, A_Wq, A_Wk, A_Wv, A_Wo, A_seg_len)
    b = _B_ref(x, B_w_gate, B_w_up, B_w_down)
    return g * a + (1 - g) * b
```

```python
import re

TRANS = ('v_exp_f32', 'v_log_f32', 'v_rcp_f32', 'v_rsq_f32', 'v_sqrt_f32', 'v_sin_f32', 'v_cos_f32')

def R(i, n=1):
    if i >= 256:
        p, j = 'a', i - 256
    else:
        p, j = 'v', i
        assert i + n <= 256, (i, n)
    return f'{p}{j}' if n == 1 else f'{p}[{j}:{j+n-1}]'

def S(i, n=1):
    return f's{i}' if n == 1 else f's[{i}:{i+n-1}]'

_REG = re.compile(r'^(-|abs\()?\s*([vas])(\d+|\[(\d+):(\d+)\])\)?$')

def parse_reg(op):
    op = op.strip()
    if op == 'vcc': return {('s', 106), ('s', 107)}
    if op == 'exec': return {('s', 126), ('s', 127)}
    if op == 'm0': return {('s', 124)}
    m = _REG.match(op)
    if not m: return set()
    k = m.group(2)
    if m.group(4) is not None: lo, hi = int(m.group(4)), int(m.group(5))
    else: lo = hi = int(m.group(3))
    if k == 's': return {('s', i) for i in range(lo, hi + 1)}
    off = 256 if k == 'a' else 0
    return {('v', i + off) for i in range(lo, hi + 1)}

def split_ops(s):
    out, depth, cur = [], 0, ''
    for ch in s:
        if ch in '[(': depth += 1
        if ch in '])': depth -= 1
        if ch == ',' and depth == 0:
            out.append(cur.strip()); cur = ''
        else: cur += ch
    if cur.strip(): out.append(cur.strip())
    return out

class Ins:
    __slots__ = ('text', 'mn', 'kind', 'rd', 'wr', 'ab', 'c', 'passes', 'dpp', 'states', 'wide', 'data', 'lds_dma', 'trans')

def analyze(text):
    t = text.split(';')[0].strip()
    I = Ins(); I.text = text
    parts = t.split(None, 1)
    mn = parts[0]; rest = parts[1] if len(parts) > 1 else ''
    I.mn = mn; I.rd = set(); I.wr = set(); I.ab = set(); I.c = set(); I.passes = 0
    I.dpp = False; I.states = 1; I.wide = False; I.data = set(); I.lds_dma = False; I.trans = False
    ops = split_ops(rest)
    ops2 = []
    for o in ops:
        w = o.split()
        ops2.append(w[0] if w else '')
    mods = rest
    regs = [parse_reg(o) for o in ops2]
    if mn == 's_nop':
        I.kind = 'nop'; I.states = int(ops2[0], 0) + 1
    elif mn.startswith('v_mfma') or mn.startswith('v_smfmac'):
        I.kind = 'mfma'
        I.passes = 8 if '32x32' in mn else 4
        I.wr = regs[0]; I.ab = regs[1] | regs[2]
        if mn.startswith('v_smfmac'):
            I.c = regs[0]; I.ab |= regs[3]
        else:
            I.c = regs[3]
        I.rd = I.ab | I.c
    elif mn.startswith('v_'):
        I.kind = 'valu'
        I.dpp = ('_dpp' in mn) or ('quad_perm' in mods) or ('row_' in mods)
        I.trans = any(mn.startswith(x) for x in TRANS)
        if (mn.startswith('v_permlane') and 'swap' in mn) or mn.startswith('v_swap'):
            I.wr = regs[0] | regs[1]; I.rd = regs[0] | regs[1]
        elif mn.startswith('v_cmp'):
            I.wr = regs[0]; I.rd = set().union(*regs[1:])
        elif mn.startswith(('v_add_co', 'v_sub_co', 'v_addc_co', 'v_subb_co', 'v_mad_u64')):
            I.wr = regs[0] | regs[1]; I.rd = set().union(*regs[2:])
        else:
            I.wr = regs[0]; I.rd = set().union(*regs[1:]) if len(regs) > 1 else set()
            if I.dpp: I.ab = regs[1]
            if mn.startswith(('v_fmac', 'v_pk_fmac', 'v_dot2c')) or I.dpp or mn.startswith('v_writelane'):
                I.rd |= regs[0]
    elif mn.startswith(('buffer_', 'global_', 'ds_', 'flat_')):
        I.kind = 'mem'
        allr = set().union(*regs) if regs else set()
        is_lds_dma = mn.startswith('buffer_load') and re.search(r'\blds\b', mods) is not None or mn.startswith('global_load_lds')
        if is_lds_dma:
            I.lds_dma = True; I.rd = allr | {('s', 124)}
        elif 'load' in mn or mn.startswith('ds_read') or mn.startswith('ds_bpermute') or mn.startswith('ds_swizzle'):
            I.wr = regs[0]; I.rd = set().union(*regs[1:])
        elif 'atomic' in mn and re.search(r'\bsc0\b', mods):
            if mn.startswith('buffer'):
                I.wr = regs[0]; I.rd = allr
            else:
                I.wr = regs[0]; I.rd = set().union(*regs[1:])
        else:
            I.rd = allr
            if 'store' in mn and ('x3' in mn or 'x4' in mn):
                I.wide = True
                I.data = regs[0] if mn.startswith('buffer') else regs[1]
    elif mn.startswith('s_'):
        I.kind = 'salu'
        if mn.startswith(('s_cmp', 's_cbranch', 's_branch', 's_waitcnt', 's_barrier', 's_sleep', 's_setprio', 's_endpgm', 's_bitcmp')):
            I.rd = set().union(*regs) if regs else set()
        else:
            I.wr = regs[0] if regs else set()
            I.rd = set().union(*regs[1:]) if len(regs) > 1 else set()
            if 'saveexec' in mn: I.wr |= {('s', 126), ('s', 127)}
    else:
        raise ValueError('unknown instruction ' + text)
    return I

def need(P, I):
    n = 0
    vw = {r for r in P.wr if r[0] == 'v'}
    sw = {r for r in P.wr if r[0] == 's'}
    if P.kind == 'valu':
        if I.kind == 'mfma' and vw & I.rd: n = max(n, 2)
        if I.kind == 'valu':
            if I.dpp and vw & I.ab: n = max(n, 2)
            if I.mn.startswith('v_permlane') and vw & I.rd: n = max(n, 2)
            if I.mn.startswith(('v_readlane', 'v_readfirstlane')) and vw & I.rd: n = max(n, 1)
            if P.trans and not I.trans and vw & I.rd: n = max(n, 1)
            if sw & I.rd: n = max(n, 4 if I.mn.startswith(('v_readlane', 'v_writelane')) else 2)
            if 'op_sel' in P.text or 'sdwa' in P.mn:
                if vw & (I.rd | I.wr): n = max(n, 1)
        if I.kind == 'mem' and sw & I.rd: n = max(n, 5)
        if I.kind == 'salu' and sw & I.rd and not I.mn.startswith('s_cbranch'): n = max(n, 1)
    if P.kind == 'mfma':
        p = P.passes
        if I.kind == 'mfma':
            if P.wr & I.ab: n = max(n, p + 4)
            if P.wr & I.c:
                if not (P.wr == I.c and P.mn == I.mn): n = max(n, p + 2)
            elif P.wr & I.wr: n = max(n, p + 2)
        elif I.kind == 'valu':
            if P.wr & (I.rd | I.wr): n = max(n, p + 4)
            if P.c & I.wr: n = max(n, p - 1)
        elif I.kind == 'mem':
            if P.wr & (I.rd | I.wr): n = max(n, p + 4)
    if P.kind == 'salu':
        if ('s', 124) in P.wr and I.kind == 'mem' and I.lds_dma: n = max(n, 1)
    if P.kind == 'mem' and P.wide:
        if P.data & I.wr: n = max(n, 2 if I.kind in ('valu', 'mfma') else 1)
    return n

class Asm:
    def __init__(self):
        self.lines = []
        self.hist = []
        self.nlabel = 0
        self.nops_added = 0
    def raw(self, s):
        self.lines.append(s)
    def comment(self, s):
        self.lines.append('    ; ' + s)
    def label(self, name):
        self.lines.append(name + ':')
    def newlabel(self, p='L'):
        self.nlabel += 1
        return f'{p}_{self.nlabel}'
    def reset_hist(self):
        self.hist = []
    def __call__(self, text):
        for line in text.strip().split('\n'):
            line = line.strip()
            if not line or line.startswith(';'): continue
            if line.endswith(':'):
                self.label(line[:-1]); continue
            self._emit(line)
    def _emit(self, text):
        I = analyze(text)
        dist = 0; distm = 0; req = 0
        for P in reversed(self.hist):
            n = need(P, I)
            d = distm if P.kind == 'mfma' else dist
            if n - d > req: req = n - d
            dist += P.states
            distm += (1 if '16x16x16' in P.mn else 3) if P.kind == 'mfma' else P.states
            if dist >= 24: break
        while req > 0:
            k = min(req, 16)
            N = analyze(f's_nop {k-1}')
            self.lines.append(f'    s_nop {k-1}')
            self.hist.append(N); self.nops_added += 1
            req -= k
        self.lines.append('    ' + text)
        self.hist.append(I)
        if len(self.hist) > 40: self.hist = self.hist[-40:]
        if I.mn in ('s_branch', 's_endpgm'):
            self.hist = []
    def flush(self, n=12):
        self(f's_nop {n-1}')
    def text(self):
        return '\n'.join(self.lines) + '\n'

def interleave(main, fill, start=0, every=1, per=1):
    out = []; fi = 0
    for i, m in enumerate(main):
        out.append(m)
        if i >= start and (i - start) % every == 0:
            for _ in range(per):
                if fi < len(fill):
                    out.append(fill[fi]); fi += 1
    out.extend(fill[fi:])
    return out
```

```python
import numpy as np
D = 448; H = 16; SEG = 32; NSEG = 64; MM = 8; F = 1792
MAT = 401408
WIMG = 0
KIMG = 0x1000000
VIMG = 0x2C00000
TBOX = 0x4800000
SLOT = 0x20000
MEMB = 0
PB = 8192
WB = 12288
MEMNAT = 0x4900000
DBG = 0x4A00000
WS_BYTES = 268435456

def colA(j, m):
    return 32 * (j // 2) + 8 * (m // 4) + 4 * (j % 2) + (m % 4)

def wimg(W, perm):
    j = np.arange(28)[:, None, None, None]; ks = np.arange(14)[None, :, None, None]
    l = np.arange(64)[None, None, :, None]; e = np.arange(8)[None, None, None, :]
    n = l % 16; g = l // 16
    col = colA(j, n) if perm else 16 * j + n
    return W[32 * ks + 8 * g + e, col]

def kimg(Kp):
    s = np.arange(64)[:, None, None, None, None, None]; h = np.arange(16)[None, :, None, None, None, None]
    kt = np.arange(2)[None, None, :, None, None, None]; ks = np.arange(14)[None, None, None, :, None, None]
    l = np.arange(64)[None, None, None, None, :, None]; e = np.arange(8)[None, None, None, None, None, :]
    return Kp[h, 32 * s + 16 * kt + l % 16, 32 * ks + 8 * (l // 16) + e]

def vimg(Vp):
    s = np.arange(64)[:, None, None, None, None]; h = np.arange(16)[None, :, None, None, None]
    j = np.arange(28)[None, None, :, None, None]; l = np.arange(64)[None, None, None, :, None]
    e = np.arange(8)[None, None, None, None, :]
    r = Vp[h, 32 * s + 16 * (e % 2) + 4 * (l // 16) + e // 2, 16 * j + l % 16]
    return np.ascontiguousarray(r.transpose(0, 2, 1, 3, 4))

XIMG = 0x5000000
WGT = 0x5200000
WUT = 0x5400000
WDT = 0x5600000
GVEC = 0x5800000
HIMG = 0x5900000
SXX = 0x6100000
SXM = 0x6500000
UIMG = 0x6600000
MEMX = 0x6E00000
FLAGS = 0x6F00000
WS_USED = 0x7000000

def wimg_g(W, perm):
    K, N = W.shape
    j = np.arange(N // 16)[:, None, None, None]; ks = np.arange(K // 32)[None, :, None, None]
    l = np.arange(64)[None, None, :, None]; e = np.arange(8)[None, None, None, :]
    n = l % 16; g = l // 16
    col = colA(j, n) if perm else 16 * j + n
    return W[32 * ks + 8 * g + e, col]
def rowimg(X):
    T, K = X.shape
    t = np.arange(T // 16)[:, None, None, None]; ks = np.arange(K // 32)[None, :, None, None]
    l = np.arange(64)[None, None, :, None]; e = np.arange(8)[None, None, None, :]
    return X[16 * t + l % 16, 32 * ks + 8 * (l // 16) + e]

K_H = 28672; K_S = 16 * 28672
V_J = 16384; V_S = 28 * 16384
```

```python
from asmlib import *
from layout import *
MF = 'v_mfma_f32_16x16x32_bf16'
LOG2E = 1.4426950408889634
import struct
def f2u(x): return struct.unpack('<I', struct.pack('<f', x))[0]

def srd(a, d, karg_off, nbytes):
    a(f's_load_dwordx2 {S(d,2)}, s[0:1], {karg_off}')
    a(f's_mov_b32 {S(d+2)}, {nbytes}')
    a(f's_mov_b32 {S(d+3)}, 0x20000')

WSZ = 448 * 4096 * 2
PSTORE = ''

def gen_prep(a, EXIT, EXIT0=None):
    a('s_cmp_ge_u32 s2, 256')
    a(f's_cbranch_scc1 {EXIT0 or EXIT}')
    srd(a, 8, 112, WS_BYTES)
    a('v_readfirstlane_b32 s3, v0')
    a('s_lshr_b32 s3, s3, 6')
    a('v_and_b32 v1, 63, v0')
    a('v_and_b32 v2, 15, v1')
    a('v_lshrrev_b32 v3, 4, v1')
    a('v_lshlrev_b32 v4, 4, v1')
    a('s_mov_b32 s40, 0x05040100')
    a('s_mov_b32 s41, 0x07060302')
    a('s_cmp_ge_u32 s2, 224')
    a('s_cbranch_scc1 PREP_MISC')
    a('s_cmp_ge_u32 s2, 112')
    a('s_cselect_b32 s20, 112, 0')
    a('s_sub_u32 s20, s2, s20')
    a('s_mul_i32 s21, s20, 9363')
    a('s_lshr_b32 s21, s21, 16')
    a('s_mul_i32 s22, s21, 7')
    a('s_sub_u32 s22, s20, s22')
    a('s_lshl_b32 s23, s3, 2')
    a('s_min_u32 s23, s23, 10')
    a('v_lshrrev_b32 v5, 2, v2')
    a('v_lshlrev_b32 v5, 3, v5')
    a('v_and_b32 v6, 3, v2')
    a('v_add_u32 v5, v5, v6')
    a('v_lshlrev_b32 v5, 13, v5')
    a('v_lshl_add_u32 v5, v3, 4, v5')
    a('s_lshl_b32 s24, s23, 18')
    a('s_lshl_b32 s36, s21, 9')
    a('s_add_u32 s24, s24, s36')
    for i in range(1, 8):
        a(f's_add_u32 s{24+i}, s24, {(32*(i//2) + 4*(i%2)) * 8192}')
    a('s_cmp_ge_u32 s2, 112')
    a('s_cbranch_scc1 PREP_C')
    ACC = 256
    BUF = 16
    TB = 208
    def acc(i, t): return ACC + 4 * (4 * i + t)
    def aload(es):
        b = BUF + 48 * (es % 4)
        for i in range(8):
            a(f'buffer_load_dwordx4 {R(b+4*i,4)}, v5, s[12:15], s{24+i} offen offset:{es*64}')
    def mfmas(es, breg):
        b = BUF + 48 * (es % 4)
        for i in range(8):
            for t in range(4):
                c = '0' if es == 0 else R(acc(i, t), 4)
                a(f'{MF} {R(acc(i,t),4)}, {R(b+4*i,4)}, {R(breg+4*t,4)}, {c}')
    def epilogue(scale, voff, toff_imm):
        for p in range(4):
            for t in range(4):
                o = TB + 8 + 4 * (t % 2)
                for hb in range(2):
                    for r in range(4):
                        a(f'v_accvgpr_read_b32 {R(TB+4*hb+r)}, {R(acc(2*p+hb, t)+r)}')
                if scale:
                    for r in range(8): a(f'v_mul_f32 {R(TB+r)}, s38, {R(TB+r)}')
                for q in range(4):
                    a(f'v_cvt_pk_bf16_f32 {R(o+q)}, {R(TB+2*q)}, {R(TB+2*q+1)}')
                if toff_imm:
                    a(f'buffer_store_dwordx4 {R(o,4)}, {voff}, s[8:11], s37 offen offset:{p*1024 + t*16} {PSTORE}')
                else:
                    a(f's_add_u32 s39, s37, {t*14336}')
                    a(f'buffer_store_dwordx4 {R(o,4)}, {voff}, s[8:11], s39 offen offset:{p*1024} {PSTORE}')
    srd(a, 12, 24, WSZ)
    srd(a, 16, 16, WSZ)
    a('s_lshl_b32 s32, s22, 19')
    a('s_add_u32 s32, s32, s36')
    for t in range(1, 4):
        a(f's_add_u32 s{32+t}, s32, {(32*(t//2) + 4*(t%2)) * 8192}')
    a('s_waitcnt lgkmcnt(0)')
    def ld_at(es):
        aload(es)
        b = BUF + 48 * (es % 4) + 32
        for t in range(4):
            a(f'buffer_load_dwordx4 {R(b+4*t,4)}, v5, s[16:19], s{32+t} offen offset:{es*64}')
    for es in range(4): ld_at(es)
    for es in range(8):
        a(f's_waitcnt vmcnt({12 * min(3, 7 - es)})')
        mfmas(es, BUF + 48 * (es % 4) + 32)
        if es + 4 < 8: ld_at(es + 4)
    a(f's_mul_i32 s37, s21, {MAT}')
    a(f's_mul_i32 s39, s22, {4*14336}')
    a('s_add_u32 s37, s37, s39')
    a('s_lshl_b32 s39, s23, 10')
    a('s_add_u32 s37, s37, s39')
    a(f's_mov_b32 s38, {f2u(LOG2E/16)}')
    epilogue(True, 'v4', False)
    a(f's_branch {EXIT}')
    a.label('PREP_C'); a.reset_hist()
    srd(a, 12, 32, WSZ)
    srd(a, 16, 40, WSZ)
    a('v_mul_u32_u24 v6, 7168, v3')
    a('v_lshl_add_u32 v6, v2, 3, v6')
    a(f's_mul_i32 s32, s21, {256*896}')
    a('s_lshl_b32 s33, s22, 7')
    a('s_add_u32 s32, s32, s33')
    a('v_lshrrev_b32 v7, 2, v2')
    a('v_mul_u32_u24 v7, 14336, v7')
    a('v_lshl_add_u32 v7, v3, 8, v7')
    a('v_and_b32 v8, 3, v2')
    a('v_lshl_add_u32 v7, v8, 6, v7')
    a('s_waitcnt lgkmcnt(0)')
    def ld_c(es):
        aload(es)
        b = BUF + 48 * (es % 4) + 32
        for hf in range(2):
            a(f's_add_u32 s33, s32, {(32*es + 4*hf) * 896}')
            for i in range(4):
                a(f'buffer_load_dwordx2 {R(b+2*(4*hf+i),2)}, v6, s[16:19], s33 offen offset:{i*896}')
    def perms(b, dst):
        for t in range(4):
            for q in range(4):
                a(f'v_perm_b32 {R(dst+4*t+q)}, {R(b+2*(2*q+1)+t//2)}, {R(b+2*(2*q)+t//2)}, s{40 + t%2}')
    for es in range(3): ld_c(es)
    for es in range(8):
        a(f's_waitcnt vmcnt({16 * min(2, 7 - es)})')
        perms(BUF + 48 * (es % 4) + 32, TB)
        if es + 3 < 8: ld_c(es + 3)
        mfmas(es, TB)
    a('s_add_u32 s37, s21, 16')
    a(f's_mul_i32 s37, s37, {MAT}')
    a(f's_mul_i32 s39, s22, {4*14336}')
    a('s_add_u32 s37, s37, s39')
    a('s_lshl_b32 s39, s23, 10')
    a('s_add_u32 s37, s37, s39')
    epilogue(False, 'v7', True)
    a(f's_branch {EXIT}')
    a.label('PREP_MISC'); a.reset_hist()
    a('s_sub_u32 s20, s2, 224')
    a('s_lshl_b32 s20, s20, 2')
    a('s_add_u32 s20, s20, s3')
    a('s_waitcnt lgkmcnt(0)')
    for r in range(4):
        a(f'v_mov_b32 v{240+r}, -1')
        a(f'v_mov_b32 v{244+r}, 0')
    a('s_lshl_b32 s21, s20, 12')
    for base in (MEMNAT, MEMX):
        a(f's_add_u32 s22, s21, {base}')
        for k in range(4):
            a(f'buffer_store_dwordx4 v[240:243], v4, s[8:11], s22 offen offset:{k*1024} {PSTORE}')
    a('s_lshl_b32 s21, s20, 10')
    a(f's_add_u32 s22, s21, {FLAGS}')
    a(f'buffer_store_dwordx4 v[244:247], v4, s[8:11], s22 offen {PSTORE}')
    srd(a, 12, 0, 2048 * 896)
    srd(a, 16, 88, 896)
    srd(a, 24, 64, 448 * 3584)
    srd(a, 28, 72, 448 * 3584)
    srd(a, 32, 80, 1792 * 896)
    a('v_mul_u32_u24 v5, 896, v2')
    a('v_lshl_add_u32 v5, v3, 4, v5')
    a('v_lshlrev_b32 v6, 4, v3')
    a(f's_mul_i32 s21, s20, {16*896}')
    a('s_waitcnt lgkmcnt(0)')
    XF = 16; GF = 72
    for ks in range(14):
        a(f'buffer_load_dwordx4 {R(XF+4*ks,4)}, v5, s[12:15], s21 offen offset:{ks*64}')
    for ks in range(14):
        a(f'buffer_load_dwordx4 {R(GF+4*ks,4)}, v6, s[16:19], 0 offen offset:{ks*64}')
    a(f's_add_u32 s22, s21, {XIMG}')
    a('s_waitcnt vmcnt(0)')
    for ks in range(14):
        if ks and ks % 4 == 0: a('s_add_u32 s22, s22, 4096')
        a(f'buffer_store_dwordx4 {R(XF+4*ks,4)}, v4, s[8:11], s22 offen offset:{(ks%4)*1024} {PSTORE}')
        a(f'{MF} v[8:11], {R(GF+4*ks,4)}, {R(XF+4*ks,4)}, {"0" if ks == 0 else "v[8:11]"}')
    a(f's_mov_b32 s23, {f2u(-LOG2E)}')
    a('v_mul_f32 v12, s23, v8')
    a('v_exp_f32 v12, v12')
    a('v_add_f32 v12, 1.0, v12')
    a('v_rcp_f32 v12, v12')
    a('v_lshlrev_b32 v13, 2, v2')
    a('s_lshl_b32 s22, s20, 6')
    a(f's_add_u32 s22, s22, {GVEC}')
    a(f'buffer_store_dword v12, v13, s[8:11], s22 offen {PSTORE}')
    a('v_mul_u32_u24 v5, 28672, v3')
    a('v_lshl_add_u32 v5, v2, 3, v5')
    a('v_lshrrev_b32 v7, 3, v2')
    a('v_lshlrev_b32 v7, 1, v7')
    a('v_and_b32 v8, 1, v2')
    a('v_add_u32 v7, v7, v8')
    a('v_mul_u32_u24 v7, 14336, v7')
    a('v_lshl_add_u32 v7, v3, 8, v7')
    a('v_bfe_u32 v8, v2, 1, 2')
    a('v_lshl_add_u32 v7, v8, 6, v7')
    a('v_mul_u32_u24 v6, 7168, v3')
    a('v_lshl_add_u32 v6, v2, 3, v6')
    a('v_lshrrev_b32 v9, 2, v2')
    a('v_mul_u32_u24 v9, 57344, v9')
    a('v_lshl_add_u32 v9, v3, 8, v9')
    a('v_and_b32 v8, 3, v2')
    a('v_lshl_add_u32 v9, v8, 6, v9')
    RAW = 16; OUTR = 208
    def perms2(b, dst):
        for t in range(4):
            for q in range(4):
                a(f'v_perm_b32 {R(dst+4*t+q)}, {R(b+2*(2*q+1)+t//2)}, {R(b+2*(2*q)+t//2)}, s{40 + t%2}')
    Lskip = a.newlabel('PSK')
    for it in range(4):
        if it == 3:
            a('s_cmp_ge_u32 s20, 8')
            a(f's_cbranch_scc1 {EXIT}')
        a(f's_add_u32 s21, s20, {128*it}')
        a('s_mul_i32 s22, s21, 2341')
        a('s_lshr_b32 s22, s22, 16')
        a('s_mul_i32 s23, s22, 28')
        a('s_sub_u32 s23, s21, s23')
        a(f's_mul_i32 s36, s22, {32*3584}')
        a('s_lshl_b32 s37, s23, 7')
        a('s_add_u32 s36, s36, s37')
        a(f's_mul_i32 s37, s23, {4*14336}')
        a('s_lshl_b32 s38, s22, 10')
        a('s_add_u32 s37, s37, s38')
        a('s_mul_i32 s22, s21, 9363')
        a('s_lshr_b32 s22, s22, 16')
        a('s_mul_i32 s23, s22, 7')
        a('s_sub_u32 s23, s21, s23')
        a(f's_mul_i32 s38, s22, {32*896}')
        a('s_lshl_b32 s39, s23, 7')
        a('s_add_u32 s38, s38, s39')
        a(f's_mul_i32 s39, s23, {4*57344}')
        a('s_lshl_b32 s22, s22, 10')
        a('s_add_u32 s39, s39, s22')
        for mi, sr in enumerate((24, 28)):
            for i in range(8):
                a(f's_add_u32 s22, s36, {i*3584}')
                a(f'buffer_load_dwordx2 {R(RAW+16*mi+2*i,2)}, v5, {S(sr,4)}, s22 offen')
        for hf in range(2):
            a(f's_add_u32 s22, s38, {4*hf*896}')
            for i in range(4):
                a(f'buffer_load_dwordx2 {R(RAW+32+2*(4*hf+i),2)}, v6, s[32:35], s22 offen offset:{i*896}')
        for mi, (dst, so, vo) in enumerate(((WGT, 37, 'v7'), (WUT, 37, 'v7'), (WDT, 39, 'v9'))):
            a(f's_waitcnt vmcnt({16 - 8*mi + 4*mi})')
            o = OUTR - 16 * mi
            perms2(RAW + 16 * mi, o)
            a(f's_add_u32 s22, s{so}, {dst}')
            for t in range(4):
                a(f'buffer_store_dwordx4 {R(o+4*t,4)}, {vo}, s[8:11], s22 offen offset:{t*16} {PSTORE}')
        a('s_waitcnt vmcnt(0)')
    a(f's_branch {EXIT}')
```

```python
from asmlib import *
from layout import *

NSTEP = 63
SM = 'v_smfmac_f32_16x16x64_bf16'
MF = 'v_mfma_f32_16x16x32_bf16'
DP = 'row_mask:0xf bank_mask:0xf'
sWS = 8; sRole = 12; sWave = 13; sStep = 14; sCur = 15; sNxt = 16; sPrv = 17
sT0 = 18; sT1 = 19; sT2 = 20; sT3 = 21; sSpin = 22; sStr = 23; sVX = 24; sJ = 25
SPIN_MAX = 2000000
MBOX = MEMNAT
sMc = 31
EB = WB
PROG = TBOX + 4 * SLOT - 256
F_CLAIM = FLAGS
F_TBAR = FLAGS + 8 * 256
F_RDY = FLAGS + 9 * 256
F_KV = FLAGS + 4096
F_MIR = F_KV + 64 * 512
F_H = F_MIR + 32 * 512
FLAGS_BYTES = 4096 + 64 * 512 + 32 * 512 + 16 * 256
MEGA = False
sMode = 40; sArr = 41; sRdy = 26; sNeed = 27
L_MODE = 7200
INSTR = False; XST = {0: 10, 12: 11, 14: 12, 41: 13}
STRM_MASK = None; NOSTREAM = 0; NONAT = 0
A_BE = 1; PDEPTH = 3; PSTAG = 1; A_SLEEP = 2
CDEPTH = 3; CSTAG = 1; CMDEPTH = 2; C_SLEEP = 1; CW_SLEEP = 0; C_PF = 0; PFD = 3; SPARE_PF = 0
B2AT = 20; B2A3 = 2; B3A = 43; B3B = 53; NSH = 3; NSH2 = 5; NE = 9; KLD0 = 10; KLDE = 3; XS0 = 4; XCAP = 3; EPOLL = 40; ESTEP = 2; EPOLL2 = 48; CVLD0 = 8; CVLDE = 4
ST = ''

def WREG(t, c):
    i = t * 7 + c
    return 120 + 8 * i if i < 17 else 256 + 8 * (i - 17)

A_MEM = 0; A_XT = 8192; A_SX = 22528; A_Z = 24576; A_FL = 24576; A_ST = 25600; A_KX = 28672
C_MEM = 0; C_X = 8192; C_W = 16384; C_VX = C_W + 4 * 14336
LDS_TEAM = C_VX + 65536

vLane = 1; vL16 = 2; vIdx = 3
vA0 = 4; vA1 = 5; vA2 = 6; vA3 = 7; vA4 = 8; vA5 = 9; vA6 = 10; vA7 = 11
vT0 = 12; vT1 = 13; vT2 = 14; vT3 = 15
vMem = 16; vAcc = 44; vPoll = 56; vBig = 64

def TSI(k): return [f's_memtime s[{44+2*k}:{45+2*k}]'] if INSTR else []
def TS(a, k):
    for i in TSI(k): a(i)
def ts_dump(a):
    if not INSTR: return
    Ls = a.newlabel('TSD')
    a(f's_cmp_lg_u32 {S(sStep)}, 40')
    a(f's_cbranch_scc1 {Ls}')
    a('s_waitcnt lgkmcnt(0)')
    a('s_lshr_b32 s18, s2, 3')
    a('s_lshl_b32 s18, s18, 8')
    a('s_lshl_b32 s19, s13, 6')
    a('s_add_u32 s18, s18, s19')
    a(f's_add_u32 s18, s18, {DBG + 4096}')
    a('s_mov_b64 exec, 1')
    a(f'v_mov_b32 {R(vT0)}, 0')
    for k in range(16):
        a(f'v_mov_b32 {R(vT1)}, s{44+2*k}')
        a(f'buffer_store_dword {R(vT1)}, {R(vT0)}, s[8:11], s18 offen offset:{4*k}')
        a('s_nop 1')
    a('s_waitcnt vmcnt(0)')
    a('s_mov_b64 exec, -1')
    a.label(Ls)

def slots(a, nxt=True):
    a(f's_and_b32 {S(sT0)}, {S(sStep)}, 3')
    a(f's_lshl_b32 {S(sT0)}, {S(sT0)}, 17')
    a(f's_add_u32 {S(sCur)}, {S(sT0)}, {TBOX}')
    a(f's_xor_b32 {S(sPrv)}, {S(sCur)}, {2*SLOT}')
    if nxt:
        a(f's_add_u32 {S(sT0)}, {S(sStep)}, 1')
        a(f's_mul_i32 {S(sMc)}, {S(sT0)}, 7168')
        a(f's_add_u32 {S(sMc)}, {S(sMc)}, {MBOX}')
        a(f's_and_b32 {S(sT0)}, {S(sT0)}, 3')
        a(f's_lshl_b32 {S(sT0)}, {S(sT0)}, 17')
        a(f's_add_u32 {S(sNxt)}, {S(sT0)}, {TBOX}')

def acc_max(tmp, regs, first):
    regs = list(regs); o = []
    if first:
        o.append(f'v_max3_u32 {R(tmp)}, {R(regs[0])}, {R(regs[1])}, {R(regs[2])}'); regs = regs[3:]
    while regs:
        if len(regs) >= 2:
            o.append(f'v_max3_u32 {R(tmp)}, {R(tmp)}, {R(regs[0])}, {R(regs[1])}'); regs = regs[2:]
        else:
            o.append(f'v_max_u32 {R(tmp)}, {R(tmp)}, {R(regs[0])}'); regs = regs[1:]
    return o

def check_regs(a, base, n, tmp):
    for x in acc_max(tmp, range(base, base + n), True): a(x)
    a(f'v_cmp_eq_u32 vcc, -1, {R(tmp)}')

def spin_guard(a, exit_label):
    a(f's_add_u32 {S(sSpin)}, {S(sSpin)}, 1')
    a(f's_cmp_gt_u32 {S(sSpin)}, {SPIN_MAX}')
    a(f's_cbranch_scc1 {exit_label}')

def zero4(r): return [f'v_mov_b64 {R(r,2)}, 0', f'v_mov_b64 {R(r+2,2)}, 0']

def load_weights(a, tile_off):
    for t in range(7):
        tile_off(t)
        for q in range(4):
            if q: a(f's_add_u32 {S(sT0)}, {S(sT0)}, 4096')
            for k in range(4):
                ks = 4 * q + k
                if ks >= 14: break
                reg = WREG(t, ks // 2) + 4 * (ks % 2)
                a(f'buffer_load_dwordx4 {R(reg,4)}, {R(vL16)}, {S(sWS,4)}, {S(sT0)} offen offset:{k*1024}')

def common_lane_setup(a):
    a(f'v_and_b32 {R(vLane)}, 63, v0')
    a(f'v_lshlrev_b32 {R(vL16)}, 4, {R(vLane)}')
    a(f'v_and_b32 {R(vT0)}, 8, {R(vLane)}')
    a(f'v_cmp_eq_u32 vcc, 0, {R(vT0)}')
    a(f'v_mov_b32 {R(vT1)}, 0xeeee')
    a(f'v_mov_b32 {R(vT2)}, 0x4444')
    a(f'v_cndmask_b32 {R(vIdx)}, {R(vT1)}, {R(vT2)}, vcc')

def team_barrier_old(a, exit_label, n=30, arrive=True):
    a('s_waitcnt vmcnt(0) lgkmcnt(0)')
    a('s_barrier')
    Lw = a.newlabel('TBW'); Ls = a.newlabel('TBS')
    a(f's_cmp_lg_u32 {S(sWave)}, 0')
    a(f's_cbranch_scc1 {Ls}')
    a(f'v_mov_b32 {R(vT0)}, 0')
    a(f'v_mov_b32 {R(vT1)}, 1')
    a('s_mov_b64 exec, 1')
    if arrive: a(f'global_atomic_add {R(vT0)}, {R(vT1)}, s[4:5] offset:128 sc1')
    a.label(Lw)
    a(f'global_load_dword {R(vT2)}, {R(vT0)}, s[4:5] offset:128 sc1')
    spin_guard(a, exit_label)
    a('s_waitcnt vmcnt(0)')
    a(f'v_cmp_gt_u32 vcc, {n}, {R(vT2)}')
    a(f's_cbranch_vccnz {Lw}')
    a('s_mov_b64 exec, -1')
    a.label(Ls)
    a('s_barrier')

def team_barrier(a, exit_label, n=30, arrive=True):
    if not MEGA: return team_barrier_old(a, exit_label, n, arrive)
    a('s_waitcnt vmcnt(0) lgkmcnt(0)')
    a('s_barrier')
    Lw = a.newlabel('TBW'); Ls = a.newlabel('TBS')
    a(f'v_mov_b32 {R(vT0)}, {L_MODE}')
    a(f's_cmp_lg_u32 {S(sWave)}, 0')
    a(f's_cbranch_scc1 {Ls}')
    a(f'v_mov_b32 {R(vT1)}, {S(sArr)}')
    a(f's_mov_b32 {S(sT0)}, {F_TBAR}')
    a('s_mov_b64 exec, 1')
    a(f'buffer_atomic_add {R(vT1)}, off, {S(sWS,4)}, {S(sT0)} sc1')
    a.label(Lw)
    a(f'buffer_load_dword {R(vT2)}, off, {S(sWS,4)}, {S(sT0)} sc1')
    spin_guard(a, exit_label)
    a('s_waitcnt vmcnt(0)')
    a(f'v_and_b32 {R(vT1)}, 0xffff, {R(vT2)}')
    a(f'v_cmp_gt_u32 vcc, 32, {R(vT1)}')
    a(f's_cbranch_vccnz {Lw}')
    a(f'v_lshrrev_b32 {R(vT2)}, 16, {R(vT2)}')
    a(f'ds_write_b32 {R(vT0)}, {R(vT2)}')
    a('s_waitcnt lgkmcnt(0)')
    a('s_mov_b64 exec, -1')
    a.label(Ls)
    a('s_barrier')
    a(f'ds_read_b32 {R(vT1)}, {R(vT0)}')
    a('s_waitcnt lgkmcnt(0)')
    a(f'v_readfirstlane_b32 {S(sMode)}, {R(vT1)}')

def ensure_rdy(a, exit_label, ahead, base=sStep):
    if not MEGA: return
    Lok = a.newlabel('RDO'); Lp = a.newlabel('RDP')
    if base is None: a(f's_mov_b32 {S(sNeed)}, {ahead}')
    else:
        a(f's_add_u32 {S(sNeed)}, {S(base)}, {ahead}')
        a(f's_min_u32 {S(sNeed)}, {S(sNeed)}, 64')
    a(f's_cmp_ge_u32 {S(sRdy)}, {S(sNeed)}')
    a(f's_cbranch_scc1 {Lok}')
    a(f's_mov_b32 {S(sT0)}, {F_RDY}')
    a.label(Lp)
    a(f'buffer_load_dword {R(vT0)}, off, {S(sWS,4)}, {S(sT0)} sc1')
    spin_guard(a, exit_label)
    a('s_waitcnt vmcnt(0)')
    a(f'v_readfirstlane_b32 {S(sRdy)}, {R(vT0)}')
    a(f's_cmp_lt_u32 {S(sRdy)}, {S(sNeed)}')
    a(f's_cbranch_scc1 {Lp}')
    a.label(Lok)

def both_modes(a, body):
    global ST
    if not MEGA:
        body(); return
    Lslow = a.newlabel('SLOW')
    a(f's_cmp_lg_u32 {S(sMode)}, 0')
    a(f's_cbranch_scc1 {Lslow}')
    ST = ''; body()
    a.label(Lslow); a.reset_hist()
    ST = 'sc1'; body(); ST = ''

class Gaps:
    def __init__(self): self.m = {}; self.v = {}
    def nm(self, k): return sum(1 for x in self.m.get(k, []) if not x.startswith('s_') and not x.endswith(':'))
    def fixed(self, k, lst):
        for x in lst:
            (self.v if x.startswith('v_') else self.m).setdefault(k, []).append(x)
    def place(self, lst, start, step=0, cap=1):
        k = start; pend = []; last = start; prevv = False
        for x in lst:
            pend.append(x)
            if x.startswith('s_'): continue
            isv = x.startswith('v_')
            if prevv and k == last and (not isv or len(pend) > 1): k += 1
            while (len(self.v.get(k, [])) if isv else self.nm(k)) >= cap: k += 1
            self.fixed(k, pend); pend = []; last = k; k += step; prevv = isv
        if pend: self.fixed(last + (1 if prevv else 0), pend)
        return last
    def nvm(self, upto):
        return sum(1 for k, v in self.m.items() if k <= upto for x in v if x.startswith('buffer_'))
    def nds_after(self, pat, upto):
        seq = [x for k in sorted(self.m) if k <= upto for x in self.m[k] if x.startswith('ds_')]
        idx = max(i for i, x in enumerate(seq) if pat in x)
        return len(seq) - 1 - idx
    def weave(self, stream, last):
        items = {}
        for kk in sorted(set(self.m) | set(self.v)):
            items.setdefault(min(kk, last), []).extend(self.m.get(kk, []) + self.v.get(kk, []))
        out = []; k = -1; i = 0
        while i < len(stream):
            ins = stream[i]; out.append(ins); i += 1
            if ins.startswith('v_smfmac') or ins.startswith('v_mfma'):
                k += 1
                if k in XST: out.extend(TSI(XST[k]))
                it = items.get(k, [])
                tail = []
                while i < len(stream) and stream[i].startswith('s_'):
                    tail.append(stream[i]); i += 1
                nv = [x for x in it if not x.startswith('v_')] if k < last else it
                vv = [x for x in it if x.startswith('v_')] if k < last else []
                out.extend(nv + tail + vv)
        return out

def first_waits(stream):
    out = []; k = 0
    for ins in stream:
        if ins.startswith(SM) and k < 7:
            out.append(f's_waitcnt lgkmcnt({6-k})'); k += 1
        out.append(ins)
    return out

def mem_frag_reads(a):
    for c in range(7):
        a(f'ds_read_b128 {R(vMem+4*c,4)}, {R(vL16)} offset:{c*1024}')

def step_end(a, Lloop):
    TS(a, 15)
    if INSTR: a('s_memrealtime s[72:73]')
    ts_dump(a)
    a(f's_add_u32 {S(sStep)}, {S(sStep)}, 1')
    a(f's_cmp_lt_u32 {S(sStep)}, {NSTEP}')
    a(f's_cbranch_scc1 {Lloop}')

CH = [[0, 1], [2, 3], [4, 5], [6, 0]]
def poll_mem(a, chunks, exit_label, pre=None):
    L = a.newlabel('PM')
    n = len(chunks)
    def rnd():
        for i, c in enumerate(chunks):
            if c < 4:
                a(f'buffer_load_dwordx4 {R(vMem+4*c,4)}, {R(vL16)}, {S(sWS,4)}, {S(sCur)} offen offset:{c*1024} sc1')
            else:
                a(f'buffer_load_dwordx4 {R(vMem+4*c,4)}, {R(vA7)}, {S(sWS,4)}, {S(sCur)} offen offset:{(c-4)*1024} sc1')
    a('s_waitcnt vmcnt(0)')
    for x in (pre or []): a(x)
    if A_BE: a('s_barrier')
    if A_SLEEP: a(f's_sleep {A_SLEEP}')
    TS(a, 0)
    for d in range(PDEPTH - 1):
        rnd()
        if PSTAG: a(f's_sleep {PSTAG}')
    a('s_waitcnt lgkmcnt(0)')
    a.label(L)
    rnd()
    spin_guard(a, exit_label)
    for i, c in enumerate(chunks):
        a(f's_waitcnt vmcnt({n*(PDEPTH-1) + n-1-i})')
        for x in acc_max(vT0, range(vMem+4*c, vMem+4*c+4), i == 0): a(x)
    a(f'v_cmp_eq_u32 vcc, -1, {R(vT0)}')
    a(f's_cbranch_vccnz {L}')
    TS(a, 2)
    if INSTR: a(f's_mov_b32 s46, {S(sSpin)}')

def kdma(kt):
    out = []
    for q in range(4):
        out += [f's_add_u32 {S(sT0)}, {S(sStr)}, {kt*14336 + q*4096}', f's_mov_b32 m0, {A_KX + kt*14336 + q*4096}']
        for k in range(4):
            if 4 * q + k < 14:
                out.append(f'buffer_load_dwordx4 {R(vL16)}, {S(sWS,4)}, {S(sT0)} offen offset:{k*1024} sc1 lds')
    return out

def tprime_write(acc, t):
    return [f'v_cvt_pk_bf16_f32 {R(vT0)}, {R(acc)}, {R(acc+1)}',
            f'v_cvt_pk_bf16_f32 {R(vT1)}, {R(acc+2)}, {R(acc+3)}',
            f'ds_write_b64 {R(vA0)}, {R(vT0,2)} offset:{A_XT + t*2048}']
def tpm(accs, t, c):
    return f'{SM} {R(accs[t],4)}, {R(vMem+4*c,4)}, {R(WREG(t,c),8)}, {R(vIdx)}'
def early_part(gp, accs, own, ne, wr_own=None):
    first = [(t, c) for c in own for t in range(7)][:ne]
    G = [tpm(accs, t, c) for t, c in first]
    for i, c in enumerate(wr_own or own):
        gp.fixed(i, [f'ds_write_b128 {R(vL16)}, {R(vMem+4*c,4)} offset:{c*1024}'])
    oth = [c for c in range(7) if c not in own]
    gp.fixed(B1AT, ['s_waitcnt lgkmcnt(0)', 's_barrier'] + TSI(3))
    gp.place([f'ds_read_b128 {R(vMem+4*c,4)}, {R(vL16)} offset:{c*1024}' for c in oth], B1AT, cap=2)
    rest = [[c for c in own + oth if (t, c) not in first] for t in range(7)]
    return G, rest
vTag = 0; vFlA = vA6
def flagw(t): return f'ds_write_b32 {R(vFlA)}, {R(vTag)} offset:{A_FL + t*16}'
def late_part(gp, accs, rest, base, flags=True, flex=False):
    G = []; wr = []
    for t in range(7):
        G += [tpm(accs, t, c) for c in rest[t]]
        e = base + len(G) - 1
        p = tprime_write(accs[t], t) + ([flagw(t)] if flags else [])
        if flex:
            wr.append(gp.place(p, max(e + 3, wr[-1] if wr else 0), cap=FLEXCAP, step=1))
        else:
            for i, x in enumerate(p): gp.fixed(e + 3 + i, [x])
            wr.append(e + 3 + len(p) - 1)
    return G, wr
B1AT = 4

def row_map(a, row, key, tmp):
    a(f'v_bfe_u32 {R(row)}, {R(vLane)}, 4, 1')
    a(f'v_lshlrev_b32 {R(row)}, 2, {R(row)}')
    a(f'v_bfe_u32 {R(tmp)}, {R(vLane)}, 5, 1')
    a(f'v_lshl_add_u32 {R(row)}, {R(tmp)}, 1, {R(row)}')
    a(f'v_bfe_u32 {R(tmp)}, {R(vLane)}, 3, 1')
    a(f'v_add_u32 {R(row)}, {R(row)}, {R(tmp)}')
    a(f'v_and_b32 {R(key)}, 7, {R(vLane)}')

def gen_A(a, EXIT, stamp=None):
    common_lane_setup(a)
    a(f'v_add_u32 {R(vA7)}, 4096, {R(vL16)}')
    n, g = vT0, vT1
    a(f'v_and_b32 {R(n)}, 15, {R(vLane)}')
    a(f'v_lshrrev_b32 {R(g)}, 4, {R(vLane)}')
    a(f'v_lshrrev_b32 {R(vT2)}, 2, {R(n)}')
    a(f'v_xor_b32 {R(vT3)}, {R(g)}, {R(vT2)}')
    a(f'v_and_b32 {R(vA0)}, 3, {R(n)}')
    a(f'v_lshl_add_u32 {R(vA0)}, {R(vA0)}, 2, {R(vT3)}')
    a(f'v_and_b32 {R(vT3)}, 1, {R(vT2)}')
    a(f's_and_b32 {S(sT0)}, {S(sWave)}, 1')
    a(f'v_xor_b32 {R(vT3)}, {S(sT0)}, {R(vT3)}')
    a(f'v_lshl_add_u32 {R(vA0)}, {R(vT3)}, 4, {R(vA0)}')
    a(f'v_lshlrev_b32 {R(vA0)}, 3, {R(vA0)}')
    a(f'v_lshl_add_u32 {R(vA0)}, {R(vT2)}, 8, {R(vA0)}')
    a(f's_lshr_b32 {S(sT0)}, {S(sWave)}, 1')
    a(f's_lshl_b32 {S(sT0)}, {S(sT0)}, 10')
    a(f'v_add_u32 {R(vA0)}, {S(sT0)}, {R(vA0)}')
    a(f'v_and_b32 {R(vT2)}, 3, {R(n)}')
    a(f'v_xor_b32 {R(vT2)}, {R(vT2)}, {R(g)}')
    a(f'v_and_b32 {R(vT3)}, 12, {R(n)}')
    a(f'v_add_u32 {R(vT2)}, {R(vT2)}, {R(vT3)}')
    a(f'v_and_b32 {R(vT3)}, 1, {R(g)}')
    a(f'v_lshl_add_u32 {R(vT2)}, {R(vT3)}, 4, {R(vT2)}')
    a(f'v_lshlrev_b32 {R(vT2)}, 3, {R(vT2)}')
    a(f'v_lshl_add_u32 {R(vA1)}, {R(g)}, 8, {R(vT2)}')
    a(f'v_xor_b32 {R(vA2)}, 128, {R(vA1)}')
    for z in zero4(vAcc): a(z)
    a(f'ds_write_b128 {R(vL16)}, {R(vAcc,4)} offset:{A_Z}')
    def toff(t):
        a(f's_mul_i32 {S(sT0)}, {S(sRole)}, {MAT}')
        a(f's_mul_i32 {S(sT1)}, {S(sWave)}, 14336')
        a(f's_add_u32 {S(sT0)}, {S(sT0)}, {S(sT1)}')
        a(f's_add_u32 {S(sT0)}, {S(sT0)}, {WIMG + t*4*14336}')
    load_weights(a, toff)
    a(f's_mov_b32 {S(sSpin)}, 0')
    a(f's_mul_i32 {S(sT0)}, {S(sRole)}, 28672')
    a(f's_add_u32 {S(sStr)}, {S(sT0)}, {KIMG}')
    LW = [a.newlabel('AW') for _ in range(4)]
    for w in (1, 2, 3):
        a(f's_cmp_eq_u32 {S(sWave)}, {w}')
        a(f's_cbranch_scc1 {LW[w]}')
    for w in range(4):
        a.label(LW[w]); a.reset_hist()
        gen_A_wave(a, w, EXIT, stamp)

def gen_A_wave(a, w, EXIT, stamp):
    post = []
    row, key = vT2, vT3
    M1 = vAcc + 10
    if w == 0:
        row_map(a, row, key, vT0)
        a(f'v_lshlrev_b32 {R(vA5)}, 3, {R(row)}')
        a(f'v_and_b32 {R(vT0)}, 1, {R(key)}')
        a(f'v_cmp_eq_u32 s[36:37], 0, {R(vT0)}')
        a(f'v_lshlrev_b32 {R(vA4)}, 11, {R(vT0)}')
        a(f'v_lshl_add_u32 {R(vA4)}, {R(row)}, 4, {R(vA4)}')
        a(f'v_lshrrev_b32 {R(vT1)}, 1, {R(key)}')
        a(f'v_lshl_add_u32 {R(vA4)}, {R(vT1)}, 2, {R(vA4)}')
        a(f's_lshl_b32 {S(sT0)}, {S(sRole)}, 7')
        a(f's_add_u32 {S(sT0)}, {S(sT0)}, {PB}')
        a(f'v_add_u32 {R(vA4)}, {S(sT0)}, {R(vA4)}')
        a(f'v_add_u32 {R(vT0)}, 1, {R(row)}')
        a(f'v_cmp_eq_u32 s[38:39], {R(vT0)}, {R(key)}')
        a(f'v_cmp_eq_u32 s[42:43], {R(row)}, {R(key)}')
        a(f's_andn2_b64 s[38:39], s[38:39], s[36:37]')
        a(f's_andn2_b64 s[42:43], s[42:43], s[36:37]')
        a(f'v_mov_b32 {R(M1)}, -1')
        for sl in range(4):
            a(f's_mov_b32 {S(sT0)}, {TBOX + sl*SLOT}')
            a(f'buffer_store_dword {R(M1)}, {R(vA4)}, {S(sWS,4)}, {S(sT0)} offen sc1')
    elif w == 3:
        a(f'v_lshrrev_b32 {R(row)}, 3, {R(vLane)}')
        a(f'v_and_b32 {R(key)}, 7, {R(vLane)}')
        a(f'v_lshrrev_b32 {R(vA1)}, 2, {R(row)}')
        a(f'v_lshlrev_b32 {R(vA1)}, 8, {R(vA1)}')
        a(f'v_and_b32 {R(vT0)}, 3, {R(key)}')
        a(f'v_lshl_add_u32 {R(vA1)}, {R(vT0)}, 6, {R(vA1)}')
        a(f'v_lshrrev_b32 {R(vT0)}, 2, {R(key)}')
        a(f'v_lshl_add_u32 {R(vA1)}, {R(vT0)}, 4, {R(vA1)}')
        a(f'v_and_b32 {R(vA2)}, 3, {R(row)}')
        a(f'v_lshl_add_u32 {R(vA1)}, {R(vA2)}, 2, {R(vA1)}')
        a(f'v_add_u32 {R(vA1)}, {A_SX}, {R(vA1)}')
        a(f'v_add_u32 {R(vA2)}, 1024, {R(vA1)}')
        a(f'v_lshlrev_b32 {R(vA5)}, 3, {R(row)}')
        a(f'v_mov_b32 {R(vA3)}, 0')
        a(f's_lshr_b32 {S(sT0)}, {S(sRole)}, 2')
        a(f's_lshl_b32 {S(sT0)}, {S(sT0)}, 11')
        a(f's_and_b32 {S(sT1)}, {S(sRole)}, 1')
        a(f's_lshl_b32 {S(sT1)}, {S(sT1)}, 10')
        a(f's_add_u32 {S(sT0)}, {S(sT0)}, {S(sT1)}')
        a(f's_and_b32 {S(sT1)}, {S(sRole)}, 2')
        a(f's_lshl_b32 {S(sT1)}, {S(sT1)}, 6')
        a(f's_add_u32 {S(sT0)}, {S(sT0)}, {S(sT1)}')
        a(f's_add_u32 {S(sT0)}, {S(sT0)}, {EB}')
        a(f'v_lshrrev_b32 {R(vT0)}, 1, {R(key)}')
        a(f'v_lshl_add_u32 {R(vA4)}, {R(vT0)}, 8, {S(sT0)}')
        a(f'v_lshl_add_u32 {R(vA4)}, {R(row)}, 4, {R(vA4)}')
        a(f'v_and_b32 {R(vT0)}, 1, {R(key)}')
        a(f'v_lshl_add_u32 {R(vA4)}, {R(vT0)}, 3, {R(vA4)}')
        a(f'v_mov_b32 {R(M1)}, -1')
        a(f'v_mov_b32 {R(M1+1)}, -1')
        for sl in range(4):
            a(f's_mov_b32 {S(sT0)}, {TBOX + sl*SLOT}')
            a(f'buffer_store_dwordx2 {R(M1,2)}, {R(vA4)}, {S(sWS,4)}, {S(sT0)} offen sc1')
    else:
        a(f'v_add_u32 {R(vA1)}, {A_KX + (w-1)*14336}, {R(vL16)}')
        ensure_rdy(a, EXIT, 1, None)
        for i in kdma(w - 1): a(i)
    a(f'v_mov_b32 {R(vFlA)}, {4*w}')
    a(f'v_mov_b32 {R(vTag)}, 0')
    team_barrier(a, EXIT)
    both_modes(a, lambda: gen_A_loop(a, w, EXIT, stamp))

def gen_A_loop(a, w, EXIT, stamp):
    post = []
    M1 = vAcc + 10
    a(f's_mov_b32 {S(sStep)}, 0')
    if stamp: stamp(a, 0)
    L = a.newlabel('ALOOP')
    a.label(L); a.reset_hist()
    slots(a, False)
    a(f'v_add_u32 {R(vTag)}, 1, {R(vTag)}')
    a(f's_mov_b32 {S(sSpin)}, 0')
    pre_poll = None
    KF = [76 + 8 * i for i in range(5)] + [76, 84]
    if w == 0:
        accs = [vBig, vBig + 4, vBig + 8, vBig + 12, vBig + 44, vBig + 48, vBig + 52]
        pz = accs + [vAcc]
        a(f'buffer_store_dword {R(M1)}, {R(vA4)}, {S(sWS,4)}, {S(sPrv)} offen {ST}')
    elif w == 3:
        accs = [vBig + 4 * i for i in range(7)]
        pz = accs
        a(f'buffer_store_dwordx2 {R(M1,2)}, {R(vA4)}, {S(sWS,4)}, {S(sPrv)} offen {ST}')
    else:
        if STRM_MASK is None: a(f's_add_u32 {S(sStr)}, {S(sStr)}, {16*28672}')
        ensure_rdy(a, EXIT, 2)
        accs = [44 + 4 * i for i in range(7)]
        SX = 72
        pz = accs + [SX]
        kord = CH[w] + [c for c in range(7) if c not in CH[w]]
        def kread(i):
            return [f'ds_read_b128 {R(KF[i]+4*hh,4)}, {R(vA1)} offset:{(2*kord[i]+hh)*1024}' for hh in range(2)]
        pre_poll = [x for i in range(5) for x in kread(i)]
    for x in pz:
        for z in zero4(x): a(z)
    poll_mem(a, CH[w], EXIT, pre_poll)
    gp = Gaps()
    XTW = lambda t: f'ds_write_b64 {R(vA0)}, {R(vT0,2)} offset:{A_XT + t*2048}'
    ne = NE if w in (1, 2) else NE + 2
    G1, rest = early_part(gp, accs, CH[w], ne, [6] if w == 3 else None)
    if w == 0:
        def trr(c):
            b = vBig + 8 * c
            return [f'ds_read_b64_tr_b16 {R(b,2)}, {R(vA1)} offset:{A_XT + c*2048}',
                    f'ds_read_b64_tr_b16 {R(b+2,2)}, {R(vA2)} offset:{A_XT + c*2048}',
                    f'ds_read_b64_tr_b16 {R(b+4,2)}, {R(vA1)} offset:{A_XT + c*2048 + 1024}',
                    f'ds_read_b64_tr_b16 {R(b+6,2)}, {R(vA2)} offset:{A_XT + c*2048 + 1024}']
        def smm(c): return f'{SM} {R(vAcc,4)}, {R(vMem+4*c,4)}, {R(vBig+8*c,8)}, {R(vIdx)}'
        G2, wr = late_part(gp, accs, rest, ne, flags=False)
        FR = [vPoll, vPoll + 4]; vOk = vA3; OK = [vAcc + 6, vAcc + 7, vAcc + 8, vAcc + 9]
        def flr(c): return f'ds_read_b128 {R(FR[c%2],4)}, {R(vFlA)} offset:{A_FL + c*16}'
        def flc(c, dst):
            f = FR[c % 2]
            return f'v_min3_u32 {R(dst)}, {R(f+1)}, {R(f+2)}, {R(f+3)}'
        for c in range(NSH):
            k = gp.place([flr(c)] + trr(c), SPEC[c])
            kk = k + 1
            gp.fixed(kk, [f's_waitcnt lgkmcnt({gp.nds_after(flr(c), kk)})'])
            gp.place([flc(c, OK[c])], kk)
        G = G1 + ['s_waitcnt lgkmcnt(0)'] + G2
        for i in gp.weave(G, 48): a(i)
        TS(a, 4)
        mx = vAcc + 4; lx = vAcc + 5
        def spin_chunk(c, extra=[], do=True):
            Ls = a.newlabel('SPC')
            a.label(Ls)
            a(flr(c))
            for i in trr(c) + extra: a(i)
            spin_guard(a, EXIT)
            a(f's_waitcnt lgkmcnt({4 + len(extra)})')
            a(flc(c, vOk))
            a(f'v_cmp_lt_u32 vcc, {R(vOk)}, {R(vTag)}')
            a(f's_cbranch_vccnz {Ls}')
            a('s_waitcnt lgkmcnt(0)')
            if do: a(smm(c))
        a(f'v_min3_u32 {R(vOk)}, {R(OK[0])}, {R(OK[1])}, {R(OK[NSH-1])}')
        assert NSH == 3
        a(f'v_cmp_lt_u32 vcc, {R(vOk)}, {R(vTag)}')
        Lsl = a.newlabel('SSL'); Lbk = a.newlabel('SBK')
        a(f's_cbranch_vccnz {Lsl}')
        a.label(Lbk)
        a('s_waitcnt lgkmcnt(1)')
        L34 = a.newlabel('S34'); L34b = a.newlabel('S34B')
        r34 = [flr(4)] + trr(3) + trr(4)
        a(smm(0))
        for x in r34[:3]: a(x)
        a(smm(1))
        for x in r34[3:6]: a(x)
        a(smm(2))
        for x in r34[6:]: a(x)
        a.label(L34b)
        a('s_waitcnt lgkmcnt(8)')
        a(flc(4, vOk))
        a(f'v_cmp_lt_u32 vcc, {R(vOk)}, {R(vTag)}')
        a(f's_cbranch_vccnz {L34}')
        r5 = [flr(5)] + trr(5)
        for x in r5: a(x)
        a('s_waitcnt lgkmcnt(9)')
        a(smm(3))
        a('s_waitcnt lgkmcnt(5)')
        a(smm(4))
        L5 = a.newlabel('S5'); L5b = a.newlabel('S5B')
        a.label(L5b)
        a('s_waitcnt lgkmcnt(4)')
        a(flc(5, vOk))
        a(f'v_cmp_lt_u32 vcc, {R(vOk)}, {R(vTag)}')
        a(f's_cbranch_vccnz {L5}')
        r6 = [flr(6)] + trr(6) + [f'ds_read_b64 {R(mx,2)}, {R(vA5)} offset:{A_ST}']
        TS(a, 8)
        for x in r6: a(x)
        a('s_waitcnt lgkmcnt(6)')
        a(smm(5))
        L6 = a.newlabel('S6'); L6b = a.newlabel('S6B')
        a.label(L6b)
        a('s_waitcnt lgkmcnt(5)')
        a(flc(6, vOk))
        a(f'v_cmp_lt_u32 vcc, {R(vOk)}, {R(vTag)}')
        a(f's_cbranch_vccnz {L6}')
        a('s_waitcnt lgkmcnt(1)')
        a(smm(6))
        a('s_waitcnt lgkmcnt(0)')
        def retry(Lx, Lb, rs):
            def f():
                a.label(Lx); a.reset_hist()
                for x in rs: a(x)
                spin_guard(a, EXIT)
                a(f's_branch {Lb}')
            return f
        post.extend([retry(L34, L34b, r34), retry(L5, L5b, r5), retry(L6, L6b, r6)])
        def slow0():
            a.label(Lsl); a.reset_hist()
            Ls = a.newlabel('SPS')
            a.label(Ls)
            a(flr(NSH - 1))
            spin_guard(a, EXIT)
            a('s_waitcnt lgkmcnt(0)')
            a(flc(NSH - 1, vOk))
            a(f'v_cmp_lt_u32 vcc, {R(vOk)}, {R(vTag)}')
            a(f's_cbranch_vccnz {Ls}')
            if INSTR: a(f's_add_u32 {S(sSpin)}, {S(sSpin)}, 100')
            for c in range(NSH):
                for i in trr(c): a(i)
            a('s_waitcnt lgkmcnt(0)')
            a(f's_branch {Lbk}')
        post.append(slow0)
        TS(a, 9)
        if INSTR: a(f's_mov_b32 s54, {S(sSpin)}')
        D0 = vAcc
        z = vT0; t = vT1; sx = vT2; e = vT3; nlo = vAcc + 6; nhi = vAcc + 7; en = vAcc + 8
        a(f'v_permlane32_swap_b32 {R(D0)}, {R(D0+2)}')
        a(f'v_permlane32_swap_b32 {R(D0+1)}, {R(D0+3)}')
        a(f'v_add_f32 {R(D0)}, {R(D0)}, {R(D0+2)}')
        a(f'v_add_f32 {R(D0+1)}, {R(D0+1)}, {R(D0+3)}')
        a(f'v_add_f32_dpp {R(z)}, {R(D0)}, {R(D0)} row_ror:8 row_mask:0xf bank_mask:0x3')
        a(f'v_add_f32_dpp {R(z)}, {R(D0+1)}, {R(D0+1)} row_ror:8 row_mask:0xf bank_mask:0xc')
        a(f'v_max_f32 {R(t)}, {R(z)}, {R(mx)}')
        a(f'v_max_f32_dpp {R(t)}, {R(t)}, {R(t)} quad_perm:[1,0,3,2] {DP}')
        a(f'v_max_f32_dpp {R(t)}, {R(t)}, {R(t)} quad_perm:[2,3,0,1] {DP}')
        a(f'v_max_f32_dpp {R(t)}, {R(t)}, {R(t)} row_half_mirror {DP}')
        a(f'v_sub_f32 {R(e)}, {R(z)}, {R(t)}')
        a(f'v_sub_f32 {R(sx)}, {R(mx)}, {R(t)}')
        a(f'v_exp_f32 {R(e)}, {R(e)}')
        a(f'v_exp_f32 {R(sx)}, {R(sx)}')
        a(f'v_mov_b32_dpp {R(en)}, {R(e)} quad_perm:[1,0,3,2] {DP}')
        a(f'v_cndmask_b32 {R(nlo)}, 0, {R(sx)}, s[38:39]')
        a(f'v_add_f32 {R(t)}, {R(e)}, {R(en)}')
        a(f'v_cndmask_b32 {R(nhi)}, 0, {R(sx)}, s[42:43]')
        a(f'v_cndmask_b32 {R(nlo)}, {R(nlo)}, {R(e)}, s[36:37]')
        a(f'v_add_f32_dpp {R(t)}, {R(t)}, {R(t)} quad_perm:[2,3,0,1] {DP}')
        a(f'v_cndmask_b32 {R(nhi)}, {R(nhi)}, {R(en)}, s[36:37]')
        a(f'v_add_f32_dpp {R(t)}, {R(t)}, {R(t)} row_half_mirror {DP}')
        a(f'v_fma_f32 {R(t)}, {R(lx)}, {R(sx)}, {R(t)}')
        a(f'v_rcp_f32 {R(t)}, {R(t)}')
        a(f'v_mul_f32 {R(nlo)}, {R(nlo)}, {R(t)}')
        a(f'v_mul_f32 {R(nhi)}, {R(nhi)}, {R(t)}')
        a(f'v_cvt_pk_bf16_f32 {R(nlo)}, {R(nlo)}, {R(nhi)}')
        a(f'v_min_u32 {R(nlo)}, -2, {R(nlo)}')
        a(f'buffer_store_dword {R(nlo)}, {R(vA4)}, {S(sWS,4)}, {S(sCur)} offen {ST}')
    elif w == 3:
        sx0 = vBig + 32
        s0, s1, s2, s3 = sx0, sx0 + 1, sx0 + 2, sx0 + 3
        m = vAcc; l = vAcc + 1; q = vAcc + 2
        F2 = vPoll
        sxr = [f'ds_read_b128 {R(F2,4)}, {R(vA3)} offset:{A_FL + 7*16}',
               f'ds_read2_b32 {R(sx0,2)}, {R(vA1)} offset0:0 offset1:8',
               f'ds_read2_b32 {R(sx0+4,2)}, {R(vA1)} offset0:128 offset1:136',
               f'ds_read2_b32 {R(sx0+2,2)}, {R(vA2)} offset0:0 offset1:8',
               f'ds_read2_b32 {R(sx0+6,2)}, {R(vA2)} offset0:128 offset1:136']
        k = gp.place(sxr, SXAT, cap=3)
        chk = [f'v_min_u32 {R(F2)}, {R(F2+1)}, {R(F2+2)}', f'v_cmp_lt_u32 vcc, {R(F2)}, {R(vTag)}']
        ops = [f'v_add_f32 {R(x)}, {R(x)}, {R(x+4)}' for x in (s0, s1, s2, s3)]
        ops += [f'v_max3_f32 {R(m)}, {R(s0)}, {R(s1)}, {R(s2)}', f'v_max_f32 {R(m)}, {R(m)}, {R(s3)}',
               f'v_max_f32_dpp {R(m)}, {R(m)}, {R(m)} quad_perm:[1,0,3,2] {DP}',
               f'v_max_f32_dpp {R(m)}, {R(m)}, {R(m)} quad_perm:[2,3,0,1] {DP}',
               f'v_max_f32_dpp {R(m)}, {R(m)}, {R(m)} row_half_mirror {DP}']
        ops += [f'v_sub_f32 {R(x)}, {R(x)}, {R(m)}' for x in (s0, s2, s1, s3)]
        ops += [f'v_exp_f32 {R(x)}, {R(x)}' for x in (s0, s2, s1, s3)]
        ops += [f'v_cvt_pk_bf16_f32 {R(q)}, {R(s0)}, {R(s2)}', f'v_cvt_pk_bf16_f32 {R(q+1)}, {R(s1)}, {R(s3)}',
               f'v_min_u32 {R(q)}, -2, {R(q)}', f'v_min_u32 {R(q+1)}, -2, {R(q+1)}',
               f'buffer_store_dwordx2 {R(q,2)}, {R(vA4)}, {S(sWS,4)}, {S(sCur)} offen {ST}'] + TSI(9)
        k0 = k + XS0
        Lsl = a.newlabel('SXS'); Lbk = a.newlabel('SXB')
        gp.fixed(k0 - 1, ['s_waitcnt lgkmcnt(@)'] + chk)
        gp.fixed(k0, [f's_cbranch_vccnz {Lsl}', Lbk + ':'])
        k = gp.place(ops[:6], k0, cap=XCAP)
        k = gp.place(ops[6:9], k + 1, cap=XCAP, step=1)
        k = gp.place(ops[9:], k, cap=XCAP)
        ops2 = [f'v_add_f32 {R(s0)}, {R(s0)}, {R(s2)}', f'v_add_f32 {R(l)}, {R(s1)}, {R(s3)}', f'v_add_f32 {R(l)}, {R(l)}, {R(s0)}',
                f'v_add_f32_dpp {R(l)}, {R(l)}, {R(l)} quad_perm:[1,0,3,2] {DP}',
                f'v_add_f32_dpp {R(l)}, {R(l)}, {R(l)} quad_perm:[2,3,0,1] {DP}',
                f'v_add_f32_dpp {R(l)}, {R(l)}, {R(l)} row_half_mirror {DP}',
                f'ds_write_b64 {R(vA5)}, {R(m,2)} offset:{A_ST}']
        print('E store at', k)
        G2, wr = late_part(gp, accs, rest, ne, flex=True)
        print('wave3 flags', wr)
        gp.m[k0 - 1].remove('s_waitcnt lgkmcnt(@)')
        gp.m[k0 - 1].insert(0, f's_waitcnt lgkmcnt({gp.nds_after("ds_read2", k0 - 2)})')
        kst = gp.place(ops2, k + 1, cap=2, step=1)
        assert kst < wr[6], kst
        for i in gp.weave(G1 + ['s_waitcnt lgkmcnt(0)'] + G2, 48): a(i)
        TS(a, 4)
        def slow3():
            a.label(Lsl); a.reset_hist()
            for x in sxr: a(x)
            spin_guard(a, EXIT)
            a('s_waitcnt lgkmcnt(0)')
            for x in chk: a(x)
            a(f's_cbranch_vccnz {Lsl}')
            a(f's_branch {Lbk}')
        post.append(slow3)
        if SPARE_PF:
            Ls = a.newlabel('NPG')
            a(f's_cmp_lg_u32 {S(sRole)}, 0')
            a(f's_cbranch_scc1 {Ls}')
            a(f'v_mov_b32 {R(vT0)}, {S(sStep)}')
            a(f'v_mov_b32 {R(vT1)}, 0')
            a(f's_mov_b32 {S(sT0)}, {PROG}')
            a(f'buffer_store_dword {R(vT0)}, {R(vT1)}, {S(sWS,4)}, {S(sT0)} offen {ST}')
            a.label(Ls)
    else:
        def sxm(i): return f'{SM} {R(SX,4)}, {R(vMem+4*kord[i],4)}, {R(KF[i],8)}, {R(vIdx)}'
        G0 = [sxm(0), sxm(1)] + G1 + ['s_waitcnt lgkmcnt(0)'] + [sxm(i) for i in range(2, 7)]
        gp.place(kread(5) + kread(6), B1AT + 2, cap=2)
        ksx = 2 + NE + 4
        G2, wr = late_part(gp, accs, rest, NE + 7)
        if w == 1: print('tile flags at', wr)
        gp.fixed(ksx + 3, [f'ds_write_b128 {R(vL16)}, {R(SX,4)} offset:{A_SX + (w-1)*1024}'])
        gp.fixed(ksx + 3, [flagw(7)])
        if not NOSTREAM: gp.place(kdma(w - 1), KLD0 + (w - 1) * (KLDE // 2), step=KLDE)
        for i in gp.weave(G0 + G2, 55): a(i)
        TS(a, 7)
    step_end(a, L)
    if stamp: stamp(a, 1)
    a(f's_branch {EXIT}')
    for f in post: f()
SPEC = [32, 38, 43]; SXAT = 23; FLEXCAP = 2

HL = [0, 2, 1, 3, 4, 6, 5, 7]
def cvdma():
    out = []
    for q in range(2):
        out += [f's_add_u32 {S(sT0)}, {S(sStr)}, {q*4096}', f's_add_u32 m0, {S(sVX)}, {q*4096}']
        out += [f'buffer_load_dwordx4 {R(vL16)}, {S(sWS,4)}, {S(sT0)} offen offset:{k*1024} sc1 lds' for k in range(4)]
    return out

def gen_C(a, EXIT, stamp=None):
    common_lane_setup(a)
    n, g = vT0, vT1
    a(f's_and_b32 {S(sT0)}, {S(sWave)}, 1')
    a(f's_lshl_b32 {S(sJ)}, {S(sRole)}, 1')
    a(f's_add_u32 {S(sJ)}, {S(sJ)}, {S(sT0)}')
    a(f'v_and_b32 {R(n)}, 15, {R(vLane)}')
    a(f'v_lshrrev_b32 {R(g)}, 4, {R(vLane)}')
    a(f'v_and_b32 {R(vT2)}, 1, {R(g)}')
    a(f'v_lshlrev_b32 {R(vT2)}, 2, {R(vT2)}')
    a(f'v_and_b32 {R(vT3)}, 2, {R(g)}')
    a(f'v_add_u32 {R(vT2)}, {R(vT2)}, {R(vT3)}')
    a(f'v_and_b32 {R(vT3)}, 1, {R(n)}')
    a(f'v_cmp_eq_u32 s[36:37], 0, {R(vT3)}')
    a(f'v_add_u32 {R(vT2)}, {R(vT2)}, {R(vT3)}')
    a(f'v_bfe_u32 {R(vT3)}, {R(n)}, 1, 1')
    a(f'v_lshl_add_u32 {R(vA0)}, {R(vT3)}, 3, {R(vT2)}')
    a(f'v_lshlrev_b32 {R(vA0)}, 4, {R(vA0)}')
    a(f'v_and_b32 {R(vT3)}, 12, {R(n)}')
    a(f'v_add_u32 {R(vA0)}, {R(vA0)}, {R(vT3)}')
    a(f's_lshl_b32 {S(sT0)}, {S(sJ)}, 8')
    a(f'v_add_u32 {R(vA0)}, {S(sT0)}, {R(vA0)}')
    a(f'v_mul_u32_u24 {R(vA1)}, 896, {R(vT2)}')
    a(f'v_and_b32 {R(vT3)}, 14, {R(n)}')
    a(f'v_lshl_add_u32 {R(vA1)}, {R(vT3)}, 1, {R(vA1)}')
    a(f's_lshl_b32 {S(sT0)}, {S(sJ)}, 5')
    a(f'v_add_u32 {R(vA1)}, {S(sT0)}, {R(vA1)}')
    a(f's_lshr_b32 {S(sT0)}, {S(sWave)}, 1')
    a(f's_lshl_b32 {S(sT0)}, {S(sT0)}, 12')
    a(f's_add_u32 {S(sT0)}, {S(sT0)}, {EB}')
    a(f'v_add_u32 {R(vA2)}, {S(sT0)}, {R(vL16)}')
    a(f'v_add_u32 {R(vA3)}, {PB}, {R(vL16)}')
    a(f's_mul_i32 {S(sT0)}, {S(sWave)}, 14336')
    a(f's_add_u32 {S(sT0)}, {S(sT0)}, {C_W}')
    a(f'v_add_u32 {R(vA5)}, {S(sT0)}, {R(vL16)}')
    a(f's_mov_b32 m0, {S(sT0)}')
    a(f's_and_b32 {S(sT0)}, {S(sWave)}, 1')
    a(f's_lshl_b32 {S(sT0)}, {S(sT0)}, 12')
    a(f's_add_u32 {S(sT0)}, {S(sT0)}, {C_X}')
    a(f'v_add_u32 {R(vA6)}, {S(sT0)}, {R(vL16)}')
    def toff(hl):
        a(f's_lshr_b32 {S(sT0)}, {S(sWave)}, 1')
        a(f's_lshl_b32 {S(sT0)}, {S(sT0)}, 3')
        a(f's_add_u32 {S(sT0)}, {S(sT0)}, {16 + hl}')
        a(f's_mul_i32 {S(sT0)}, {S(sT0)}, {MAT}')
        a(f's_mul_i32 {S(sT1)}, {S(sJ)}, 14336')
        a(f's_add_u32 {S(sT0)}, {S(sT0)}, {S(sT1)}')
    toff(HL[0])
    for q in range(4):
        for k in range(4):
            if 4 * q + k < 14:
                a(f'buffer_load_dwordx4 {R(vL16)}, {S(sWS,4)}, {S(sT0)} offen offset:{k*1024} lds')
        a(f's_add_u32 {S(sT0)}, {S(sT0)}, 4096')
        a(f's_add_u32 m0, m0, 4096')
    load_weights(a, lambda t: toff(HL[t + 1]))
    a(f's_lshl_b32 {S(sStr)}, {S(sJ)}, 14')
    a(f's_lshr_b32 {S(sT0)}, {S(sWave)}, 1')
    a(f's_lshl_b32 {S(sT0)}, {S(sT0)}, 13')
    a(f's_add_u32 {S(sStr)}, {S(sStr)}, {S(sT0)}')
    a(f's_add_u32 {S(sStr)}, {S(sStr)}, {VIMG}')
    a(f's_lshl_b32 {S(sVX)}, {S(sWave)}, 13')
    a(f's_add_u32 {S(sVX)}, {S(sVX)}, {C_VX}')
    a(f's_mov_b32 {S(sSpin)}, 0')
    ensure_rdy(a, EXIT, 1, None)
    for i in cvdma(): a(i)
    Lhi = a.newlabel('CHI')
    a(f's_cmp_ge_u32 {S(sWave)}, 2')
    a(f's_cbranch_scc1 {Lhi}')
    for hiw in (0, 1):
        if hiw:
            a.label(Lhi); a.reset_hist()
        gen_C_wave(a, hiw, EXIT, stamp)

def gen_C_wave(a, hiw, EXIT, stamp):
    ACC = [vAcc, vAcc + 4, vAcc + 8, vT0]
    UB = vPoll
    EF = vBig; VF = [vBig + 16 + 4 * i for i in range(8)]
    WACC = [vBig + 48, vBig + 52, vMem, vMem + 4]
    WBK = vAcc
    if hiw == 0:
        a(f'buffer_load_dword {R(vT0)}, {R(vA1)}, s[32:35], 0 offen')
        a('s_waitcnt vmcnt(0)')
        a(f'v_min_u32 {R(vT0)}, -2, {R(vT0)}')
        a(f's_mov_b32 {S(sT0)}, {TBOX}')
        a(f'buffer_store_dword {R(vT0)}, {R(vA0)}, {S(sWS,4)}, {S(sT0)} offen sc1')
        a(f's_mov_b32 {S(sT0)}, {MBOX}')
        a(f'buffer_store_dword {R(vT0)}, {R(vA1)}, {S(sWS,4)}, {S(sT0)} offen sc1')
    else:
        a(f'v_mov_b32 {R(vA1)}, -1')
        for sl in range(1, 4):
            a(f's_mov_b32 {S(sT0)}, {TBOX + sl*SLOT}')
            a(f'buffer_store_dword {R(vA1)}, {R(vA0)}, {S(sWS,4)}, {S(sT0)} offen sc1')
        a(f'v_mov_b32 {R(vT0)}, 0')
        a(f's_mov_b32 {S(sT0)}, {PROG}')
        a(f'buffer_store_dword {R(vT0)}, {R(vT0)}, {S(sWS,4)}, {S(sT0)} offen sc1')
    a(f's_lshl_b32 s30, {S(sWave)}, 11')
    a(f's_min_u32 s30, s30, 5120')
    a(f'v_add_u32 v0, s30, {R(vL16)}')
    team_barrier(a, EXIT)
    both_modes(a, lambda: gen_C_loop(a, hiw, EXIT, stamp))

def gen_C_loop(a, hiw, EXIT, stamp):
    ACC = [vAcc, vAcc + 4, vAcc + 8, vT0]
    UB = vPoll
    EF = vBig; VF = [vBig + 16 + 4 * i for i in range(8)]
    WACC = [vBig + 48, vBig + 52, vMem, vMem + 4]
    WBK = vAcc
    a(f's_mov_b32 {S(sStep)}, 0')
    if stamp: stamp(a, 0)
    L = a.newlabel('CLOOP')
    a.label(L); a.reset_hist()
    if not hiw: a('s_barrier')
    slots(a)
    a(f's_mov_b32 {S(sSpin)}, 0')
    a(f'v_add_u32 {R(vA7)}, {S(sVX)}, {R(vL16)}')
    a(f's_sub_u32 {S(sT0)}, {S(sVX)}, {C_VX}')
    a(f's_xor_b32 {S(sT0)}, {S(sT0)}, 32768')
    a(f's_add_u32 {S(sVX)}, {S(sT0)}, {C_VX}')
    if STRM_MASK is None: a(f's_add_u32 {S(sStr)}, {S(sStr)}, {16*28672}')
    ensure_rdy(a, EXIT, 2)
    wpre = [f'ds_read_b128 {R(vBig+4*k,4)}, {R(vA5)} offset:{k*1024}' for k in range(14)]
    a(f's_add_u32 {S(sT3)}, s30, {S(sCur)}')
    if hiw:
        a('s_waitcnt vmcnt(0)')
        for x in wpre: a(x)
        for z in zero4(ACC[0]) + zero4(ACC[1]) + zero4(ACC[2]): a(z)
        a(f'v_lshlrev_b32 {R(vT1)}, 7, {R(vLane)}')
        a(f's_add_u32 {S(sT1)}, {S(sStr)}, {(PFD-1)*16*28672}')
        a('s_barrier')
        for k in range(C_PF):
            if k: a(f's_xor_b32 {S(sT1)}, {S(sT1)}, 8192')
            a(f'buffer_load_dword {R(vT2)}, {R(vT1)}, {S(sWS,4)}, {S(sT1)} offen sc1')
        if C_SLEEP: a(f's_sleep {C_SLEEP}')
    else:
        a(f's_waitcnt vmcnt(2)')
        for x in wpre: a(x)
        for z in zero4(ACC[0]) + zero4(ACC[1]) + zero4(ACC[2]): a(z)
    Lp = a.newlabel('CPM')
    TS(a, 0)
    def rnd():
        for k in range(2):
            a(f'buffer_load_dwordx4 {R(vPoll+4*k,4)}, {R(vL16)}, {S(sWS,4)}, {S(sT3)} offen offset:{k*1024} sc1')
    for d in range(CMDEPTH - 1):
        rnd()
        a('s_sleep 1')
    a.label(Lp)
    rnd()
    spin_guard(a, EXIT)
    for k in range(2):
        a(f's_waitcnt vmcnt({2*(CMDEPTH-1) + 1 - k})')
        for x in acc_max(vT0, range(vPoll+4*k, vPoll+4*k+4), k == 0): a(x)
        a(f'ds_write_b128 v0, {R(vPoll+4*k,4)} offset:{k*1024}')
    a(f'v_cmp_eq_u32 vcc, -1, {R(vT0)}')
    a(f's_cbranch_vccnz {Lp}')
    TS(a, 2)
    for z in zero4(ACC[3]): a(z)
    a('s_waitcnt lgkmcnt(0)')
    a('s_barrier')
    TS(a, 3)
    mem_frag_reads(a)
    def comb(p):
        x, y = ACC[(2*p) % 4], ACC[(2*p+1) % 4]
        r0 = UB + 4 * (p // 2) + (p % 2)
        o = [f'v_permlane32_swap_b32 {R(x+r)}, {R(y+r)}' for r in range(4)]
        o += [f'v_add_f32 {R(x+r)}, {R(x+r)}, {R(y+r)}' for r in range(4)]
        o += [f'v_cvt_pk_bf16_f32 {R(r0)}, {R(x)}, {R(x+1)}', f'v_cvt_pk_bf16_f32 {R(r0+2)}, {R(x+2)}, {R(x+3)}']
        return o
    G = []
    for t in range(8):
        for c in range(7):
            wr = WREG(t - 1, c) if t else vBig + 8 * c
            G.append(f'{SM} {R(ACC[t%4],4)}, {R(vMem+4*c,4)}, {R(wr,8)}, {R(vIdx)}')
    gp = Gaps()
    k = gp.place(comb(0), 16); gp.fixed(26, zero4(ACC[0])); gp.place(zero4(ACC[1]), 27)
    k = gp.place(comb(1), 30); gp.fixed(40, zero4(ACC[2])); gp.place(zero4(ACC[3]), 41)
    gp.place(comb(2), 44)
    def vread(i): return f'ds_read_b128 {R(VF[i],4)}, {R(vA7)} offset:{HL[i]*1024}'
    def eld(i): return f'buffer_load_dwordx4 {R(EF+4*i,4)}, {R(vA2)}, {S(sWS,4)}, {S(sCur)} offen offset:{i*1024} sc1'
    if not NOSTREAM: gp.place(cvdma(), 0, step=CVLDE)
    k = gp.place([vread(i) for i in range(8)], 7)
    sw = []
    for p in range(4):
        sw += [f'v_swap_b32 {R(VF[2*p]+1)}, {R(VF[2*p+1])}', f'v_swap_b32 {R(VF[2*p]+3)}, {R(VF[2*p+1]+2)}']
    k = gp.place([eld(i) for i in range(4)], EPOLL, step=ESTEP)
    k = gp.place([eld(i) for i in range(4)], EPOLL2, step=ESTEP); assert k <= 55
    gp.place(zero4(WACC[0]) + zero4(WACC[1]), 8)
    gp.fixed(22, ['s_waitcnt lgkmcnt(0)'])
    gp.place(sw, 22, cap=2, step=4)
    if hiw: gp.place([f'buffer_store_dword {R(vA1)}, {R(vA0)}, {S(sWS,4)}, {S(sPrv)} offen {ST}'], 1)
    gp.fixed(15, [f's_waitcnt vmcnt({gp.nvm(15)})'])
    for i in gp.weave(first_waits(G), 55): a(i)
    TS(a, 4)
    for z in zero4(WACC[2]) + zero4(WACC[3]): a(z)
    for x in comb(3): a(x)
    if hiw:
        a(f'ds_write_b128 {R(vA6)}, {R(UB,4)}')
        a(f'ds_write_b128 {R(vA6)}, {R(UB+4,4)} offset:1024')
    Le = a.newlabel('CPE'); Lg = a.newlabel('CEG')
    a('s_waitcnt vmcnt(4)')
    check_regs(a, EF, 16, vA4)
    a(f's_cbranch_vccz {Lg}')
    a.label(Le)
    for i in range(4): a(eld(i))
    spin_guard(a, EXIT)
    a('s_waitcnt vmcnt(4)')
    check_regs(a, EF, 16, vA4)
    a(f's_cbranch_vccnz {Le}')
    a.label(Lg)
    TS(a, 5)
    def wcv(p):
        r0 = WBK + 4 * (p // 2) + (p % 2)
        return [f'v_cvt_pk_bf16_f32 {R(r0)}, {R(WACC[p])}, {R(WACC[p]+1)}', f'v_cvt_pk_bf16_f32 {R(r0+2)}, {R(WACC[p]+2)}, {R(WACC[p]+3)}']
    for p in range(4):
        a(f'{SM} {R(WACC[p],4)}, {R(EF+4*p,4)}, {R(VF[2*p],8)}, {R(vIdx)}')
    for x in wcv(0) + wcv(1): a(x)
    if hiw: a(f'ds_write_b128 {R(vA6)}, {R(WBK,4)} offset:2048')
    for x in wcv(2) + wcv(3): a(x)
    if hiw:
        a(f'ds_write_b128 {R(vA6)}, {R(WBK+4,4)} offset:3072')
        a('s_waitcnt lgkmcnt(0)')
        a('s_barrier')
    else:
        UB2 = vBig; WB2 = vBig + 8; PF = vMem + 8; DD = vAcc + 8
        def pr():
            for k in range(4):
                a(f'buffer_load_dwordx4 {R(PF+4*k,4)}, {R(vA3)}, {S(sWS,4)}, {S(sCur)} offen offset:{k*1024} sc1')
        for z in zero4(DD): a(z)
        pr()
        a('s_waitcnt vmcnt(4)')
        a('s_barrier')
        for k in range(4):
            a(f'ds_read_b128 {R(UB2+4*k,4)}, {R(vA6)} offset:{k*1024}')
        TS(a, 6)
        Lq = a.newlabel('CPP')
        for d in range(CDEPTH - 2):
            pr()
            if CSTAG: a(f's_sleep {CSTAG}')
        a('s_waitcnt lgkmcnt(0)')
        a.label(Lq)
        pr()
        spin_guard(a, EXIT)
        for k in range(4):
            a(f's_waitcnt vmcnt({4*(CDEPTH-1) + 3 - k})')
            for x in acc_max(vT0, range(PF+4*k, PF+4*k+4), k == 0): a(x)
        a(f'v_cmp_eq_u32 vcc, -1, {R(vT0)}')
        a(f's_cbranch_vccnz {Lq}')
        TS(a, 7)
        if INSTR: a(f's_mov_b32 s46, {S(sSpin)}')
        a(f'{SM} {R(DD,4)}, {R(PF,4)}, {R(UB,8)}, {R(vIdx)}')
        a(f'{SM} {R(DD,4)}, {R(PF+4,4)}, {R(UB2,8)}, {R(vIdx)}')
        a(f'{SM} {R(DD,4)}, {R(PF+8,4)}, {R(WBK,8)}, {R(vIdx)}')
        a(f'{SM} {R(DD,4)}, {R(PF+12,4)}, {R(WB2,8)}, {R(vIdx)}')
        a(f'v_permlane32_swap_b32 {R(DD)}, {R(DD+2)}')
        a(f'v_permlane32_swap_b32 {R(DD+1)}, {R(DD+3)}')
        a(f'v_add_f32 {R(DD)}, {R(DD)}, {R(DD+2)}')
        a(f'v_add_f32 {R(DD+1)}, {R(DD+1)}, {R(DD+3)}')
        a(f'v_mov_b32_dpp {R(DD+2)}, {R(DD)} quad_perm:[1,0,3,2] {DP}')
        a(f'v_mov_b32_dpp {R(DD+3)}, {R(DD+1)} quad_perm:[1,0,3,2] {DP}')
        a(f'v_cvt_pk_bf16_f32 {R(DD)}, {R(DD)}, {R(DD+2)}')
        a(f'v_cvt_pk_bf16_f32 {R(DD+1)}, {R(DD+3)}, {R(DD+1)}')
        a(f'v_cndmask_b32 {R(DD)}, {R(DD+1)}, {R(DD)}, s[36:37]')
        a(f'v_min_u32 {R(DD)}, -2, {R(DD)}')
        TS(a, 8)
        a(f'buffer_store_dword {R(DD)}, {R(vA0)}, {S(sWS,4)}, {S(sNxt)} offen {ST}')
        a(f'buffer_store_dword {R(DD)}, {R(vA1)}, {S(sWS,4)}, {S(sMc)} offen {ST}')
    step_end(a, L)
    if stamp: stamp(a, 1)
    a(f's_branch {EXIT}')

def gen_PF(a, EXIT):
    a(f'v_and_b32 {R(vLane)}, 63, v0')
    a(f'v_lshlrev_b32 {R(vL16)}, 7, {R(vLane)}')
    a(f's_mov_b32 {S(sSpin)}, 0')
    team_barrier(a, EXIT, arrive=False)
    a(f's_lshl_b32 {S(sJ)}, {S(sRole)}, 2')
    a(f's_add_u32 {S(sJ)}, {S(sJ)}, {S(sWave)}')
    a(f's_mov_b32 {S(sStep)}, 1')
    a(f'v_mov_b32 {R(vT0)}, 0')
    a(f's_mov_b32 {S(sT3)}, {PROG}')
    L = a.newlabel('PFL'); Lw = a.newlabel('PFW'); Lgo = a.newlabel('PFG')
    a.label(L)
    a(f's_mov_b32 {S(sSpin)}, 0')
    a.label(Lw)
    a(f'buffer_load_dword {R(vT1)}, {R(vT0)}, {S(sWS,4)}, {S(sT3)} offen sc1')
    spin_guard(a, EXIT)
    a('s_waitcnt vmcnt(0)')
    a(f'v_readfirstlane_b32 {S(sT0)}, {R(vT1)}')
    a(f's_add_u32 {S(sT0)}, {S(sT0)}, {PFD}')
    a(f's_cmp_le_u32 {S(sStep)}, {S(sT0)}')
    a(f's_cbranch_scc1 {Lgo}')
    a('s_sleep 4')
    a(f's_branch {Lw}')
    a.label(Lgo)
    a(f's_mul_i32 {S(sT0)}, {S(sStep)}, {16*28672}')
    a(f's_lshl_b32 {S(sT1)}, {S(sJ)}, 14')
    a(f's_add_u32 {S(sT0)}, {S(sT0)}, {S(sT1)}')
    a(f's_add_u32 {S(sT0)}, {S(sT0)}, {VIMG}')
    for i in range(4):
        if i == 3:
            Ls = a.newlabel('PFS')
            a(f's_cmp_ge_u32 {S(sJ)}, 4')
            a(f's_cbranch_scc1 {Ls}')
        a(f'buffer_load_dword {R(vT2)}, {R(vL16)}, {S(sWS,4)}, {S(sT0)} offen sc1')
        a(f's_add_u32 {S(sT0)}, {S(sT0)}, {8*16384}')
    a.label(Ls)
    a(f's_add_u32 {S(sStep)}, {S(sStep)}, 1')
    a(f's_cmp_lt_u32 {S(sStep)}, 64')
    a(f's_cbranch_scc1 {L}')
    a(f's_branch {EXIT}')


def gen_spare(a, EXIT):
    a(f'v_and_b32 {R(vLane)}, 63, v0')
    a(f's_mov_b32 {S(sSpin)}, 0')
    Lpf = a.newlabel('SPF'); Lex = a.newlabel('SEX'); Lgk = a.newlabel('SGK'); Ltb = a.newlabel('STB')
    a(f's_lshl_b32 {S(sJ)}, {S(sRole)}, 2')
    a(f's_add_u32 {S(sJ)}, {S(sJ)}, {S(sWave)}')
    a(f's_cmp_eq_u32 {S(sJ)}, 1')
    a(f's_cbranch_scc1 {Lgk}')
    a(f's_cmp_eq_u32 {S(sJ)}, 5')
    a(f's_cbranch_scc1 {Lex}')
    Lw0 = a.newlabel('SW0')
    a(f's_mov_b32 {S(sT0)}, {F_TBAR}')
    a(f's_cmp_lg_u32 {S(sWave)}, 0')
    a(f's_cbranch_scc1 {Lw0}')
    a(f'v_mov_b32 {R(vT1)}, {S(sArr)}')
    a('s_mov_b64 exec, 1')
    a(f'buffer_atomic_add {R(vT1)}, off, {S(sWS,4)}, {S(sT0)} sc1')
    a('s_mov_b64 exec, -1')
    a.label(Lw0)
    a(f'buffer_load_dword {R(vT2)}, off, {S(sWS,4)}, {S(sT0)} sc1')
    spin_guard(a, EXIT)
    a('s_sleep 8')
    a('s_waitcnt vmcnt(0)')
    a(f'v_and_b32 {R(vT1)}, 0xffff, {R(vT2)}')
    a(f'v_cmp_gt_u32 vcc, 32, {R(vT1)}')
    a(f's_cbranch_vccnz {Lw0}')
    a(f's_cmp_gt_u32 {S(sJ)}, 5')
    a(f's_cselect_b32 {S(sT1)}, 2, 1')
    a(f's_cmp_eq_u32 {S(sJ)}, 0')
    a(f's_cselect_b32 {S(sT1)}, 0, {S(sT1)}')
    a(f's_sub_u32 {S(sJ)}, {S(sJ)}, {S(sT1)}')
    a(f'v_lshlrev_b32 {R(vL16)}, 7, {R(vLane)}')
    a(f's_mov_b32 {S(sStep)}, 1')
    a(f's_mov_b32 {S(sT3)}, {PROG}')
    L = a.newlabel('PFL'); Lw = a.newlabel('PFW'); Lgo = a.newlabel('PFG')
    a.label(L)
    a(f's_mov_b32 {S(sSpin)}, 0')
    ensure_rdy(a, EXIT, 1)
    a.label(Lw)
    a(f'buffer_load_dword {R(vT1)}, off, {S(sWS,4)}, {S(sT3)} sc1')
    spin_guard(a, EXIT)
    a('s_waitcnt vmcnt(0)')
    a(f'v_readfirstlane_b32 {S(sT0)}, {R(vT1)}')
    a(f's_add_u32 {S(sT0)}, {S(sT0)}, {PFD}')
    a(f's_cmp_le_u32 {S(sStep)}, {S(sT0)}')
    a(f's_cbranch_scc1 {Lgo}')
    a('s_sleep 4')
    a(f's_branch {Lw}')
    a.label(Lgo)
    a(f's_mul_i32 {S(sT0)}, {S(sStep)}, {16*28672}')
    a(f's_lshl_b32 {S(sT1)}, {S(sJ)}, 14')
    a(f's_add_u32 {S(sT0)}, {S(sT0)}, {S(sT1)}')
    a(f's_add_u32 {S(sT0)}, {S(sT0)}, {VIMG}')
    for i in range(5):
        if i == 4:
            Ls = a.newlabel('PFS')
            a(f's_cmp_ge_u32 {S(sJ)}, 4')
            a(f's_cbranch_scc1 {Ls}')
        a(f'buffer_load_dword {R(vT2)}, {R(vL16)}, {S(sWS,4)}, {S(sT0)} offen sc1')
        a(f's_add_u32 {S(sT0)}, {S(sT0)}, {6*16384}')
    a.label(Ls)
    a(f's_add_u32 {S(sStep)}, {S(sStep)}, 1')
    a(f's_cmp_lt_u32 {S(sStep)}, 64')
    a(f's_cbranch_scc1 {L}')
    a(f's_branch {EXIT}')
    a.label(Lgk); a.reset_hist()
    a(f'v_lshlrev_b32 {R(vL16)}, 3, {R(vLane)}')
    a(f's_mov_b32 {S(sStep)}, 0')
    a(f's_mov_b32 {S(sT3)}, {F_KV}')
    a(f's_mov_b32 {S(sT2)}, {F_RDY}')
    for ng in (7, 1):
        Lg = a.newlabel('GKL')
        a.label(Lg)
        for i in range(ng):
            a(f'buffer_load_dwordx2 {R(vMem+2*i,2)}, {R(vL16)}, {S(sWS,4)}, {S(sT3)} offen offset:{i*512} sc1')
        spin_guard(a, EXIT)
        a('s_sleep 2')
        a('s_waitcnt vmcnt(0)')
        a(f'v_min_u32 {R(vT0)}, {R(vMem)}, {R(vMem+1)}')
        for i in range(1, ng):
            a(f'v_min3_u32 {R(vT0)}, {R(vT0)}, {R(vMem+2*i)}, {R(vMem+2*i+1)}')
        a(f'v_cmp_eq_u32 vcc, 0, {R(vT0)}')
        a(f's_cbranch_vccnz {Lg}')
        a(f's_add_u32 {S(sStep)}, {S(sStep)}, {ng}')
        a(f'v_mov_b32 {R(vT2)}, {S(sStep)}')
        a('s_mov_b64 exec, 1')
        a(f'buffer_store_dword {R(vT2)}, off, {S(sWS,4)}, {S(sT2)} sc1')
        a('s_mov_b64 exec, -1')
        if ng == 7:
            a(f's_add_u32 {S(sT3)}, {S(sT3)}, {7*512}')
            a(f's_cmp_lt_u32 {S(sStep)}, 63')
            a(f's_cbranch_scc1 {Lg}')
    a(f's_branch {EXIT}')
    a.label(Lex); a.reset_hist()
    a(f'v_lshlrev_b32 {R(vL16)}, 4, {R(vLane)}')
    a(f'v_add_u32 {R(vA7)}, 4096, {R(vL16)}')
    a(f's_mov_b32 {S(sStep)}, 0')
    a(f's_mov_b32 {S(sT3)}, {MBOX}')
    Le = a.newlabel('EXL')
    a.label(Le)
    for c in range(7):
        a(f'buffer_load_dwordx4 {R(vMem+4*c,4)}, {R(vL16 if c < 4 else vA7)}, {S(sWS,4)}, {S(sT3)} offen offset:{(c%4)*1024} sc1')
    spin_guard(a, EXIT)
    a('s_waitcnt vmcnt(0)')
    check_regs(a, vMem, 28, vT0)
    a(f's_cbranch_vccnz {Le}')
    a(f's_add_u32 {S(sT2)}, {S(sT3)}, {MEMX - MBOX}')
    for c in range(7):
        a(f'buffer_store_dwordx4 {R(vMem+4*c,4)}, {R(vL16 if c < 4 else vA7)}, {S(sWS,4)}, {S(sT2)} offen offset:{(c%4)*1024} sc1')
    a(f's_mov_b32 {S(sSpin)}, 0')
    a(f's_add_u32 {S(sT3)}, {S(sT3)}, 7168')
    a(f's_add_u32 {S(sStep)}, {S(sStep)}, 1')
    a(f's_cmp_lt_u32 {S(sStep)}, 64')
    a(f's_cbranch_scc1 {Le}')
    a(f's_branch {EXIT}')
```

```python
from asmlib import *
from layout import *
from prep import f2u, LOG2E
MF = 'v_mfma_f32_16x16x32_bf16'
MF16 = 'v_mfma_f32_16x16x16_bf16'
WST = ''
WLD = ''
sWS = 8; sRole = 12; sWave = 13
def WREG(t, c):
    i = t * 7 + c
    return 120 + 8 * i if i < 17 else 256 + 8 * (i - 17)
def W(t, ks): return WREG(t, ks // 2) + 4 * (ks % 2)
X_RING = 0; S_RED = 2 * 28672
def acc(qt, t): return 64 + 4 * (7 * qt + t)

class Hooks:
    def wait(self, a, what): pass
    def signal(self, a, what): pass

def lane_setup(a):
    a('v_and_b32 v1, 63, v0')
    a('v_lshlrev_b32 v2, 4, v1')
    a('v_and_b32 v3, 15, v1')
    a('v_lshrrev_b32 v4, 4, v1')

def kv_setup(a):
    lane_setup(a)
    a('s_mul_i32 s14, s12, 9363')
    a('s_lshr_b32 s14, s14, 16')
    a('s_mul_i32 s15, s14, 7')
    a('s_sub_u32 s15, s12, s15')
    a('s_and_b32 s16, s14, 15')
    a('s_and_b32 s17, s13, 1')
    a('s_mul_i32 s18, s13, 7')
    a('s_add_u32 s19, s18, s17')
    a('s_xor_b32 s20, s17, 1')
    a('s_mul_i32 s20, s20, 6')
    a('s_add_u32 s20, s20, s18')
    a(f's_mul_i32 s21, s14, {MAT}')
    for t in range(7):
        if t < 6: a(f's_add_u32 s22, s19, {t}')
        else: a('s_mov_b32 s22, s20')
        a('s_mul_i32 s22, s22, 14336')
        a('s_add_u32 s22, s22, s21')
        for q in range(4):
            if q: a('s_add_u32 s22, s22, 4096')
            for k in range(4):
                ks = 4 * q + k
                if ks < 14:
                    a(f'buffer_load_dwordx4 {R(W(t,ks),4)}, v2, s[8:11], s22 offen offset:{k*1024} {WLD}')
    a('s_lshr_b32 s23, s19, 1')
    a('s_lshl_b32 s23, s23, 10')
    a('s_lshr_b32 s24, s20, 1')
    a('s_lshl_b32 s24, s24, 10')
    a('s_lshl_b32 s25, s17, 3')
    a('s_add_u32 s24, s24, s25')

def xdma(a, seg_s, slot_s):
    a(f's_mul_i32 s26, {seg_s}, 28672')
    a('s_mul_i32 s27, s13, 7168')
    a('s_add_u32 s26, s26, s27')
    a(f's_add_u32 s26, s26, {XIMG}')
    a(f's_add_u32 m0, {slot_s}, s27')
    for k in range(7):
        if k == 4:
            a('s_add_u32 s26, s26, 4096')
            a('s_add_u32 m0, m0, 4096')
        a(f'buffer_load_dwordx4 v2, s[8:11], s26 offen offset:{(k%4)*1024} lds')

KFR = 36
def k_cvt(a, kt, accq):
    for p in range(3):
        for b in range(2):
            for q in range(2):
                a(f'v_cvt_pk_bf16_f32 {R(KFR+14*kt+4*p+2*b+q)}, {R(acc(accq,2*p+b)+2*q)}, {R(acc(accq,2*p+b)+2*q+1)}')
    for q in range(2):
        a(f'v_cvt_pk_bf16_f32 {R(KFR+14*kt+12+q)}, {R(acc(accq,6)+2*q)}, {R(acc(accq,6)+2*q+1)}')

def xq_reads(a, dst, off):
    for p in range(3):
        a(f'ds_read_b128 {R(dst+4*p,4)}, v5 offset:{off + p*1024}')
    a(f'ds_read_b64 {R(dst+12,2)}, v6 offset:{off}')

def s_tiles(a, lst):
    for p in range(3):
        for d, kf, xq in lst:
            a(f'{MF} {R(d,4)}, {R(kf+4*p,4)}, {R(xq+4*p,4)}, {"0" if p == 0 else R(d,4)}')
    for d, kf, xq in lst:
        a(f'{MF16} {R(d,4)}, {R(kf+12,2)}, {R(xq+12,2)}, {R(d,4)}')

def gen_kv(a, hooks, isK):
    a('s_mov_b32 s28, s15')
    a(f's_mov_b32 s29, {X_RING}')
    xdma(a, 's28', 's29')
    a('s_mov_b32 s34, 0')
    a('s_waitcnt vmcnt(0)')
    L = a.newlabel('KVL'); Ln = a.newlabel('KVN'); Ld = a.newlabel('KVD')
    a.label(L); a.reset_hist()
    a('s_barrier')
    a('s_add_u32 s30, s28, 7')
    a('s_sub_u32 s31, 28672, s29')
    a('s_cmp_ge_u32 s30, 64')
    a(f's_cbranch_scc1 {Ln}')
    xdma(a, 's30', 's31')
    a.label(Ln)
    a('v_add_u32 v7, s29, v2')
    def xr(ks):
        b = 16 + 8 * (ks % 2)
        a(f'ds_read_b128 {R(b,4)}, v7 offset:{ks*1024}')
        a(f'ds_read_b128 {R(b+4,4)}, v7 offset:{14336 + ks*1024}')
    xr(0); xr(1)
    for ks in range(14):
        a(f's_waitcnt lgkmcnt({2 if ks < 13 else 0})')
        b = 16 + 8 * (ks % 2)
        for qt in range(2):
            for t in range(7):
                c = '0' if ks == 0 else R(acc(qt, t), 4)
                x = R(b + 4 * qt, 4); w = R(W(t, ks), 4)
                a(f'{MF} {R(acc(qt,t),4)}, {w if isK else x}, {x if isK else w}, {c}')
        if ks + 2 < 14: xr(ks + 2)
        if ks == 6: hooks.signal(a, ('kvmid',))
    if isK:
        a('s_lshl_b32 s26, s28, 4')
        a('s_add_u32 s26, s26, s16')
        a('s_mul_i32 s27, s26, 3072')
        a(f's_add_u32 s27, s27, {SXX}')
        a('s_mul_i32 s26, s26, 28672')
        a(f's_add_u32 s26, s26, {KIMG}')
        a('v_add_u32 v5, s23, v7')
        a('v_add_u32 v6, s24, v7')
        for kt in range(2):
            k_cvt(a, kt, kt)
            xq_reads(a, 64 + 28 * kt, kt * 14336)
            a(f's_add_u32 s32, s26, s23')
            a(f's_add_u32 s33, s26, s24')
            for p in range(3):
                a(f'buffer_store_dwordx4 {R(KFR+14*kt+4*p,4)}, v2, s[8:11], s32 offen offset:{p*1024} {WST}')
            a(f'buffer_store_dwordx2 {R(KFR+14*kt+12,2)}, v2, s[8:11], s33 offen {WST}')
            if kt == 0: a('s_add_u32 s26, s26, 14336')
        a('s_waitcnt lgkmcnt(0)')
        SD = 16
        s_tiles(a, [(SD, KFR, 64), (SD + 4, KFR, 92), (SD + 8, KFR + 14, 92)])
        a('s_mul_i32 s32, s13, 3072')
        a(f's_add_u32 s32, s32, {S_RED}')
        a('v_add_u32 v5, s32, v2')
        for i in range(3):
            a(f'ds_write_b128 v5, {R(SD+4*i,4)} offset:{i*1024}')
        a('s_waitcnt lgkmcnt(0)')
        a('s_barrier')
        Ls = a.newlabel('KVS')
        a('s_min_u32 s32, s13, 2')
        a('s_lshl_b32 s32, s32, 10')
        a('v_add_u32 v5, s32, v2')
        a(f'v_add_u32 v6, {S_RED}, v5')
        for i in range(4):
            a(f'ds_read_b128 {R(64+4*i,4)}, v6 offset:{i*3072}')
        a('s_waitcnt lgkmcnt(0)')
        for r in range(4):
            a(f'v_add_f32 {R(64+r)}, {R(64+r)}, {R(68+r)}')
            a(f'v_add_f32 {R(72+r)}, {R(72+r)}, {R(76+r)}')
        for r in range(4):
            a(f'v_add_f32 {R(32+r)}, {R(64+r)}, {R(72+r)}')
        a(f'buffer_store_dwordx4 v[32:35], v5, s[8:11], s27 offen {WST}')
        nst = 9
    else:
        a('s_mul_i32 s26, s28, 28')
        a('s_add_u32 s27, s26, s20')
        a('s_add_u32 s26, s26, s19')
        a('s_lshl_b32 s32, s16, 10')
        a(f's_add_u32 s32, s32, {VIMG}')
        a('s_lshl_b32 s26, s26, 14')
        a('s_lshl_b32 s27, s27, 14')
        a('s_add_u32 s26, s26, s32')
        a('s_add_u32 s27, s27, s32')
        for t in range(7):
            o = KFR + 4 * t
            for r in range(4):
                a(f'v_cvt_pk_bf16_f32 {R(o+r)}, {R(acc(0,t)+r)}, {R(acc(1,t)+r)}')
            a(f'buffer_store_dwordx4 {R(o,4)}, v2, s[8:11], {"s26" if t < 6 else "s27"} offen {WST}')
            if t < 5: a('s_add_u32 s26, s26, 16384')
        nst = 7
    hooks.signal(a, ('kv', nst))
    a(f's_waitcnt vmcnt({nst})')
    a('s_mov_b32 s28, s30')
    a('s_mov_b32 s29, s31')
    a('s_cmp_lt_u32 s28, 64')
    a(f's_cbranch_scc1 {L}')
    hooks.signal(a, ('kvmid',))

MFR = [16 + 4 * i for i in range(12)] + [92, 96]
def gen_mirror(a, hooks, isK, z0, zstep, src):
    a('v_mul_u32_u24 v8, 896, v3')
    a('v_lshl_add_u32 v8, v4, 4, v8')
    a(f's_mov_b32 s28, {z0}')
    if isK:
        a('v_add_u32 v5, s23, v2')
        a('v_add_u32 v6, s24, v2')
        a('v_and_b32 v9, 31, v1')
        a('v_lshlrev_b32 v9, 4, v9')
        a('v_lshrrev_b32 v10, 1, v4')
        a('s_lshr_b32 s26, s13, 1')
        a('v_cmp_eq_u32 vcc, s26, v10')
        a('v_mov_b32 v10, 0x80000000')
        a('v_cndmask_b32 v9, v10, v9, vcc')
    else:
        a('v_lshrrev_b32 v9, 1, v4')
        a(f'v_mul_u32_u24 v9, {28*4096}, v9')
        a('v_and_b32 v10, 31, v1')
        a('v_lshl_add_u32 v9, v10, 4, v9')
        a('s_and_b32 s26, s16, 1')
        a('s_lshl_b32 s26, s26, 9')
        a('s_and_b32 s27, s16, 2')
        a('s_lshl_b32 s27, s27, 2')
        a('s_add_u32 s26, s26, s27')
        a('s_lshr_b32 s27, s16, 2')
        a('s_lshl_b32 s27, s27, 10')
        a('s_add_u32 s26, s26, s27')
        a('v_add_u32 v9, s26, v9')
    L = a.newlabel('MIR')
    a.label(L); a.reset_hist()
    if isK:
        a('s_barrier')
        a('s_lshl_b32 s30, s28, 1')
        a('s_mov_b32 s31, 0')
        xdma(a, 's30', 's31')
        a('s_add_u32 s30, s30, 1')
        a('s_mov_b32 s31, 28672')
        xdma(a, 's30', 's31')
    a('s_mul_i32 s26, s28, 14336')
    a(f's_add_u32 s26, s26, {src}')
    Lr = a.newlabel('MIRP')
    hooks.wait(a, ('mem0', MFR[13]))
    a.label(Lr)
    for ks in range(14):
        a(f'buffer_load_dwordx4 {R(MFR[ks],4)}, v8, s[8:11], s26 offen offset:{ks*64} {WLD}')
    hooks.wait(a, ('mem1', Lr))
    for ks in range(14):
        a(f's_waitcnt vmcnt({13-ks})')
        for t in range(7):
            c = '0' if ks == 0 else R(acc(0, t), 4)
            x = R(MFR[ks], 4); w = R(W(t, ks), 4)
            a(f'{MF} {R(acc(0,t),4)}, {w if isK else x}, {x if isK else w}, {c}')
    if isK:
        a('s_barrier')
        k_cvt(a, 0, 0)
        XQ = [64, 78, 92, 106]
        for i in range(4): xq_reads(a, XQ[i], i * 14336)
        a('s_waitcnt lgkmcnt(0)')
        SD = 16
        s_tiles(a, [(SD + 4 * i, KFR, XQ[i]) for i in range(4)])
        a('s_lshl_b32 s32, s13, 12')
        a(f's_add_u32 s32, s32, {S_RED}')
        a('v_add_u32 v7, s32, v2')
        for i in range(4):
            a(f'ds_write_b128 v7, {R(SD+4*i,4)} offset:{i*1024}')
        a('s_waitcnt lgkmcnt(0)')
        a('s_barrier')
        a('s_lshl_b32 s32, s13, 10')
        a(f's_add_u32 s32, s32, {S_RED}')
        a('v_add_u32 v7, s32, v2')
        for i in range(4):
            a(f'ds_read_b128 {R(64+4*i,4)}, v7 offset:{i*4096}')
        a('s_lshr_b32 s26, s13, 1')
        a('s_lshl_b32 s27, s28, 1')
        a('s_add_u32 s26, s26, s27')
        a('s_lshl_b32 s26, s26, 4')
        a('s_add_u32 s26, s26, s16')
        a('s_lshl_b32 s26, s26, 1')
        a('s_add_u32 s26, s26, s17')
        a('s_lshl_b32 s26, s26, 9')
        a(f's_add_u32 s26, s26, {SXM}')
        a('s_waitcnt lgkmcnt(0)')
        for r in range(4):
            a(f'v_add_f32 {R(64+r)}, {R(64+r)}, {R(68+r)}')
            a(f'v_add_f32 {R(72+r)}, {R(72+r)}, {R(76+r)}')
        for r in range(4):
            a(f'v_add_f32 {R(100+r)}, {R(64+r)}, {R(72+r)}')
        a(f'buffer_store_dwordx4 v[100:103], v9, s[8:11], s26 offen {WST}')
    else:
        a('s_mul_i32 s26, s28, 56')
        a('s_add_u32 s27, s26, s20')
        a('s_add_u32 s26, s26, s19')
        a('s_lshl_b32 s26, s26, 12')
        a('s_lshl_b32 s27, s27, 12')
        a(f's_add_u32 s26, s26, {UIMG}')
        a(f's_add_u32 s27, s27, {UIMG}')
        for t in range(7):
            o = 100 + 2 * t
            for q in range(2):
                a(f'v_cvt_pk_bf16_f32 {R(o+q)}, {R(acc(0,t)+2*q)}, {R(acc(0,t)+2*q+1)}')
            a(f'buffer_store_dwordx2 {R(o,2)}, v9, s[8:11], {"s26" if t < 6 else "s27"} offen {WST}')
            if t < 5: a('s_add_u32 s26, s26, 4096')
    hooks.signal(a, ('mir', 's28'))
    a(f's_add_u32 s28, s28, {zstep}')
    a('s_cmp_lt_u32 s28, 32')
    a(f's_cbranch_scc1 {L}')

def gen_H(a, hooks, item='s12'):
    lane_setup(a)
    a(f's_mul_i32 s14, {item}, 2341')
    a('s_lshr_b32 s14, s14, 16')
    a('s_mul_i32 s15, s14, 28')
    a(f's_sub_u32 s15, {item}, s15')
    a('s_and_b32 s17, s13, 1')
    a('s_lshl_b32 s16, s15, 1')
    a('s_add_u32 s16, s16, s17')
    a('s_mul_i32 s18, s16, 28672')
    def HW(m, b, ks): return 256 + 4 * ((2 * m + b) * 14 + ks)
    for m, base in enumerate((WGT, WUT)):
        a(f's_add_u32 s19, s18, {base}')
        for i in range(28):
            if i and i % 4 == 0: a('s_add_u32 s19, s19, 4096')
            a(f'buffer_load_dwordx4 {R(HW(m, i//14, i%14),4)}, v2, s[8:11], s19 offen offset:{(i%4)*1024}')
    a('s_lshr_b32 s20, s13, 1')
    a('s_lshl_b32 s20, s20, 3')
    a('s_lshl_b32 s21, s14, 4')
    a('s_add_u32 s20, s20, s21')
    a('s_mul_i32 s21, s20, 14336')
    a(f's_add_u32 s21, s21, {XIMG}')
    a('s_mul_i32 s22, s20, 57344')
    a('s_lshl_b32 s23, s16, 10')
    a('s_add_u32 s22, s22, s23')
    a(f's_add_u32 s22, s22, {HIMG}')
    a('s_lshl_b32 s23, s20, 6')
    a(f's_add_u32 s23, s23, {GVEC}')
    a('v_lshlrev_b32 v5, 2, v3')
    a(f's_mov_b32 s24, {f2u(-LOG2E)}')
    XB = [16, 76, 136]; GB = [72, 132, 192]
    def xl(i):
        b = XB[i % 3]
        for ks in range(14):
            if ks % 4 == 0: a(f's_add_u32 s19, s21, {i*14336 + ks*1024}')
            a(f'buffer_load_dwordx4 {R(b+4*ks,4)}, v2, s[8:11], s19 offen offset:{(ks%4)*1024}')
        a(f'buffer_load_dword {R(GB[i%3])}, v5, s[8:11], s23 offen offset:{i*64}')
    xl(0); xl(1)
    AC = 200; T = 216; O = 232
    for i in range(8):
        if i + 2 < 8: xl(i + 2)
        n = 15 * (min(i + 2, 7) - i) + min(i, 2)
        a(f's_waitcnt vmcnt({n})')
        b = XB[i % 3]
        for ks in range(14):
            for m in range(2):
                for bb in range(2):
                    d = AC + 4 * (2 * m + bb)
                    a(f'{MF} {R(d,4)}, {R(HW(m,bb,ks),4)}, {R(b+4*ks,4)}, {"0" if ks == 0 else R(d,4)}')
        g = GB[i % 3]
        a(f'v_sub_f32 {R(g)}, 1.0, {R(g)}')
        for r in range(8): a(f'v_mul_f32 {R(T+r)}, s24, {R(AC+r)}')
        for r in range(8): a(f'v_exp_f32 {R(T+r)}, {R(T+r)}')
        for r in range(8): a(f'v_mul_f32 {R(T+8+r)}, {R(AC+r)}, {R(AC+8+r)}')
        for r in range(8): a(f'v_add_f32 {R(T+r)}, 1.0, {R(T+r)}')
        for r in range(8): a(f'v_rcp_f32 {R(T+r)}, {R(T+r)}')
        for r in range(8): a(f'v_mul_f32 {R(T+8+r)}, {R(T+8+r)}, {R(g)}')
        for r in range(8): a(f'v_mul_f32 {R(T+r)}, {R(T+r)}, {R(T+8+r)}')
        o = O + 4 * (i % 2)
        for q in range(4): a(f'v_cvt_pk_bf16_f32 {R(o+q)}, {R(T+2*q)}, {R(T+2*q+1)}')
        a(f'buffer_store_dwordx4 {R(o,4)}, v2, s[8:11], s22 offen {WST}')
        a('s_add_u32 s22, s22, 57344')
    hooks.signal(a, ('h', 's14'))

def red_g(a, x, t, op):
    for sw in ('v_permlane16_swap_b32', 'v_permlane32_swap_b32'):
        a(f'v_mov_b32 {R(t)}, {R(x)}')
        a(f'{sw} {R(x)}, {R(t)}')
        a(f'{op} {R(x)}, {R(x)}, {R(t)}')

def gen_token(a, hooks, nitems=2, seg0='s14', segstep=32):
    lane_setup(a)
    a(f's_mul_i32 s18, s15, {4*57344}')
    a('s_mul_i32 s19, s13, 14336')
    a('s_add_u32 s18, s18, s19')
    a(f's_add_u32 s18, s18, {WDT}')
    def WD(t, ks): return 256 + 4 * (14 * t + ks)
    for t in range(4):
        for ks in range(14):
            if ks % 4 == 0: a(f's_add_u32 s20, s18, {t*57344 + ks*1024}')
            a(f'buffer_load_dwordx4 {R(WD(t,ks),4)}, v2, s[8:11], s20 offen offset:{(ks%4)*1024}')
    a('v_lshlrev_b32 v5, 2, v4')
    for r in range(4):
        a(f'v_add_u32 v6, {r}, v5')
        a(f'v_cmp_le_u32 s[{48+2*r}:{49+2*r}], v6, v3')
    a('v_cmp_gt_u32 s[56:57], 2, v4')
    a('v_and_b32 v7, 31, v1')
    a('v_lshlrev_b32 v7, 4, v7')
    a('v_lshlrev_b32 v8, 2, v3')
    a('v_lshrrev_b32 v9, 3, v0')
    a('v_and_b32 v10, 7, v0')
    a('v_mul_u32_u24 v11, 896, v9')
    a('v_lshl_add_u32 v11, v10, 4, v11')
    a('v_lshrrev_b32 v12, 4, v9')
    a('v_lshlrev_b32 v12, 12, v12')
    a('v_lshl_add_u32 v12, v10, 9, v12')
    a('v_and_b32 v9, 15, v9')
    a('v_lshl_add_u32 v12, v9, 4, v12')
    a('s_lshl_b32 s20, s13, 13')
    a('v_add_u32 v13, s20, v2')
    a(f'v_mov_b32 v14, {f2u(-1e30)}')
    a(f's_mov_b32 s28, {seg0}')
    a(f's_mov_b32 s29, {nitems}')
    HF = 16; VF = 128; UF = 192; XX = 208; AC = 256 + 224
    L = a.newlabel('TOK')
    a.label(L); a.reset_hist()
    hooks.wait(a, ('h', 's28'))
    hooks.wait(a, ('kv', 's28'))
    a(f's_mul_i32 s20, s28, {2*57344}')
    a('s_add_u32 s20, s20, s19')
    a(f's_add_u32 s20, s20, {HIMG}')
    for qt in range(2):
        for ks in range(14):
            if ks % 4 == 0: a(f's_add_u32 s21, s20, {qt*57344 + ks*1024}')
            a(f'buffer_load_dwordx4 {R(HF+4*(14*qt+ks),4)}, v2, s[8:11], s21 offen offset:{(ks%4)*1024} {WLD}')
    a('s_mul_i32 s20, s28, 28')
    a('s_lshl_b32 s21, s15, 2')
    a('s_add_u32 s22, s20, s21')
    a('s_lshl_b32 s20, s22, 14')
    a('s_lshl_b32 s21, s13, 12')
    a('s_add_u32 s20, s20, s21')
    a(f's_add_u32 s20, s20, {VIMG}')
    for t in range(4):
        for hl in range(4):
            a(f'buffer_load_dwordx4 {R(VF+4*(4*t+hl),4)}, v2, s[8:11], s20 offen offset:{hl*1024} {WLD}')
        a('s_add_u32 s20, s20, 16384')
    a('s_lshl_b32 s23, s28, 4')
    a('s_lshl_b32 s21, s13, 2')
    a('s_add_u32 s23, s23, s21')
    a('s_mul_i32 s20, s23, 3072')
    a(f's_add_u32 s20, s20, {SXX}')
    for i in range(12):
        if i and i % 4 == 0: a('s_add_u32 s20, s20, 4096')
        a(f'buffer_load_dwordx4 {R(XX+4*i,4)}, v2, s[8:11], s20 offen offset:{(i%4)*1024} {WLD}')
    a('s_lshl_b32 s20, s28, 7')
    a(f's_add_u32 s20, s20, {GVEC}')
    a('buffer_load_dword v5, v8, s[8:11], s20 offen')
    a('buffer_load_dword v6, v8, s[8:11], s20 offen offset:64')
    a('s_waitcnt vmcnt(30)')
    for ks in range(14):
        for qt in range(2):
            for t in range(4):
                d = AC + 4 * (4 * qt + t)
                a(f'{MF} {R(d,4)}, {R(WD(t,ks),4)}, {R(HF+4*(14*qt+ks),4)}, {"0" if ks == 0 else R(d,4)}')
    hooks.wait(a, ('mir', 's28'))
    XM = 16
    a('s_lshl_b32 s20, s23, 10')
    a(f's_add_u32 s20, s20, {SXM}')
    for i in range(8):
        a(f'buffer_load_dwordx4 {R(XM+4*i,4)}, v7, s[8:11], s20 offen offset:{i*512} {WLD}')
    a('s_lshl_b32 s20, s22, 12')
    a('s_lshl_b32 s21, s13, 10')
    a('s_add_u32 s20, s20, s21')
    a(f's_add_u32 s20, s20, {UIMG}')
    for t in range(4):
        a(f'buffer_load_dwordx4 {R(UF+4*t,4)}, v2, s[8:11], s20 offen {WLD}')
        if t < 3: a('s_add_u32 s20, s20, 4096')
    PX = 48; PM = 80; PMF = 96; m = 104; l = 105; t0 = 106; t1 = 107
    a('s_waitcnt vmcnt(4)')
    for hl in range(4):
        for qt in range(2):
            xs = [XX + 12 * hl + r for r in range(4)] if qt == 0 else [XX + 12 * hl + 4 + r for r in range(8)]
            diag = xs[-4:]
            ms = [XM + 4 * (2 * hl + qt) + r for r in range(4)]
            for r in range(4):
                a(f'v_cndmask_b32 {R(diag[r])}, v14, {R(diag[r])}, s[{48+2*r}:{49+2*r}]')
            al = ms + xs
            a(f'v_max3_f32 {R(m)}, {R(al[0])}, {R(al[1])}, {R(al[2])}')
            i = 3
            while i < len(al):
                if i + 1 < len(al):
                    a(f'v_max3_f32 {R(m)}, {R(m)}, {R(al[i])}, {R(al[i+1])}'); i += 2
                else:
                    a(f'v_max_f32 {R(m)}, {R(m)}, {R(al[i])}'); i += 1
            red_g(a, m, t0, 'v_max_f32')
            for x in al: a(f'v_sub_f32 {R(x)}, {R(x)}, {R(m)}')
            for x in al: a(f'v_exp_f32 {R(x)}, {R(x)}')
            a(f'v_add_f32 {R(l)}, {R(ms[0])}, {R(ms[1])}')
            a(f'v_add_f32 {R(t1)}, {R(ms[2])}, {R(ms[3])}')
            a(f'v_add_f32 {R(l)}, {R(l)}, {R(t1)}')
            a(f'v_mul_f32 {R(l)}, 0.5, {R(l)}')
            for x in xs: a(f'v_add_f32 {R(l)}, {R(l)}, {R(x)}')
            red_g(a, l, t0, 'v_add_f32')
            a(f'v_rcp_f32 {R(l)}, {R(l)}')
            a(f'v_mul_f32 {R(l)}, {R(l)}, {R(5+qt)}')
            for x in al: a(f'v_mul_f32 {R(x)}, {R(x)}, {R(l)}')
            p = PX + 4 * (2 * hl + qt)
            for r in range(4):
                a(f'v_cvt_pk_bf16_f32 {R(p+r)}, {R(xs[r])}, {R(xs[4+r]) if qt else 0}')
            pm = PM + 2 * (2 * hl + qt)
            for q in range(2):
                a(f'v_cvt_pk_bf16_f32 {R(pm+q)}, {R(ms[2*q])}, {R(ms[2*q+1])}')
            for t in range(4):
                d = AC + 4 * (4 * qt + t)
                a(f'{MF} {R(d,4)}, {R(VF+4*(4*t+hl),4)}, {R(p,4)}, {R(d,4)}')
    for qt in range(2):
        for y in range(2):
            for q in range(2):
                a(f'v_cndmask_b32 {R(PMF+4*qt+2*y+q)}, {R(PM+2*(2*(2*y+1)+qt)+q)}, {R(PM+2*(2*(2*y)+qt)+q)}, s[56:57]')
    a('s_waitcnt vmcnt(0)')
    for qt in range(2):
        for t in range(4):
            d = AC + 4 * (4 * qt + t)
            a(f'{MF} {R(d,4)}, {R(UF+4*t,4)}, {R(PMF+4*qt,4)}, {R(d,4)}')
    for i in range(8):
        a(f'ds_write_b128 v13, {R(AC+4*i,4)} offset:{i*1024}')
    a('s_waitcnt lgkmcnt(0)')
    a('s_barrier')
    for w in range(4):
        for hf in range(2):
            a(f'ds_read_b128 {R(16+8*w+4*hf,4)}, v12 offset:{w*8192 + hf*256}')
    a(f's_mul_i32 s20, s28, {32*896}')
    a('s_lshl_b32 s21, s15, 7')
    a('s_add_u32 s20, s20, s21')
    a('s_waitcnt lgkmcnt(0)')
    a('s_barrier')
    for r in range(8):
        a(f'v_add_f32 {R(16+r)}, {R(16+r)}, {R(24+r)}')
        a(f'v_add_f32 {R(32+r)}, {R(32+r)}, {R(40+r)}')
    for r in range(8): a(f'v_add_f32 {R(16+r)}, {R(16+r)}, {R(32+r)}')
    for q in range(4): a(f'v_cvt_pk_bf16_f32 {R(108+q)}, {R(16+2*q)}, {R(16+2*q+1)}')
    a('buffer_store_dwordx4 v[108:111], v11, s[36:39], s20 offen')
    a(f's_add_u32 s28, s28, {segstep}')
    a('s_cmp_lt_u32 s28, 64')
    a(f's_cbranch_scc1 {L}')
```

```python
import sys, os
from asmlib import *
from layout import *
import prep, workers, team2
from prep import srd
from team2 import F_CLAIM, F_KV, F_MIR, F_H
team2.MEGA = True; team2.SPARE_PF = 1
for k_, v_ in dict(A_SLEEP=4, CDEPTH=2, PDEPTH=2, PSTAG=2, C_SLEEP=4, C_PF=1).items(): setattr(team2, k_, v_)
OPT = dict(FORCE_SLOW=0, TIMING=0)
for kv in sys.argv[1:]:
    if '=' in kv:
        k_, v_ = kv.split('=')
        if k_ in OPT: OPT[k_] = eval(v_)
        else: setattr(team2, k_, eval(v_))
workers.WST = 'sc1'; workers.WLD = 'sc1'
REF = open('gated_mix__memory_aug_recurrent_mem_tr__swiglu_ffn__prompt.s.ref').read()
head_comments = ''.join(l + '\n' for l in REF.split('\n') if l.startswith(';') and '@launch' not in l and 'Override launch' not in l and 'grid=ceil' not in l)
def kbegin(name): return f".globl {name}\n.p2align 8\n.type {name},@function\n{name}:\n"
def kdesc(name, vg=512, acc=256, sg=96):
    return f""".amdhsa_kernel {name}
  .amdhsa_next_free_vgpr {vg}
  .amdhsa_next_free_sgpr {sg}
  .amdhsa_accum_offset {acc}
  .amdhsa_group_segment_fixed_size 0
  .amdhsa_kernarg_size 120
  .amdhsa_user_sgpr_count 2
  .amdhsa_user_sgpr_kernarg_segment_ptr 1
  .amdhsa_system_sgpr_workgroup_id_x 1
.end_amdhsa_kernel
"""
EXIT = 'MEGA_EXIT'
SPINW = 4000000
def tmark(a, k):
    if not OPT['TIMING']: return
    a('s_memrealtime s[80:81]')
    a('s_waitcnt lgkmcnt(0)')
    a('s_lshl_b32 s82, s83, 6')
    a(f's_add_u32 s82, s82, {DBG + 4*k}')
    a('v_mov_b32 v15, s80')
    a('buffer_store_dword v15, off, s[8:11], s82')
class H(workers.Hooks):
    def guard(self, a):
        a('s_add_u32 s35, s35, 1')
        a(f's_cmp_gt_u32 s35, {SPINW}')
        a(f's_cbranch_scc1 {EXIT}')
    def flag(self, a, soff):
        a('v_mov_b32 v15, 1')
        a('s_mov_b64 exec, 1')
        a(f'buffer_store_dword v15, off, s[8:11], {soff} sc1')
        a('s_mov_b64 exec, -1')
    def poll(self, a, t, wide, addr, sleep):
        L = a.newlabel('WF')
        a('s_mov_b32 s35, 0')
        for x in addr: a(x)
        Lf = a.newlabel('WF0')
        a(f's_branch {Lf}')
        a.label(L)
        a(f's_sleep {sleep}')
        a.label(Lf)
        if wide: a(f'buffer_load_dwordx2 {R(t+2,2)}, {R(t)}, s[8:11], s30 offen sc1')
        else: a(f'buffer_load_dword {R(t+2)}, {R(t)}, s[8:11], s30 offen sc1')
        self.guard(a)
        a('s_waitcnt vmcnt(0)')
        if wide: a(f'v_min_u32 {R(t+2)}, {R(t+2)}, {R(t+3)}')
        a(f'v_cmp_eq_u32 vcc, 0, {R(t+2)}')
        a(f's_cbranch_vccnz {L}')
    def wait(self, a, what):
        k = what[0]
        if k == 'h':
            self.poll(a, 16, False, [f's_lshr_b32 s30, {what[1]}, 2', 's_lshl_b32 s30, s30, 8', f's_add_u32 s30, s30, {F_H}',
                                     'v_min_u32 v16, 55, v1', 'v_lshlrev_b32 v16, 2, v16'], 16)
        elif k == 'kv':
            self.poll(a, 16, True, [f's_lshl_b32 s30, {what[1]}, 9', f's_add_u32 s30, s30, {F_KV}', 'v_lshlrev_b32 v16, 3, v1'], 16)
        elif k == 'mir':
            self.poll(a, 112, True, [f's_lshr_b32 s30, {what[1]}, 1', 's_lshl_b32 s30, s30, 9', f's_add_u32 s30, s30, {F_MIR}',
                                     'v_lshlrev_b32 v112, 3, v1'], 4)
        elif k == 'mem0':
            L = a.newlabel('WM'); Lf = a.newlabel('WM0')
            r = what[1]
            a('s_mov_b32 s35, 0')
            a(f's_branch {Lf}')
            a.label(L)
            a('s_sleep 2')
            a.label(Lf)
            a(f'buffer_load_dwordx4 {R(r,4)}, v8, s[8:11], s26 offen offset:{13*64} sc1')
            self.guard(a)
            a('s_waitcnt vmcnt(0)')
            a(f'v_cmp_eq_u32 vcc, -1, {R(r+3)}')
            a(f's_cbranch_vccnz {L}')
        elif k == 'mem1':
            self.guard(a)
            first = True
            for ks in range(14):
                a(f's_waitcnt vmcnt({13-ks})')
                for x in team2.acc_max(15, range(workers.MFR[ks], workers.MFR[ks] + 4), first): a(x)
                first = False
            a('v_cmp_eq_u32 vcc, -1, v15')
            a(f's_cbranch_vccnz {what[1]}')
    def signal(self, a, what):
        k = what[0]
        if k == 'kv':
            a('s_lshl_b32 s34, s28, 9')
            a('s_lshl_b32 s33, s14, 4')
            a('s_add_u32 s34, s34, s33')
            a('s_lshl_b32 s33, s13, 2')
            a('s_add_u32 s34, s34, s33')
            a(f's_add_u32 s34, s34, {F_KV}')
        elif k == 'kvmid':
            L = a.newlabel('NF')
            a('s_cmp_eq_u32 s34, 0')
            a(f's_cbranch_scc1 {L}')
            a('s_waitcnt vmcnt(0)')
            self.flag(a, 's34')
            a.label(L)
        elif k == 'mir':
            a('s_lshl_b32 s34, s28, 9')
            a('s_lshl_b32 s33, s14, 4')
            a('s_add_u32 s34, s34, s33')
            a('s_lshl_b32 s33, s13, 2')
            a('s_add_u32 s34, s34, s33')
            a(f's_add_u32 s34, s34, {F_MIR}')
            a('s_waitcnt vmcnt(0)')
            self.flag(a, 's34')
        elif k == 'h':
            a('s_lshl_b32 s34, s14, 1')
            a('s_lshr_b32 s33, s13, 1')
            a('s_add_u32 s34, s34, s33')
            a('s_lshl_b32 s34, s34, 8')
            a('s_lshl_b32 s33, s16, 2')
            a('s_add_u32 s34, s34, s33')
            a(f's_add_u32 s34, s34, {F_H}')
            a('s_waitcnt vmcnt(0)')
            self.flag(a, 's34')
hooks = H()
a = Asm()
a.raw(kbegin('prep_kernel')); a.reset_hist()
prep.gen_prep(a, 'PREP_EXIT'); a.label('PREP_EXIT'); a('s_endpgm')

a.raw(kbegin('mega_kernel')); a.reset_hist()
a('s_cmp_ge_u32 s2, 256')
a(f's_cbranch_scc1 {EXIT}')
srd(a, 8, 112, WS_BYTES)
a('v_readfirstlane_b32 s13, v0')
a('s_lshr_b32 s13, s13, 6')
a('s_getreg_b32 s3, hwreg(HW_REG_XCC_ID)')
if OPT['FORCE_SLOW']: a('s_lshr_b32 s3, s2, 5')
a('s_cmp_lg_u32 s3, 0')
a('s_cselect_b32 s41, 0x10001, 1')
if OPT['FORCE_SLOW']: a('s_mov_b32 s41, 0x10001')
a('s_mov_b32 s26, 0')
a('v_mov_b32 v12, 0')
a('s_waitcnt lgkmcnt(0)')
a('s_cmp_lg_u32 s13, 0')
a('s_cbranch_scc1 CLAIMED')
a('s_mov_b64 exec, 1')
a('s_mov_b32 s19, 0')
a.label('CLAIM')
a('s_and_b32 s3, s3, 7')
a('s_lshl_b32 s18, s3, 8')
a(f's_add_u32 s18, s18, {F_CLAIM}')
a('v_mov_b32 v13, 1')
a('buffer_atomic_add v13, off, s[8:11], s18 sc0 sc1')
a('s_waitcnt vmcnt(0)')
a('v_readfirstlane_b32 s18, v13')
a('s_cmp_lt_u32 s18, 32')
a('s_cbranch_scc1 CLAIM_OK')
a('s_add_u32 s3, s3, 1')
a('s_add_u32 s19, s19, 1')
a('s_cmp_lt_u32 s19, 8')
a('s_cbranch_scc1 CLAIM')
a('s_mov_b32 s18, 0x10000')
a.label('CLAIM_OK')
a('s_lshl_b32 s3, s3, 5')
a('s_add_u32 s18, s18, s3')
a('v_mov_b32 v13, s18')
a('ds_write_b32 v12, v13')
a('s_waitcnt lgkmcnt(0)')
a('s_mov_b64 exec, -1')
a.label('CLAIMED')
a('s_barrier')
a('ds_read_b32 v13, v12')
a('s_waitcnt lgkmcnt(0)')
a('v_readfirstlane_b32 s12, v13')
a('s_barrier')
a('s_cmp_ge_u32 s12, 256')
a(f's_cbranch_scc1 {EXIT}')
a('s_mov_b32 s83, s12')
tmark(a, 0)
a('s_cmp_ge_u32 s12, 32')
a('s_cbranch_scc1 WORKER')
srd(a, 32, 8, 7168)
a('s_waitcnt lgkmcnt(0)')
a('s_cmp_ge_u32 s12, 30')
a('s_cbranch_scc1 ROLE_P')
a('s_cmp_ge_u32 s12, 16')
a('s_cbranch_scc1 ROLE_C')
stamp = (lambda a, k: tmark(a, 1 + k)) if OPT['TIMING'] else None
team2.gen_A(a, EXIT, stamp)
a.label('ROLE_C'); a.reset_hist()
a('s_sub_u32 s12, s12, 16')
team2.gen_C(a, EXIT, stamp)
a.label('ROLE_P'); a.reset_hist()
a('s_sub_u32 s12, s12, 30')
team2.gen_spare(a, EXIT)
a.label('WORKER'); a.reset_hist()
a('s_sub_u32 s12, s12, 32')
workers.kv_setup(a)
a('s_cmp_ge_u32 s14, 16')
a('s_cbranch_scc1 W_V')
workers.gen_kv(a, hooks, True)
tmark(a, 1)
a('s_cmp_lg_u32 s15, 6')
a('s_cbranch_scc1 W_H')
workers.gen_mirror(a, hooks, True, 0, 1, MEMX)
tmark(a, 2)
a(f's_branch {EXIT}')
a.label('W_V'); a.reset_hist()
workers.gen_kv(a, hooks, False)
tmark(a, 1)
a('s_cmp_lg_u32 s15, 6')
a('s_cbranch_scc1 W_H')
workers.gen_mirror(a, hooks, False, 0, 1, MEMX)
tmark(a, 2)
a(f's_branch {EXIT}')
a.label('W_H'); a.reset_hist(); a.flush()
a('s_mul_i32 s12, s14, 6')
a('s_add_u32 s12, s12, s15')
a('s_mov_b32 s58, s12')
a.label('W_HL'); a.reset_hist()
workers.gen_H(a, hooks, 's58')
a('s_add_u32 s58, s58, 32')
a('s_cmp_lt_u32 s58, 192')
a('s_cbranch_scc1 W_T')
a('s_cmp_lt_u32 s58, 224')
a('s_cbranch_scc1 W_HL')
a.label('W_T'); a.reset_hist()
tmark(a, 2)
a('s_cmp_ge_u32 s12, 189')
a(f's_cbranch_scc1 {EXIT}')
srd(a, 36, 96, 2048 * 896)
a('s_mul_i32 s14, s12, 9363')
a('s_lshr_b32 s14, s14, 16')
a('s_mul_i32 s15, s14, 7')
a('s_sub_u32 s15, s12, s15')
a('s_waitcnt lgkmcnt(0)')
a('s_barrier')
workers.gen_token(a, hooks, 0, 's14', 27)
tmark(a, 3)
a.label(EXIT); a('s_endpgm')

launches = [('prep_kernel', 256, 0), ('mega_kernel', 256, team2.LDS_TEAM)]
out = head_comments
for n, g, l in launches: out += f'; @launch kernel={n} grid=({g},1,1) block=(256,1,1) lds={l}\n'
out += '.amdgcn_target "amdgcn-amd-amdhsa--gfx950"\n.text\n' + a.text() + '.section .rodata,"a"\n'
for n, g, l in launches: out += '.p2align 6\n' + kdesc(n)
open(os.environ.get('OUT', 'mega.s'), 'w').write(out)
print('lines', len(a.lines), 'nops', a.nops_added, 'bytes', len(out))
```

```python
from asmlib import *
from layout import *
from prep import f2u, LOG2E
MF = 'v_mfma_f32_16x16x32_bf16'
MF16 = 'v_mfma_f32_16x16x16_bf16'
WST = ''
WLD = ''
sWS = 8; sRole = 12; sWave = 13
def WREG(t, c):
    i = t * 7 + c
    return 120 + 8 * i if i < 17 else 256 + 8 * (i - 17)
def W(t, ks): return WREG(t, ks // 2) + 4 * (ks % 2)
X_RING = 0; S_RED = 4 * 28672
def acc(qt, t): return 64 + 4 * (7 * qt + t)

WINSTR = False
def WT(a, k):
    if WINSTR: a(f's_memtime s[{60+2*k}:{61+2*k}]')
def wdump(a, cond_reg, val):
    if not WINSTR: return
    L = a.newlabel('WD')
    a(f's_cmp_lg_u32 {cond_reg}, {val}')
    a(f's_cbranch_scc1 {L}')
    a('s_waitcnt lgkmcnt(0)')
    a('s_lshl_b32 s82, s83, 8')
    a('s_lshl_b32 s81, s13, 6')
    a('s_add_u32 s82, s82, s81')
    a(f's_add_u32 s82, s82, {DBG + 131072}')
    for k in range(10):
        a(f'v_mov_b32 v15, s{60+2*k}')
        a(f'buffer_store_dword v15, off, s[8:11], s82 offset:{4*k}')
    a('s_waitcnt vmcnt(0)')
    a.label(L)

class Hooks:
    def wait(self, a, what): pass
    def signal(self, a, what): pass

def lane_setup(a):
    a('v_and_b32 v1, 63, v0')
    a('v_lshlrev_b32 v2, 4, v1')
    a('v_and_b32 v3, 15, v1')
    a('v_lshrrev_b32 v4, 4, v1')

def kv_setup(a):
    lane_setup(a)
    a('s_mul_i32 s14, s12, 9363')
    a('s_lshr_b32 s14, s14, 16')
    a('s_mul_i32 s15, s14, 7')
    a('s_sub_u32 s15, s12, s15')
    a('s_and_b32 s16, s14, 15')
    a('s_and_b32 s17, s13, 1')
    a('s_mul_i32 s18, s13, 7')
    a('s_add_u32 s19, s18, s17')
    a('s_xor_b32 s20, s17, 1')
    a('s_mul_i32 s20, s20, 6')
    a('s_add_u32 s20, s20, s18')
    a(f's_mul_i32 s21, s14, {MAT}')
    for t in range(7):
        if t < 6: a(f's_add_u32 s22, s19, {t}')
        else: a('s_mov_b32 s22, s20')
        a('s_mul_i32 s22, s22, 14336')
        a('s_add_u32 s22, s22, s21')
        for q in range(4):
            if q: a('s_add_u32 s22, s22, 4096')
            for k in range(4):
                ks = 4 * q + k
                if ks < 14:
                    a(f'buffer_load_dwordx4 {R(W(t,ks),4)}, v2, s[8:11], s22 offen offset:{k*1024} {WLD}')
    a('s_lshr_b32 s23, s19, 1')
    a('s_lshl_b32 s23, s23, 10')
    a('s_lshr_b32 s24, s20, 1')
    a('s_lshl_b32 s24, s24, 10')
    a('s_lshl_b32 s25, s17, 3')
    a('s_add_u32 s24, s24, s25')

def xdma(a, seg_s, slot_s):
    a(f's_mul_i32 s26, {seg_s}, 28672')
    a('s_mul_i32 s27, s13, 7168')
    a('s_add_u32 s26, s26, s27')
    a(f's_add_u32 s26, s26, {XIMG}')
    a(f's_add_u32 m0, {slot_s}, s27')
    for k in range(7):
        if k == 4:
            a('s_add_u32 s26, s26, 4096')
            a('s_add_u32 m0, m0, 4096')
        a(f'buffer_load_dwordx4 v2, s[8:11], s26 offen offset:{(k%4)*1024} lds')

KFR = 36
def k_cvt(a, kt, accq):
    for p in range(3):
        for b in range(2):
            for q in range(2):
                a(f'v_cvt_pk_bf16_f32 {R(KFR+14*kt+4*p+2*b+q)}, {R(acc(accq,2*p+b)+2*q)}, {R(acc(accq,2*p+b)+2*q+1)}')
    for q in range(2):
        a(f'v_cvt_pk_bf16_f32 {R(KFR+14*kt+12+q)}, {R(acc(accq,6)+2*q)}, {R(acc(accq,6)+2*q+1)}')

def xq_reads(a, dst, off):
    for p in range(3):
        a(f'ds_read_b128 {R(dst+4*p,4)}, v5 offset:{off + p*1024}')
    a(f'ds_read_b64 {R(dst+12,2)}, v6 offset:{off}')

def s_tiles(a, lst):
    for p in range(3):
        for d, kf, xq in lst:
            a(f'{MF} {R(d,4)}, {R(kf+4*p,4)}, {R(xq+4*p,4)}, {"0" if p == 0 else R(d,4)}')
    for d, kf, xq in lst:
        a(f'{MF16} {R(d,4)}, {R(kf+12,2)}, {R(xq+12,2)}, {R(d,4)}')

def gen_kv(a, hooks, isK):
    a('s_mov_b32 s28, s15')
    a(f's_mov_b32 s29, {X_RING}')
    xdma(a, 's28', 's29')
    a('s_mov_b32 s34, 0')
    a('s_waitcnt vmcnt(0)')
    L = a.newlabel('KVL'); Ln = a.newlabel('KVN'); Ld = a.newlabel('KVD')
    a.label(L); a.reset_hist()
    a('s_barrier')
    a('s_add_u32 s30, s28, 7')
    a('s_sub_u32 s31, 28672, s29')
    a('s_cmp_ge_u32 s30, 64')
    a(f's_cbranch_scc1 {Ln}')
    xdma(a, 's30', 's31')
    a.label(Ln)
    a('v_add_u32 v7, s29, v2')
    def xr(ks):
        b = 16 + 8 * (ks % 2)
        a(f'ds_read_b128 {R(b,4)}, v7 offset:{ks*1024}')
        a(f'ds_read_b128 {R(b+4,4)}, v7 offset:{14336 + ks*1024}')
    xr(0); xr(1)
    for ks in range(14):
        a(f's_waitcnt lgkmcnt({2 if ks < 13 else 0})')
        b = 16 + 8 * (ks % 2)
        for qt in range(2):
            for t in range(7):
                c = '0' if ks == 0 else R(acc(qt, t), 4)
                x = R(b + 4 * qt, 4); w = R(W(t, ks), 4)
                a(f'{MF} {R(acc(qt,t),4)}, {w if isK else x}, {x if isK else w}, {c}')
        if ks + 2 < 14: xr(ks + 2)
        if ks == 6: hooks.signal(a, ('kvmid',))
    if isK:
        a('s_lshl_b32 s26, s28, 4')
        a('s_add_u32 s26, s26, s16')
        a('s_mul_i32 s27, s26, 3072')
        a(f's_add_u32 s27, s27, {SXX}')
        a('s_mul_i32 s26, s26, 28672')
        a(f's_add_u32 s26, s26, {KIMG}')
        a('v_add_u32 v5, s23, v7')
        a('v_add_u32 v6, s24, v7')
        for kt in range(2):
            k_cvt(a, kt, kt)
            xq_reads(a, 64 + 28 * kt, kt * 14336)
            a(f's_add_u32 s32, s26, s23')
            a(f's_add_u32 s33, s26, s24')
            for p in range(3):
                a(f'buffer_store_dwordx4 {R(KFR+14*kt+4*p,4)}, v2, s[8:11], s32 offen offset:{p*1024} {WST}')
            a(f'buffer_store_dwordx2 {R(KFR+14*kt+12,2)}, v2, s[8:11], s33 offen {WST}')
            if kt == 0: a('s_add_u32 s26, s26, 14336')
        a('s_waitcnt lgkmcnt(0)')
        SD = 16
        s_tiles(a, [(SD, KFR, 64), (SD + 4, KFR, 92), (SD + 8, KFR + 14, 92)])
        a('s_mul_i32 s32, s13, 3072')
        a(f's_add_u32 s32, s32, {S_RED}')
        a('v_add_u32 v5, s32, v2')
        for i in range(3):
            a(f'ds_write_b128 v5, {R(SD+4*i,4)} offset:{i*1024}')
        a('s_waitcnt lgkmcnt(0)')
        a('s_barrier')
        Ls = a.newlabel('KVS')
        a('s_min_u32 s32, s13, 2')
        a('s_lshl_b32 s32, s32, 10')
        a('v_add_u32 v5, s32, v2')
        a(f'v_add_u32 v6, {S_RED}, v5')
        for i in range(4):
            a(f'ds_read_b128 {R(64+4*i,4)}, v6 offset:{i*3072}')
        a('s_waitcnt lgkmcnt(0)')
        for r in range(4):
            a(f'v_add_f32 {R(64+r)}, {R(64+r)}, {R(68+r)}')
            a(f'v_add_f32 {R(72+r)}, {R(72+r)}, {R(76+r)}')
        for r in range(4):
            a(f'v_add_f32 {R(32+r)}, {R(64+r)}, {R(72+r)}')
        a(f'buffer_store_dwordx4 v[32:35], v5, s[8:11], s27 offen {WST}')
        nst = 9
    else:
        a('s_mul_i32 s26, s28, 28')
        a('s_add_u32 s27, s26, s20')
        a('s_add_u32 s26, s26, s19')
        a('s_lshl_b32 s32, s16, 10')
        a(f's_add_u32 s32, s32, {VIMG}')
        a('s_lshl_b32 s26, s26, 14')
        a('s_lshl_b32 s27, s27, 14')
        a('s_add_u32 s26, s26, s32')
        a('s_add_u32 s27, s27, s32')
        for t in range(7):
            o = KFR + 4 * t
            for r in range(4):
                a(f'v_cvt_pk_bf16_f32 {R(o+r)}, {R(acc(0,t)+r)}, {R(acc(1,t)+r)}')
            a(f'buffer_store_dwordx4 {R(o,4)}, v2, s[8:11], {"s26" if t < 6 else "s27"} offen {WST}')
            if t < 5: a('s_add_u32 s26, s26, 16384')
        nst = 7
    hooks.signal(a, ('kv', nst))
    a(f's_waitcnt vmcnt({nst})')
    a('s_mov_b32 s28, s30')
    a('s_mov_b32 s29, s31')
    a('s_cmp_lt_u32 s28, 64')
    a(f's_cbranch_scc1 {L}')
    hooks.signal(a, ('kvmid',))

MFR = [16 + 4 * i for i in range(12)] + [92, 96]
def gen_mirror(a, hooks, isK, z0, zstep, src):
    a('v_mul_u32_u24 v8, 896, v3')
    a('v_lshl_add_u32 v8, v4, 4, v8')
    a(f's_mov_b32 s28, {z0}')
    if isK:
        a('v_add_u32 v5, s23, v2')
        a('v_add_u32 v6, s24, v2')
        a('v_and_b32 v9, 1, v4')
        a('v_lshlrev_b32 v9, 4, v9')
        a('v_lshl_add_u32 v9, v3, 5, v9')
        a('v_lshrrev_b32 v10, 1, v4')
        a('s_lshr_b32 s26, s13, 1')
        a('v_cmp_eq_u32 vcc, s26, v10')
        a('v_mov_b32 v10, 0x80000000')
        a('v_cndmask_b32 v9, v10, v9, vcc')
    else:
        a('v_lshrrev_b32 v9, 1, v4')
        a(f'v_mul_u32_u24 v9, {16*7168}, v9')
        a('v_and_b32 v10, 31, v1')
        a('v_lshl_add_u32 v9, v10, 4, v9')
        a('v_cmp_gt_u32 vcc, 16, v10')
        a('v_mov_b32 v10, 0x80000000')
        a('v_cndmask_b32 v10, v10, v9, vcc')
    def xpair(zs):
        a(f's_lshl_b32 s30, {zs}, 1')
        a(f's_and_b32 s31, {zs}, 1')
        a('s_mul_i32 s31, s31, 57344')
        xdma(a, 's30', 's31')
        a('s_add_u32 s30, s30, 1')
        a('s_add_u32 s31, s31, 28672')
        xdma(a, 's30', 's31')
    if isK:
        a('s_barrier')
        xpair('s28')
    a('s_mov_b32 s34, 0')
    L = a.newlabel('MIR')
    a.label(L); a.reset_hist()
    WT(a, 0)
    a('s_mul_i32 s26, s28, 14336')
    a(f's_add_u32 s26, s26, {src}')
    Lr = a.newlabel('MIRP'); Lq = a.newlabel('MIRQ')
    a('s_mov_b32 s35, 0')
    a(f's_branch {Lr}')
    a.label(Lq)
    hooks.wait(a, ('mem0', MFR[13]))
    a.label(Lr)
    for ks in range(14):
        a(f'buffer_load_dwordx4 {R(MFR[ks],4)}, v8, s[8:11], s26 offen offset:{ks*64} {WLD}')
    WT(a, 1)
    hooks.signal(a, ('pend', 14))
    WT(a, 2)
    hooks.wait(a, ('mem1', Lq))
    WT(a, 3)
    if isK:
        a('s_and_b32 s31, s28, 1')
        a('s_mul_i32 s31, s31, 57344')
        a('s_add_u32 s30, s31, s23')
        a('v_add_u32 v5, s30, v2')
        a('s_add_u32 s30, s31, s24')
        a('v_add_u32 v6, s30, v2')
    fill = []
    if isK:
        a(f's_add_u32 s29, s28, {zstep}')
        a('s_min_u32 s30, s29, 31')
        a('s_lshl_b32 s30, s30, 1')
        a('s_and_b32 s31, s29, 1')
        a('s_mul_i32 s31, s31, 57344')
        rec = fill.append
        xdma(rec, 's30', 's31')
        rec('s_add_u32 s30, s30, 1'); rec('s_add_u32 s31, s31, 28672')
        xdma(rec, 's30', 's31')
    for ks in range(14):
        for t in range(7):
            c = '0' if ks == 0 else R(acc(0, t), 4)
            x = R(MFR[ks], 4); w = R(W(t, ks), 4)
            a(f'{MF} {R(acc(0,t),4)}, {w if isK else x}, {x if isK else w}, {c}')
            if t == 0:
                while fill:
                    i = fill.pop(0); a(i)
                    if i.startswith('buffer_'): break
    if isK:
        WT(a, 4)
        a('s_barrier')
        WT(a, 5)
        k_cvt(a, 0, 0)
        XQ = [64, 78, 92, 106]
        for i in range(4): xq_reads(a, XQ[i], i * 14336)
        a('s_waitcnt lgkmcnt(0)')
        SD = 16
        WT(a, 6)
        s_tiles(a, [(SD + 4 * i, KFR, XQ[i]) for i in range(4)])
        a('s_lshl_b32 s32, s13, 12')
        a(f's_add_u32 s32, s32, {S_RED}')
        a('v_add_u32 v7, s32, v2')
        for i in range(4):
            a(f'ds_write_b128 v7, {R(SD+4*i,4)} offset:{i*1024}')
        a('s_waitcnt lgkmcnt(0)')
        a('s_barrier')
        WT(a, 7)
        a('s_lshl_b32 s32, s13, 10')
        a(f's_add_u32 s32, s32, {S_RED}')
        a('v_add_u32 v7, s32, v2')
        for i in range(4):
            a(f'ds_read_b128 {R(64+4*i,4)}, v7 offset:{i*4096}')
        a('s_lshr_b32 s26, s13, 1')
        a('s_lshl_b32 s27, s28, 1')
        a('s_add_u32 s26, s26, s27')
        a('s_lshl_b32 s26, s26, 4')
        a('s_add_u32 s26, s26, s16')
        a('s_lshl_b32 s26, s26, 1')
        a('s_add_u32 s26, s26, s17')
        a('s_lshl_b32 s26, s26, 9')
        a(f's_add_u32 s26, s26, {SXM}')
        a('s_waitcnt lgkmcnt(0)')
        for r in range(4):
            a(f'v_add_f32 {R(64+r)}, {R(64+r)}, {R(68+r)}')
            a(f'v_add_f32 {R(72+r)}, {R(72+r)}, {R(76+r)}')
        for r in range(4):
            a(f'v_add_f32 {R(100+r)}, {R(64+r)}, {R(72+r)}')
        a(f'buffer_store_dwordx4 v[100:103], v9, s[8:11], s26 offen {WST}')
    else:
        a('s_lshl_b32 s26, s28, 5')
        a('s_add_u32 s26, s26, s16')
        a('s_mul_i32 s26, s26, 28')
        a('s_add_u32 s27, s26, s20')
        a('s_add_u32 s26, s26, s19')
        a('s_lshl_b32 s26, s26, 8')
        a('s_lshl_b32 s27, s27, 8')
        a(f's_add_u32 s26, s26, {UIMG}')
        a(f's_add_u32 s27, s27, {UIMG}')
        for p in range(4):
            o = 100 + 4 * p
            for b in range(2):
                t = min(2 * p + b, 6)
                for q in range(2):
                    a(f'v_cvt_pk_bf16_f32 {R(o+2*b+q)}, {R(acc(0,t)+2*q)}, {R(acc(0,t)+2*q+1)}')
            a(f'v_permlane16_swap_b32 {R(o)}, {R(o+2)}')
            a(f'v_permlane16_swap_b32 {R(o+1)}, {R(o+3)}')
            if p < 3: a(f'buffer_store_dwordx4 {R(o,4)}, v9, s[8:11], s26 offen offset:{p*512} {WST}')
            else: a(f'buffer_store_dwordx4 {R(o,4)}, v10, s[8:11], s27 offen {WST}')
    WT(a, 8)
    wdump(a, 's28', 12)
    hooks.signal(a, ('mir', 's28'))
    a(f's_add_u32 s28, s28, {zstep}')
    a('s_cmp_lt_u32 s28, 32')
    a(f's_cbranch_scc1 {L}')
    hooks.signal(a, ('pend', 0))

def gen_H(a, hooks, item='s12'):
    lane_setup(a)
    a(f's_mul_i32 s14, {item}, 2341')
    a('s_lshr_b32 s14, s14, 16')
    a('s_mul_i32 s15, s14, 28')
    a(f's_sub_u32 s15, {item}, s15')
    a('s_and_b32 s17, s13, 1')
    a('s_lshl_b32 s16, s15, 1')
    a('s_add_u32 s16, s16, s17')
    a('s_mul_i32 s18, s16, 28672')
    def HW(m, b, ks): return 256 + 4 * ((2 * m + b) * 14 + ks)
    for m, base in enumerate((WGT, WUT)):
        a(f's_add_u32 s19, s18, {base}')
        for i in range(28):
            if i and i % 4 == 0: a('s_add_u32 s19, s19, 4096')
            a(f'buffer_load_dwordx4 {R(HW(m, i//14, i%14),4)}, v2, s[8:11], s19 offen offset:{(i%4)*1024}')
    a('s_lshr_b32 s20, s13, 1')
    a('s_lshl_b32 s20, s20, 3')
    a('s_lshl_b32 s21, s14, 4')
    a('s_add_u32 s20, s20, s21')
    a('s_mul_i32 s21, s20, 14336')
    a(f's_add_u32 s21, s21, {XIMG}')
    a('s_mul_i32 s22, s20, 57344')
    a('s_lshl_b32 s23, s16, 10')
    a('s_add_u32 s22, s22, s23')
    a(f's_add_u32 s22, s22, {HIMG}')
    a('s_lshl_b32 s23, s20, 6')
    a(f's_add_u32 s23, s23, {GVEC}')
    a('v_lshlrev_b32 v5, 2, v3')
    a(f's_mov_b32 s24, {f2u(-LOG2E)}')
    XB = [16, 76, 136]; GB = [72, 132, 192]
    def xl(i):
        b = XB[i % 3]
        for ks in range(14):
            if ks % 4 == 0: a(f's_add_u32 s19, s21, {i*14336 + ks*1024}')
            a(f'buffer_load_dwordx4 {R(b+4*ks,4)}, v2, s[8:11], s19 offen offset:{(ks%4)*1024}')
        a(f'buffer_load_dword {R(GB[i%3])}, v5, s[8:11], s23 offen offset:{i*64}')
    xl(0); xl(1)
    AC = 200; T = 216; O = 232
    for i in range(8):
        if i + 2 < 8: xl(i + 2)
        n = 15 * (min(i + 2, 7) - i) + min(i, 2)
        a(f's_waitcnt vmcnt({n})')
        b = XB[i % 3]
        for ks in range(14):
            for m in range(2):
                for bb in range(2):
                    d = AC + 4 * (2 * m + bb)
                    a(f'{MF} {R(d,4)}, {R(HW(m,bb,ks),4)}, {R(b+4*ks,4)}, {"0" if ks == 0 else R(d,4)}')
        g = GB[i % 3]
        a(f'v_sub_f32 {R(g)}, 1.0, {R(g)}')
        for r in range(8): a(f'v_mul_f32 {R(T+r)}, s24, {R(AC+r)}')
        for r in range(8): a(f'v_exp_f32 {R(T+r)}, {R(T+r)}')
        for r in range(8): a(f'v_mul_f32 {R(T+8+r)}, {R(AC+r)}, {R(AC+8+r)}')
        for r in range(8): a(f'v_add_f32 {R(T+r)}, 1.0, {R(T+r)}')
        for r in range(8): a(f'v_rcp_f32 {R(T+r)}, {R(T+r)}')
        for r in range(8): a(f'v_mul_f32 {R(T+8+r)}, {R(T+8+r)}, {R(g)}')
        for r in range(8): a(f'v_mul_f32 {R(T+r)}, {R(T+r)}, {R(T+8+r)}')
        o = O + 4 * (i % 2)
        for q in range(4): a(f'v_cvt_pk_bf16_f32 {R(o+q)}, {R(T+2*q)}, {R(T+2*q+1)}')
        a(f'buffer_store_dwordx4 {R(o,4)}, v2, s[8:11], s22 offen {WST}')
        a('s_add_u32 s22, s22, 57344')
    hooks.signal(a, ('h', 's14'))

def red_g(a, x, t, op):
    for sw in ('v_permlane16_swap_b32', 'v_permlane32_swap_b32'):
        a(f'v_mov_b32 {R(t)}, {R(x)}')
        a(f'{sw} {R(x)}, {R(t)}')
        a(f'{op} {R(x)}, {R(x)}, {R(t)}')

def gen_token(a, hooks, nitems=2, seg0='s14', segstep=32):
    lane_setup(a)
    a(f's_mul_i32 s18, s15, {4*57344}')
    a('s_mul_i32 s19, s13, 14336')
    a('s_add_u32 s18, s18, s19')
    a(f's_add_u32 s18, s18, {WDT}')
    def WD(t, ks): return 256 + 4 * (14 * t + ks)
    for t in range(4):
        for ks in range(14):
            if ks % 4 == 0: a(f's_add_u32 s20, s18, {t*57344 + ks*1024}')
            a(f'buffer_load_dwordx4 {R(WD(t,ks),4)}, v2, s[8:11], s20 offen offset:{(ks%4)*1024}')
    a('v_lshlrev_b32 v5, 2, v4')
    for r in range(4):
        a(f'v_add_u32 v6, {r}, v5')
        a(f'v_cmp_le_u32 s[{48+2*r}:{49+2*r}], v6, v3')
    for hl in range(4):
        a(f'v_cmp_eq_u32 s[{60+2*hl}:{61+2*hl}], {hl}, v4')
    a('v_lshlrev_b32 v7, 10, v4')
    a('v_lshl_add_u32 v7, v3, 5, v7')
    a('v_mul_u32_u24 v15, 7168, v4')
    a('v_lshl_add_u32 v15, v3, 4, v15')
    a('v_lshlrev_b32 v8, 2, v3')
    a('v_lshrrev_b32 v9, 3, v0')
    a('v_and_b32 v10, 7, v0')
    a('v_mul_u32_u24 v11, 896, v9')
    a('v_lshl_add_u32 v11, v10, 4, v11')
    a('v_lshrrev_b32 v12, 4, v9')
    a('v_lshlrev_b32 v12, 12, v12')
    a('v_lshl_add_u32 v12, v10, 9, v12')
    a('v_and_b32 v9, 15, v9')
    a('v_lshl_add_u32 v12, v9, 4, v12')
    a('s_lshl_b32 s20, s13, 13')
    a('v_add_u32 v13, s20, v2')
    a(f'v_mov_b32 v14, {f2u(-1e30)}')
    a(f's_mov_b32 s28, {seg0}')
    a(f's_mov_b32 s29, {nitems}')
    HF = 16; VF = 128; UF = 192; XX = 208; AC = 256 + 224
    L = a.newlabel('TOK')
    a.label(L); a.reset_hist()
    hooks.wait(a, ('h', 's28'))
    hooks.wait(a, ('kv', 's28'))
    a(f's_mul_i32 s20, s28, {2*57344}')
    a('s_add_u32 s20, s20, s19')
    a(f's_add_u32 s20, s20, {HIMG}')
    for qt in range(2):
        for ks in range(14):
            if ks % 4 == 0: a(f's_add_u32 s21, s20, {qt*57344 + ks*1024}')
            a(f'buffer_load_dwordx4 {R(HF+4*(14*qt+ks),4)}, v2, s[8:11], s21 offen offset:{(ks%4)*1024} {WLD}')
    a('s_mul_i32 s20, s28, 28')
    a('s_lshl_b32 s21, s15, 2')
    a('s_add_u32 s22, s20, s21')
    a('s_lshl_b32 s20, s22, 14')
    a('s_lshl_b32 s21, s13, 12')
    a('s_add_u32 s20, s20, s21')
    a(f's_add_u32 s20, s20, {VIMG}')
    for t in range(4):
        for hl in range(4):
            a(f'buffer_load_dwordx4 {R(VF+4*(4*t+hl),4)}, v2, s[8:11], s20 offen offset:{hl*1024} {WLD}')
        a('s_add_u32 s20, s20, 16384')
    a('s_lshl_b32 s23, s28, 4')
    a('s_lshl_b32 s21, s13, 2')
    a('s_add_u32 s23, s23, s21')
    a('s_mul_i32 s20, s23, 3072')
    a(f's_add_u32 s20, s20, {SXX}')
    for i in range(12):
        if i and i % 4 == 0: a('s_add_u32 s20, s20, 4096')
        a(f'buffer_load_dwordx4 {R(XX+4*i,4)}, v2, s[8:11], s20 offen offset:{(i%4)*1024} {WLD}')
    a('s_lshl_b32 s20, s28, 7')
    a(f's_add_u32 s20, s20, {GVEC}')
    a('buffer_load_dword v5, v8, s[8:11], s20 offen')
    a('buffer_load_dword v6, v8, s[8:11], s20 offen offset:64')
    a('s_waitcnt vmcnt(30)')
    for ks in range(14):
        for qt in range(2):
            for t in range(4):
                d = AC + 4 * (4 * qt + t)
                a(f'{MF} {R(d,4)}, {R(WD(t,ks),4)}, {R(HF+4*(14*qt+ks),4)}, {"0" if ks == 0 else R(d,4)}')
    XM = 16; PX = 48; PMF = 96; m = 104; l = 105; t0 = 106; t1 = 107; MX = 80; LX = 82; FF = 84
    a('s_waitcnt vmcnt(0)')
    def xsl(hl, qt): return [XX + 12 * hl + r for r in range(4)] if qt == 0 else [XX + 12 * hl + 4 + r for r in range(8)]
    def maxall(dst, al):
        a(f'v_max3_f32 {R(dst)}, {R(al[0])}, {R(al[1])}, {R(al[2])}')
        i = 3
        while i < len(al):
            if i + 1 < len(al):
                a(f'v_max3_f32 {R(dst)}, {R(dst)}, {R(al[i])}, {R(al[i+1])}'); i += 2
            else:
                a(f'v_max_f32 {R(dst)}, {R(dst)}, {R(al[i])}'); i += 1
    for hl in range(4):
        for qt in range(2):
            xs = xsl(hl, qt); diag = xs[-4:]
            for r in range(4):
                a(f'v_cndmask_b32 {R(diag[r])}, v14, {R(diag[r])}, s[{48+2*r}:{49+2*r}]')
            maxall(m, xs)
            red_g(a, m, t0, 'v_max_f32')
            for x in xs: a(f'v_sub_f32 {R(x)}, {R(x)}, {R(m)}')
            for x in xs: a(f'v_exp_f32 {R(x)}, {R(x)}')
            a(f'v_add_f32 {R(l)}, {R(xs[0])}, {R(xs[1])}')
            for x in xs[2:]: a(f'v_add_f32 {R(l)}, {R(l)}, {R(x)}')
            red_g(a, l, t0, 'v_add_f32')
            a(f'v_cndmask_b32 {R(MX+qt)}, {R(MX+qt)}, {R(m)}, s[{60+2*hl}:{61+2*hl}]')
            a(f'v_cndmask_b32 {R(LX+qt)}, {R(LX+qt)}, {R(l)}, s[{60+2*hl}:{61+2*hl}]')
    a('s_lshl_b32 s20, s23, 10')
    a(f's_add_u32 s20, s20, {SXM}')
    a('s_mul_i32 s21, s23, 7168')
    a('s_lshl_b32 s22, s15, 10')
    a('s_add_u32 s21, s21, s22')
    a(f's_add_u32 s21, s21, {UIMG}')
    hooks.wait(a, ('mir', 's28'))
    for i in range(4):
        a(f'buffer_load_dwordx4 {R(XM+4*i,4)}, v7, s[8:11], s20 offen offset:{(i//2)*512 + (i%2)*16} {WLD}')
    for t in range(4):
        a(f'buffer_load_dwordx4 {R(UF+4*t,4)}, v15, s[8:11], s21 offen offset:{t*256} {WLD}')
    for qt in range(2):
        a(f's_waitcnt vmcnt({6 - 2*qt})')
        ms = [XM + 8 * qt + r for r in range(8)]
        maxall(m, ms + [MX + qt])
        for x in ms + [MX + qt]: a(f'v_sub_f32 {R(x)}, {R(x)}, {R(m)}')
        for x in ms + [MX + qt]: a(f'v_exp_f32 {R(x)}, {R(x)}')
        a(f'v_add_f32 {R(l)}, {R(ms[0])}, {R(ms[1])}')
        a(f'v_add_f32 {R(t1)}, {R(ms[2])}, {R(ms[3])}')
        for i in (4, 6):
            a(f'v_add_f32 {R(l)}, {R(l)}, {R(ms[i])}')
            a(f'v_add_f32 {R(t1)}, {R(t1)}, {R(ms[i+1])}')
        a(f'v_fma_f32 {R(l)}, {R(LX+qt)}, {R(MX+qt)}, {R(l)}')
        a(f'v_add_f32 {R(l)}, {R(l)}, {R(t1)}')
        a(f'v_rcp_f32 {R(l)}, {R(l)}')
        a(f'v_mul_f32 {R(l)}, {R(l)}, {R(5+qt)}')
        a(f'v_mul_f32 {R(MX+qt)}, {R(MX+qt)}, {R(l)}')
        f = FF + 4 * qt
        a(f'v_mov_b32 {R(f)}, {R(MX+qt)}')
        a(f'v_mov_b32 {R(f+1)}, {R(MX+qt)}')
        for x in ms[:4]: a(f'v_mul_f32 {R(x)}, {R(x)}, {R(l)}')
        a(f'v_permlane16_swap_b32 {R(f)}, {R(f+1)}')
        a(f'v_mov_b32 {R(f+2)}, {R(f)}')
        a(f'v_mov_b32 {R(f+3)}, {R(f+1)}')
        for x in ms[4:]: a(f'v_mul_f32 {R(x)}, {R(x)}, {R(l)}')
        a(f'v_permlane32_swap_b32 {R(f)}, {R(f+2)}')
        a(f'v_permlane32_swap_b32 {R(f+1)}, {R(f+3)}')
        for q in range(4):
            a(f'v_cvt_pk_bf16_f32 {R(PMF+4*qt+q)}, {R(ms[2*q])}, {R(ms[2*q+1])}')
        for hl in range(4):
            xs = xsl(hl, qt)
            for x in xs: a(f'v_mul_f32 {R(x)}, {R(x)}, {R(f+hl)}')
            p = PX + 4 * (2 * hl + qt)
            for r in range(4):
                a(f'v_cvt_pk_bf16_f32 {R(p+r)}, {R(xs[r])}, {R(xs[4+r]) if qt else 0}')
            for t in range(4):
                d = AC + 4 * (4 * qt + t)
                a(f'{MF} {R(d,4)}, {R(VF+4*(4*t+hl),4)}, {R(p,4)}, {R(d,4)}')
    a('s_waitcnt vmcnt(0)')
    for qt in range(2):
        for t in range(4):
            d = AC + 4 * (4 * qt + t)
            a(f'{MF} {R(d,4)}, {R(UF+4*t,4)}, {R(PMF+4*qt,4)}, {R(d,4)}')
    for i in range(8):
        a(f'ds_write_b128 v13, {R(AC+4*i,4)} offset:{i*1024}')
    a('s_waitcnt lgkmcnt(0)')
    a('s_barrier')
    for w in range(4):
        for hf in range(2):
            a(f'ds_read_b128 {R(16+8*w+4*hf,4)}, v12 offset:{w*8192 + hf*256}')
    a(f's_mul_i32 s20, s28, {32*896}')
    a('s_lshl_b32 s21, s15, 7')
    a('s_add_u32 s20, s20, s21')
    a('s_waitcnt lgkmcnt(0)')
    a('s_barrier')
    for r in range(8):
        a(f'v_add_f32 {R(16+r)}, {R(16+r)}, {R(24+r)}')
        a(f'v_add_f32 {R(32+r)}, {R(32+r)}, {R(40+r)}')
    for r in range(8): a(f'v_add_f32 {R(16+r)}, {R(16+r)}, {R(32+r)}')
    for q in range(4): a(f'v_cvt_pk_bf16_f32 {R(108+q)}, {R(16+2*q)}, {R(16+2*q+1)}')
    a('buffer_store_dwordx4 v[108:111], v11, s[36:39], s20 offen')
    a(f's_add_u32 s28, s28, {segstep}')
    a('s_cmp_lt_u32 s28, 64')
    a(f's_cbranch_scc1 {L}')
```

```python
import sys, os
from asmlib import *
from layout import *
import prep, workers, team2
from prep import srd
from team2 import F_CLAIM, F_KV, F_MIR, F_H
team2.MEGA = True; team2.SPARE_PF = 1
for k_, v_ in dict(A_SLEEP=4, CDEPTH=2, PDEPTH=2, PSTAG=2, C_SLEEP=4, C_PF=1).items(): setattr(team2, k_, v_)
OPT = dict(FORCE_SLOW=0, TIMING=0, STATIC=0)
for kv in sys.argv[1:]:
    if '=' in kv:
        k_, v_ = kv.split('=')
        if k_ in OPT: OPT[k_] = eval(v_)
        else: setattr(team2, k_, eval(v_))
workers.WINSTR = bool(OPT['TIMING'])
workers.WST = 'sc1'; workers.WLD = 'sc1'
REF = open('gated_mix__memory_aug_recurrent_mem_tr__swiglu_ffn__prompt.s.ref').read()
head_comments = ''.join(l + '\n' for l in REF.split('\n') if l.startswith(';') and '@launch' not in l and 'Override launch' not in l and 'grid=ceil' not in l)
def kbegin(name): return f".globl {name}\n.p2align 8\n.type {name},@function\n{name}:\n"
def kdesc(name, vg=512, acc=256, sg=96):
    return f""".amdhsa_kernel {name}
  .amdhsa_next_free_vgpr {vg}
  .amdhsa_next_free_sgpr {sg}
  .amdhsa_accum_offset {acc}
  .amdhsa_group_segment_fixed_size 0
  .amdhsa_kernarg_size 120
  .amdhsa_user_sgpr_count 2
  .amdhsa_user_sgpr_kernarg_segment_ptr 1
  .amdhsa_system_sgpr_workgroup_id_x 1
.end_amdhsa_kernel
"""
EXIT = 'MEGA_EXIT'
SPINW = 4000000
def tmark(a, k):
    if not OPT['TIMING']: return
    a('s_memrealtime s[80:81]')
    a('s_waitcnt lgkmcnt(0)')
    a('s_lshl_b32 s82, s83, 6')
    a(f's_add_u32 s82, s82, {DBG + 4*k}')
    a('v_mov_b32 v15, s80')
    a('buffer_store_dword v15, off, s[8:11], s82')
class H(workers.Hooks):
    def guard(self, a):
        a('s_add_u32 s35, s35, 1')
        a(f's_cmp_gt_u32 s35, {SPINW}')
        a(f's_cbranch_scc1 {EXIT}')
    def flag(self, a, soff):
        a('v_mov_b32 v15, 1')
        a('s_mov_b64 exec, 1')
        a(f'buffer_store_dword v15, off, s[8:11], {soff} sc1')
        a('s_mov_b64 exec, -1')
    def poll(self, a, t, wide, addr, sleep):
        L = a.newlabel('WF')
        a('s_mov_b32 s35, 0')
        for x in addr: a(x)
        Lf = a.newlabel('WF0')
        a(f's_branch {Lf}')
        a.label(L)
        a(f's_sleep {sleep}')
        a.label(Lf)
        if wide: a(f'buffer_load_dwordx2 {R(t+2,2)}, {R(t)}, s[8:11], s30 offen sc1')
        else: a(f'buffer_load_dword {R(t+2)}, {R(t)}, s[8:11], s30 offen sc1')
        self.guard(a)
        a('s_waitcnt vmcnt(0)')
        if wide: a(f'v_min_u32 {R(t+2)}, {R(t+2)}, {R(t+3)}')
        a(f'v_cmp_eq_u32 vcc, 0, {R(t+2)}')
        a(f's_cbranch_vccnz {L}')
    def wait(self, a, what):
        k = what[0]
        if k == 'h':
            self.poll(a, 16, False, [f's_lshr_b32 s30, {what[1]}, 2', 's_lshl_b32 s30, s30, 8', f's_add_u32 s30, s30, {F_H}',
                                     'v_min_u32 v16, 55, v1', 'v_lshlrev_b32 v16, 2, v16'], 16)
        elif k == 'kv':
            self.poll(a, 16, True, [f's_lshl_b32 s30, {what[1]}, 9', f's_add_u32 s30, s30, {F_KV}', 'v_lshlrev_b32 v16, 3, v1'], 16)
        elif k == 'mir':
            self.poll(a, 112, True, [f's_lshr_b32 s30, {what[1]}, 1', 's_lshl_b32 s30, s30, 9', f's_add_u32 s30, s30, {F_MIR}',
                                     'v_lshlrev_b32 v112, 3, v1'], 4)
        elif k == 'mem0':
            L = a.newlabel('WM'); Lf = a.newlabel('WM0')
            r = what[1]
            a(f's_branch {Lf}')
            a.label(L)
            a('s_sleep 2')
            a.label(Lf)
            a(f'buffer_load_dwordx4 {R(r,4)}, v8, s[8:11], s26 offen offset:{13*64} sc1')
            self.guard(a)
            a('s_waitcnt vmcnt(0)')
            a(f'v_cmp_eq_u32 vcc, -1, {R(r+3)}')
            a(f's_cbranch_vccnz {L}')
        elif k == 'mem1':
            self.guard(a)
            first = True
            for ks in range(14):
                a(f's_waitcnt vmcnt({14-ks})')
                for x in team2.acc_max(15, range(workers.MFR[ks], workers.MFR[ks] + 4), first): a(x)
                first = False
            a('v_cmp_eq_u32 vcc, -1, v15')
            a(f's_cbranch_vccnz {what[1]}')
    def signal(self, a, what):
        k = what[0]
        if k == 'kv':
            a('s_lshl_b32 s34, s28, 9')
            a('s_lshl_b32 s33, s14, 4')
            a('s_add_u32 s34, s34, s33')
            a('s_lshl_b32 s33, s13, 2')
            a('s_add_u32 s34, s34, s33')
            a(f's_add_u32 s34, s34, {F_KV}')
        elif k == 'kvmid':
            L = a.newlabel('NF')
            a('s_cmp_eq_u32 s34, 0')
            a(f's_cbranch_scc1 {L}')
            a('s_waitcnt vmcnt(0)')
            self.flag(a, 's34')
            a.label(L)
        elif k == 'mir':
            a('s_lshl_b32 s34, s28, 9')
            a('s_lshl_b32 s33, s14, 4')
            a('s_add_u32 s34, s34, s33')
            a('s_lshl_b32 s33, s13, 2')
            a('s_add_u32 s34, s34, s33')
            a(f's_add_u32 s34, s34, {F_MIR}')
        elif k == 'pend':
            L = a.newlabel('NF')
            a('s_cmp_eq_u32 s34, 0')
            a(f's_cbranch_scc1 {L}')
            a(f's_waitcnt vmcnt({what[1]})')
            self.flag(a, 's34')
            a('s_mov_b32 s34, 0')
            if what[1]:
                L2 = a.newlabel('NF2')
                a(f's_branch {L2}')
                a.label(L)
                a('buffer_load_dword v11, off, s[8:11], s26 sc1')
                a.label(L2)
            else:
                a.label(L)
        elif k == 'h':
            a('s_lshl_b32 s34, s14, 1')
            a('s_lshr_b32 s33, s13, 1')
            a('s_add_u32 s34, s34, s33')
            a('s_lshl_b32 s34, s34, 8')
            a('s_lshl_b32 s33, s16, 2')
            a('s_add_u32 s34, s34, s33')
            a(f's_add_u32 s34, s34, {F_H}')
            a('s_waitcnt vmcnt(0)')
            self.flag(a, 's34')
hooks = H()
a = Asm()
a.raw(kbegin('prep_kernel')); a.reset_hist()
if OPT['TIMING']:
    a('s_memrealtime s[84:85]')
prep.gen_prep(a, 'PREP_DONE', 'PREP_EXIT'); a.label('PREP_DONE')
if OPT['TIMING']:
    a('s_waitcnt vmcnt(0)')
    a('s_memrealtime s[80:81]')
    a('s_waitcnt lgkmcnt(0)')
    a('s_lshl_b32 s82, s2, 3')
    a(f's_add_u32 s82, s82, {DBG + 65536}')
    a('v_mov_b32 v14, s84')
    a('v_mov_b32 v15, s80')
    a('buffer_store_dwordx2 v[14:15], off, s[8:11], s82')
a.label('PREP_EXIT'); a('s_endpgm')

a.raw(kbegin('mega_kernel')); a.reset_hist()
a('s_cmp_ge_u32 s2, 256')
a(f's_cbranch_scc1 {EXIT}')
srd(a, 8, 112, WS_BYTES)
a('v_readfirstlane_b32 s13, v0')
a('s_lshr_b32 s13, s13, 6')
a('s_getreg_b32 s3, hwreg(HW_REG_XCC_ID)')
if OPT['FORCE_SLOW']: a('s_lshr_b32 s3, s2, 5')
a('s_cmp_lg_u32 s3, 0')
a('s_cselect_b32 s41, 0x10001, 1')
if OPT['FORCE_SLOW']: a('s_mov_b32 s41, 0x10001')
if OPT['STATIC']: a('s_and_b32 s3, s2, 7')
a('s_mov_b32 s26, 0')
a('v_mov_b32 v12, 0')
a('s_waitcnt lgkmcnt(0)')
a('s_cmp_lg_u32 s13, 0')
a('s_cbranch_scc1 CLAIMED')
a('s_mov_b64 exec, 1')
a('s_mov_b32 s19, 0')
a.label('CLAIM')
a('s_and_b32 s3, s3, 7')
a('s_lshl_b32 s18, s3, 8')
a(f's_add_u32 s18, s18, {F_CLAIM}')
a('v_mov_b32 v13, 1')
a('buffer_atomic_add v13, off, s[8:11], s18 sc0 sc1')
a('s_waitcnt vmcnt(0)')
a('v_readfirstlane_b32 s18, v13')
a('s_cmp_lt_u32 s18, 32')
a('s_cbranch_scc1 CLAIM_OK')
a('s_add_u32 s3, s3, 1')
a('s_add_u32 s19, s19, 1')
a('s_cmp_lt_u32 s19, 8')
a('s_cbranch_scc1 CLAIM')
a('s_mov_b32 s18, 0x10000')
a.label('CLAIM_OK')
a('s_lshl_b32 s3, s3, 5')
a('s_add_u32 s18, s18, s3')
a('v_mov_b32 v13, s18')
a('ds_write_b32 v12, v13')
a('s_waitcnt lgkmcnt(0)')
a('s_mov_b64 exec, -1')
a.label('CLAIMED')
a('s_barrier')
a('ds_read_b32 v13, v12')
a('s_waitcnt lgkmcnt(0)')
a('v_readfirstlane_b32 s12, v13')
a('s_barrier')
a('s_cmp_ge_u32 s12, 256')
a(f's_cbranch_scc1 {EXIT}')
a('s_mov_b32 s83, s12')
tmark(a, 0)
a('s_cmp_ge_u32 s12, 32')
a('s_cbranch_scc1 WORKER')
srd(a, 32, 8, 7168)
a('s_waitcnt lgkmcnt(0)')
a('s_cmp_ge_u32 s12, 30')
a('s_cbranch_scc1 ROLE_P')
a('s_cmp_ge_u32 s12, 16')
a('s_cbranch_scc1 ROLE_C')
stamp = (lambda a, k: tmark(a, 1 + k)) if OPT['TIMING'] else None
team2.gen_A(a, EXIT, stamp)
a.label('ROLE_C'); a.reset_hist()
a('s_sub_u32 s12, s12, 16')
team2.gen_C(a, EXIT, stamp)
a.label('ROLE_P'); a.reset_hist()
a('s_sub_u32 s12, s12, 30')
team2.gen_spare(a, EXIT)
a.label('WORKER'); a.reset_hist()
a('s_sub_u32 s12, s12, 32')
workers.kv_setup(a)
a('s_cmp_ge_u32 s14, 16')
a('s_cbranch_scc1 W_V')
workers.gen_kv(a, hooks, True)
tmark(a, 1)
a('s_cmp_lg_u32 s15, 6')
a('s_cbranch_scc1 W_H')
workers.gen_mirror(a, hooks, True, 0, 1, MEMX)
tmark(a, 2)
a(f's_branch {EXIT}')
a.label('W_V'); a.reset_hist()
workers.gen_kv(a, hooks, False)
tmark(a, 1)
a('s_cmp_lg_u32 s15, 6')
a('s_cbranch_scc1 W_H')
workers.gen_mirror(a, hooks, False, 0, 1, MEMX)
tmark(a, 2)
a(f's_branch {EXIT}')
a.label('W_H'); a.reset_hist(); a.flush()
a('s_mul_i32 s12, s14, 6')
a('s_add_u32 s12, s12, s15')
a('s_mov_b32 s58, s12')
a.label('W_HL'); a.reset_hist()
workers.gen_H(a, hooks, 's58')
a('s_add_u32 s58, s58, 32')
a('s_cmp_lt_u32 s58, 192')
a('s_cbranch_scc1 W_T')
a('s_cmp_lt_u32 s58, 224')
a('s_cbranch_scc1 W_HL')
a.label('W_T'); a.reset_hist()
tmark(a, 2)
a('s_cmp_ge_u32 s12, 189')
a(f's_cbranch_scc1 {EXIT}')
srd(a, 36, 96, 2048 * 896)
a('s_mul_i32 s14, s12, 9363')
a('s_lshr_b32 s14, s14, 16')
a('s_mul_i32 s15, s14, 7')
a('s_sub_u32 s15, s12, s15')
a('s_waitcnt lgkmcnt(0)')
a('s_barrier')
workers.gen_token(a, hooks, 0, 's14', 27)
tmark(a, 3)
a.label(EXIT); a('s_endpgm')

launches = [('prep_kernel', 256, 0), ('mega_kernel', 256, team2.LDS_TEAM)]
out = head_comments
for n, g, l in launches: out += f'; @launch kernel={n} grid=({g},1,1) block=(256,1,1) lds={l}\n'
out += '.amdgcn_target "amdgcn-amd-amdhsa--gfx950"\n.text\n' + a.text() + '.section .rodata,"a"\n'
for n, g, l in launches: out += '.p2align 6\n' + kdesc(n)
open(os.environ.get('OUT', 'mega.s'), 'w').write(out)
print('lines', len(a.lines), 'nops', a.nops_added, 'bytes', len(out))
```

```python
from asmlib import *
from layout import *
from prep import f2u, LOG2E, srd
MF = 'v_mfma_f32_16x16x32_bf16'
WSZ = 448 * 4096 * 2
BUFSZ = 65536 + 8192
P0_LDS = 2 * BUFSZ

def gen_phase0(a, isK):
    srd(a, 44, 24 if isK else 32, WSZ)
    srd(a, 48, 16 if isK else 40, WSZ)
    a('s_lshl_b32 s23, s13, 2')
    a('s_min_u32 s23, s23, 10')
    a('v_lshrrev_b32 v5, 3, v1')
    a('v_and_b32 v6, 7, v1')
    a('v_xor_b32 v6, v6, v5')
    a('v_lshlrev_b32 v6, 4, v6')
    a('v_lshl_add_u32 v7, v5, 13, v6')
    if not isK:
        a('v_mul_u32_u24 v8, 896, v5')
        a('v_add_u32 v8, v8, v6')
    a('s_lshl_b32 s17, s16, 9')
    a('s_lshl_b32 s18, s23, 18')
    a('s_add_u32 s18, s18, s17')
    if isK:
        a('s_lshl_b32 s19, s15, 19')
        a('s_lshl_b32 s20, s13, 17')
        a('s_add_u32 s19, s19, s20')
        a('s_add_u32 s19, s19, s17')
    else:
        a(f's_mul_i32 s19, s16, {256*896}')
        a(f's_mul_i32 s20, s13, {16*896}')
        a('s_add_u32 s19, s19, s20')
        a('s_lshl_b32 s20, s15, 7')
        a('s_add_u32 s19, s19, s20')
    a('s_lshl_b32 s21, s13, 14')
    a('s_lshl_b32 s22, s13, 11')
    a('s_add_u32 s22, s22, 65536')
    a('s_waitcnt lgkmcnt(0)')
    a('v_lshrrev_b32 v9, 2, v1')
    a('v_lshlrev_b32 v9, 13, v9')
    a('v_and_b32 v10, 3, v1')
    a('v_lshl_add_u32 v9, v10, 7, v9')
    a('s_lshl_b32 s24, s15, 19')
    a('s_lshl_b32 s25, s13, 17')
    a('s_add_u32 s24, s24, s25')
    a('s_add_u32 s24, s24, s17')
    a('buffer_load_dword v11, v9, s[44:47], s24 offen')
    def dma(ch):
        out = []
        b = (ch % 2) * BUFSZ
        for i in range(2):
            out.append(f's_add_u32 m0, s22, {b + i*1024}')
            if isK:
                out.append(f's_add_u32 s24, s19, {i*8*8192 + ch*128}')
                out.append('buffer_load_dwordx4 v7, s[48:51], s24 offen lds')
            else:
                out.append(f's_add_u32 s24, s19, {(64*ch + 8*i)*896}')
                out.append('buffer_load_dwordx4 v8, s[48:51], s24 offen lds')
        for i in range(16):
            out.append(f's_add_u32 m0, s21, {b + i*1024}')
            out.append(f's_add_u32 s24, s18, {i*8*8192 + ch*128}')
            out.append('buffer_load_dwordx4 v7, s[44:47], s24 offen lds')
        return out
    for x in dma(0) + dma(1): a(x)
    a('v_lshrrev_b32 v9, 2, v3')
    a('v_lshlrev_b32 v9, 10, v9')
    a('v_and_b32 v10, 3, v3')
    a('v_lshl_add_u32 v9, v10, 7, v9')
    a('v_xor_b32 v10, v10, v4')
    a('v_lshl_add_u32 v9, v10, 4, v9')
    a('v_add_u32 v12, s21, v9')
    a(f'v_add_u32 v13, {BUFSZ}, v12')
    if isK:
        a('v_add_u32 v14, 65536, v9')
        a(f'v_add_u32 v15, {BUFSZ + 65536}, v9')
    else:
        a('v_lshrrev_b32 v9, 2, v3')
        a('v_bfe_u32 v10, v3, 1, 1')
        a('v_xor_b32 v10, v10, v9')
        a('v_lshlrev_b32 v10, 4, v10')
        a('v_lshl_add_u32 v10, v9, 7, v10')
        a('v_lshl_add_u32 v10, v4, 10, v10')
        a('v_and_b32 v9, 1, v3')
        a('v_lshl_add_u32 v10, v9, 3, v10')
        a('v_add_u32 v14, 65536, v10')
        a('v_xor_b32 v15, 32, v14')
    AF = 16; BF = 80; ACC = 112
    def acc(i, t): return ACC + 4 * (4 * i + t)
    def reads(es):
        ch, e = es // 2, es % 2
        out = []
        if isK:
            rb = 'v14' if ch % 2 == 0 else 'v15'
            for t in range(4):
                b = t % 2
                out.append(f'ds_read_b128 {R(BF+16*e+4*t,4)}, {rb} offset:{(t//2)*4096 + b*512 + (b^e)*64}')
        else:
            for t in range(4):
                for hf in range(2):
                    off = e * 4096 + hf * 512 + ((t // 2) ^ hf) * 64
                    out.append(f'ds_read_b64_tr_b16 {R(BF+16*e+4*t+2*hf,2)}, {"v15" if t % 2 else "v14"} offset:{off}')
        ra = 'v12' if ch % 2 == 0 else 'v13'
        for i in range(8):
            b = i % 2
            out.append(f'ds_read_b128 {R(AF+32*e+4*i,4)}, {ra} offset:{(i//2)*4096 + b*512 + (b^e)*64}')
        return out
    for ch in range(4):
        a(f's_waitcnt vmcnt({18 if ch < 3 else 0})')
        a('s_barrier')
        r0 = reads(2 * ch); r1 = reads(2 * ch + 1)
        for x in r0: a(x)
        nb = len(r0) - 8
        for e in range(2):
            es = 2 * ch + e
            fill = list(r1) if e == 0 else []
            if e == 1:
                a('s_waitcnt lgkmcnt(0)')
                if ch + 2 < 4:
                    a('s_barrier')
                    fill = dma(ch + 2)
                if not isK and ch < 3:
                    d = BUFSZ if ch % 2 == 0 else -BUFSZ
                    a(f'v_add_u32 v14, {d & 0xffffffff}, v14')
                    a(f'v_add_u32 v15, {d & 0xffffffff}, v15')
            else:
                a('s_waitcnt lgkmcnt(0)')
            k = 0
            for i in range(8):
                for t in range(4):
                    c = '0' if es == 0 else R(acc(i, t), 4)
                    a(f'{MF} {R(acc(i,t),4)}, {R(AF+32*e+4*i,4)}, {R(BF+16*e+4*t,4)}, {c}')
                    while fill:
                        x = fill.pop(0); a(x)
                        if not x.startswith('s_'): break
    a(f's_mul_i32 s24, s14, {MAT}')
    a(f's_mul_i32 s25, s15, {4*14336}')
    a('s_add_u32 s24, s24, s25')
    a('s_lshl_b32 s25, s23, 10')
    a('s_add_u32 s24, s24, s25')
    if isK:
        a(f's_mov_b32 s26, {f2u(LOG2E/16)}')
        a(f's_mov_b32 s27, {f2u(LOG2E/16)}')
    for t in range(4):
        for p in range(4):
            o = 16 + 4 * ((4 * t + p) % 8)
            for b in range(2):
                r = acc(2 * p + b, t)
                if isK:
                    for q in range(2): a(f'v_pk_mul_f32 {R(r+2*q,2)}, {R(r+2*q,2)}, s[26:27]')
                for q in range(2): a(f'v_cvt_pk_bf16_f32 {R(o+2*b+q)}, {R(r+2*q)}, {R(r+2*q+1)}')
            a(f'buffer_store_dwordx4 {R(o,4)}, v2, s[8:11], s24 offen offset:{p*1024} sc1')
        if t < 3: a('s_add_u32 s24, s24, 14336')

def gen_misc(a):
    a('v_and_b32 v1, 63, v0')
    a('v_lshlrev_b32 v2, 4, v1')
    a('v_and_b32 v3, 15, v1')
    a('v_lshrrev_b32 v4, 4, v1')
    a('s_lshl_b32 s20, s12, 2')
    a('s_add_u32 s20, s20, s13')
    srd(a, 44, 0, 2048 * 896)
    srd(a, 48, 88, 896)
    a('v_mul_u32_u24 v5, 896, v3')
    a('v_lshl_add_u32 v5, v4, 4, v5')
    a('v_lshlrev_b32 v6, 4, v4')
    a(f's_mul_i32 s21, s20, {16*896}')
    a('s_waitcnt lgkmcnt(0)')
    XF = 16; GF = 72
    for ks in range(14):
        a(f'buffer_load_dwordx4 {R(XF+4*ks,4)}, v5, s[44:47], s21 offen offset:{ks*64}')
    for ks in range(14):
        a(f'buffer_load_dwordx4 {R(GF+4*ks,4)}, v6, s[48:51], 0 offen offset:{ks*64}')
    for r in range(4): a(f'v_mov_b32 v{128+r}, -1')
    a('s_mul_i32 s22, s20, 3584')
    for base in (MEMNAT, MEMX):
        a(f's_add_u32 s23, s22, {base}')
        for k in range(4):
            a(f'buffer_store_dwordx4 v[128:131], v2, s[8:11], s23 offen offset:{min(k*1024, 2560)} sc1')
    a(f's_add_u32 s22, s21, {XIMG}')
    a('s_waitcnt vmcnt(8)')
    for ks in range(14):
        if ks and ks % 4 == 0: a('s_add_u32 s22, s22, 4096')
        a(f'buffer_store_dwordx4 {R(XF+4*ks,4)}, v2, s[8:11], s22 offen offset:{(ks%4)*1024} sc1')
        a(f'{MF} v[8:11], {R(GF+4*ks,4)}, {R(XF+4*ks,4)}, {"0" if ks == 0 else "v[8:11]"}')
    a(f's_mov_b32 s23, {f2u(-LOG2E)}')
    a('v_mul_f32 v12, s23, v8')
    a('v_exp_f32 v12, v12')
    a('v_add_f32 v12, 1.0, v12')
    a('v_rcp_f32 v12, v12')
    a('v_lshlrev_b32 v13, 2, v3')
    a('s_lshl_b32 s22, s20, 6')
    a(f's_add_u32 s22, s22, {GVEC}')
    a('s_mov_b64 exec, 0xffff')
    a('buffer_store_dword v12, v13, s[8:11], s22 offen sc1')
    a('s_mov_b64 exec, -1')

def raw_lane(a, vdst, vt, stride):
    a(f'v_lshrrev_b32 {vt}, 3, v1')
    a(f'v_mul_u32_u24 {vdst}, {stride}, {vt}')
    a(f'v_xor_b32 {vt}, {vt}, v1')
    a(f'v_and_b32 {vt}, 7, {vt}')
    a(f'v_lshl_add_u32 {vdst}, {vt}, 4, {vdst}')
```

```python
from asmlib import *
from layout import *

NSTEP = 63
SM = 'v_smfmac_f32_16x16x64_bf16'
MF = 'v_mfma_f32_16x16x32_bf16'
DP = 'row_mask:0xf bank_mask:0xf'
sWS = 8; sRole = 12; sWave = 13; sStep = 14; sCur = 15; sNxt = 16; sPrv = 17
sT0 = 18; sT1 = 19; sT2 = 20; sT3 = 21; sSpin = 22; sStr = 23; sVX = 24; sJ = 25
SPIN_MAX = 2000000
MBOX = MEMNAT
sMc = 31
EB = WB
PROG = TBOX + 4 * SLOT - 256
F_CLAIM = FLAGS
F_TBAR = FLAGS + 8 * 256
F_RDY = FLAGS + 9 * 256
F_KV = FLAGS + 4096
F_MIR = F_KV + 64 * 512
F_H = F_MIR + 32 * 512
F_W = F_H + 16 * 256
F_X = F_W + 4096
FLAGS_BYTES = 65536
MEGA = False
sMode = 40; sArr = 41; sRdy = 26; sNeed = 27
L_MODE = 7200
INSTR = False; XST = {0: 10, 12: 11, 14: 12, 41: 13}
STRM_MASK = None; NOSTREAM = 0; NONAT = 0
A_BE = 1; PDEPTH = 3; PSTAG = 1; A_SLEEP = 2
CDEPTH = 3; CSTAG = 1; CMDEPTH = 2; C_SLEEP = 1; CW_SLEEP = 0; C_PF = 0; PFD = 3; SPARE_PF = 0
B2AT = 20; B2A3 = 2; B3A = 43; B3B = 53; NSH = 3; NSH2 = 5; NE = 9; KLD0 = 10; KLDE = 3; XS0 = 4; XCAP = 3; EPOLL = 40; ESTEP = 2; EPOLL2 = 48; CVLD0 = 8; CVLDE = 4
ST = ''

def WREG(t, c):
    i = t * 7 + c
    return 120 + 8 * i if i < 17 else 256 + 8 * (i - 17)

A_MEM = 0; A_XT = 8192; A_SX = 22528; A_Z = 24576; A_FL = 24576; A_ST = 25600; A_KX = 28672
C_MEM = 0; C_X = 8192; C_W = 16384; C_VX = C_W + 4 * 14336
LDS_TEAM = C_VX + 65536

vLane = 1; vL16 = 2; vIdx = 3
vA0 = 4; vA1 = 5; vA2 = 6; vA3 = 7; vA4 = 8; vA5 = 9; vA6 = 10; vA7 = 11
vT0 = 12; vT1 = 13; vT2 = 14; vT3 = 15
vMem = 16; vAcc = 44; vPoll = 56; vBig = 64

def TSI(k): return [f's_memtime s[{44+2*k}:{45+2*k}]'] if INSTR else []
def TS(a, k):
    for i in TSI(k): a(i)
def ts_dump(a):
    if not INSTR: return
    Ls = a.newlabel('TSD')
    a(f's_cmp_lg_u32 {S(sStep)}, 40')
    a(f's_cbranch_scc1 {Ls}')
    a('s_waitcnt lgkmcnt(0)')
    a('s_lshr_b32 s18, s2, 3')
    a('s_lshl_b32 s18, s18, 8')
    a('s_lshl_b32 s19, s13, 6')
    a('s_add_u32 s18, s18, s19')
    a(f's_add_u32 s18, s18, {DBG + 4096}')
    a('s_mov_b64 exec, 1')
    a(f'v_mov_b32 {R(vT0)}, 0')
    for k in range(16):
        a(f'v_mov_b32 {R(vT1)}, s{44+2*k}')
        a(f'buffer_store_dword {R(vT1)}, {R(vT0)}, s[8:11], s18 offen offset:{4*k}')
        a('s_nop 1')
    a('s_waitcnt vmcnt(0)')
    a('s_mov_b64 exec, -1')
    a.label(Ls)

def slots(a, nxt=True):
    a(f's_and_b32 {S(sT0)}, {S(sStep)}, 3')
    a(f's_lshl_b32 {S(sT0)}, {S(sT0)}, 17')
    a(f's_add_u32 {S(sCur)}, {S(sT0)}, {TBOX}')
    a(f's_xor_b32 {S(sPrv)}, {S(sCur)}, {2*SLOT}')
    if nxt:
        a(f's_add_u32 {S(sT0)}, {S(sStep)}, 1')
        a(f's_lshr_b32 {S(sMc)}, {S(sT0)}, 1')
        a(f's_mul_i32 {S(sMc)}, {S(sMc)}, 14336')
        a(f's_and_b32 {S(sT1)}, {S(sT0)}, 1')
        a(f's_lshl_b32 {S(sT1)}, {S(sT1)}, 7')
        a(f's_add_u32 {S(sMc)}, {S(sMc)}, {S(sT1)}')
        a(f's_add_u32 {S(sMc)}, {S(sMc)}, {MBOX}')
        a(f's_and_b32 {S(sT0)}, {S(sT0)}, 3')
        a(f's_lshl_b32 {S(sT0)}, {S(sT0)}, 17')
        a(f's_add_u32 {S(sNxt)}, {S(sT0)}, {TBOX}')

def acc_max(tmp, regs, first):
    regs = list(regs); o = []
    if first:
        o.append(f'v_max3_u32 {R(tmp)}, {R(regs[0])}, {R(regs[1])}, {R(regs[2])}'); regs = regs[3:]
    while regs:
        if len(regs) >= 2:
            o.append(f'v_max3_u32 {R(tmp)}, {R(tmp)}, {R(regs[0])}, {R(regs[1])}'); regs = regs[2:]
        else:
            o.append(f'v_max_u32 {R(tmp)}, {R(tmp)}, {R(regs[0])}'); regs = regs[1:]
    return o

def check_regs(a, base, n, tmp):
    for x in acc_max(tmp, range(base, base + n), True): a(x)
    a(f'v_cmp_eq_u32 vcc, -1, {R(tmp)}')

def spin_guard(a, exit_label):
    a(f's_add_u32 {S(sSpin)}, {S(sSpin)}, 1')
    a(f's_cmp_gt_u32 {S(sSpin)}, {SPIN_MAX}')
    a(f's_cbranch_scc1 {exit_label}')

def zero4(r): return [f'v_mov_b64 {R(r,2)}, 0', f'v_mov_b64 {R(r+2,2)}, 0']

def load_weights(a, tile_off):
    for t in range(7):
        tile_off(t)
        for q in range(4):
            if q: a(f's_add_u32 {S(sT0)}, {S(sT0)}, 4096')
            for k in range(4):
                ks = 4 * q + k
                if ks >= 14: break
                reg = WREG(t, ks // 2) + 4 * (ks % 2)
                a(f'buffer_load_dwordx4 {R(reg,4)}, {R(vL16)}, {S(sWS,4)}, {S(sT0)} offen offset:{k*1024} sc1')

def common_lane_setup(a):
    a(f'v_and_b32 {R(vLane)}, 63, v0')
    a(f'v_lshlrev_b32 {R(vL16)}, 4, {R(vLane)}')
    a(f'v_and_b32 {R(vT0)}, 8, {R(vLane)}')
    a(f'v_cmp_eq_u32 vcc, 0, {R(vT0)}')
    a(f'v_mov_b32 {R(vT1)}, 0xeeee')
    a(f'v_mov_b32 {R(vT2)}, 0x4444')
    a(f'v_cndmask_b32 {R(vIdx)}, {R(vT1)}, {R(vT2)}, vcc')

def team_barrier_old(a, exit_label, n=30, arrive=True):
    a('s_waitcnt vmcnt(0) lgkmcnt(0)')
    a('s_barrier')
    Lw = a.newlabel('TBW'); Ls = a.newlabel('TBS')
    a(f's_cmp_lg_u32 {S(sWave)}, 0')
    a(f's_cbranch_scc1 {Ls}')
    a(f'v_mov_b32 {R(vT0)}, 0')
    a(f'v_mov_b32 {R(vT1)}, 1')
    a('s_mov_b64 exec, 1')
    if arrive: a(f'global_atomic_add {R(vT0)}, {R(vT1)}, s[4:5] offset:128 sc1')
    a.label(Lw)
    a(f'global_load_dword {R(vT2)}, {R(vT0)}, s[4:5] offset:128 sc1')
    spin_guard(a, exit_label)
    a('s_waitcnt vmcnt(0)')
    a(f'v_cmp_gt_u32 vcc, {n}, {R(vT2)}')
    a(f's_cbranch_vccnz {Lw}')
    a('s_mov_b64 exec, -1')
    a.label(Ls)
    a('s_barrier')

def team_barrier(a, exit_label, n=30, arrive=True):
    if not MEGA: return team_barrier_old(a, exit_label, n, arrive)
    a('s_waitcnt vmcnt(0) lgkmcnt(0)')
    a('s_barrier')
    Lw = a.newlabel('TBW'); Ls = a.newlabel('TBS')
    a(f'v_mov_b32 {R(vT0)}, {L_MODE}')
    a(f's_cmp_lg_u32 {S(sWave)}, 0')
    a(f's_cbranch_scc1 {Ls}')
    a(f'v_mov_b32 {R(vT1)}, {S(sArr)}')
    a(f's_mov_b32 {S(sT0)}, {F_TBAR}')
    a('s_mov_b64 exec, 1')
    a(f'buffer_atomic_add {R(vT1)}, off, {S(sWS,4)}, {S(sT0)} sc1')
    a.label(Lw)
    a(f'buffer_load_dword {R(vT2)}, off, {S(sWS,4)}, {S(sT0)} sc1')
    spin_guard(a, exit_label)
    a('s_waitcnt vmcnt(0)')
    a(f'v_and_b32 {R(vT1)}, 0x3f, {R(vT2)}')
    a(f'v_cmp_gt_u32 vcc, 32, {R(vT1)}')
    a(f's_cbranch_vccnz {Lw}')
    a(f'v_bfe_u32 {R(vT1)}, {R(vT2)}, 6, 10')
    a(f'v_mul_u32_u24 {R(vT1)}, {R(vT1)}, {R(vT1)}')
    a(f'v_lshrrev_b32 {R(vT2)}, 16, {R(vT2)}')
    a(f'v_lshlrev_b32 {R(vT2)}, 5, {R(vT2)}')
    a(f'v_sub_u32 {R(vT2)}, {R(vT2)}, {R(vT1)}')
    a(f'ds_write_b32 {R(vT0)}, {R(vT2)}')
    a('s_waitcnt lgkmcnt(0)')
    a('s_mov_b64 exec, -1')
    a.label(Ls)
    a('s_barrier')
    a(f'ds_read_b32 {R(vT1)}, {R(vT0)}')
    a('s_waitcnt lgkmcnt(0)')
    a(f'v_readfirstlane_b32 {S(sMode)}, {R(vT1)}')

def ensure_rdy(a, exit_label, ahead, base=sStep):
    if not MEGA: return
    Lok = a.newlabel('RDO'); Lp = a.newlabel('RDP')
    if base is None: a(f's_mov_b32 {S(sNeed)}, {ahead}')
    else:
        a(f's_add_u32 {S(sNeed)}, {S(base)}, {ahead}')
        a(f's_min_u32 {S(sNeed)}, {S(sNeed)}, 64')
    a(f's_cmp_ge_u32 {S(sRdy)}, {S(sNeed)}')
    a(f's_cbranch_scc1 {Lok}')
    a(f's_mov_b32 {S(sT0)}, {F_RDY}')
    a.label(Lp)
    a(f'buffer_load_dword {R(vT0)}, off, {S(sWS,4)}, {S(sT0)} sc1')
    spin_guard(a, exit_label)
    a('s_waitcnt vmcnt(0)')
    a(f'v_readfirstlane_b32 {S(sRdy)}, {R(vT0)}')
    a(f's_cmp_lt_u32 {S(sRdy)}, {S(sNeed)}')
    a(f's_cbranch_scc1 {Lp}')
    a.label(Lok)

def both_modes(a, body):
    global ST
    if not MEGA:
        body(); return
    Lslow = a.newlabel('SLOW')
    a(f's_cmp_lg_u32 {S(sMode)}, 0')
    a(f's_cbranch_scc1 {Lslow}')
    ST = ''; body()
    a.label(Lslow); a.reset_hist()
    ST = 'sc1'; body(); ST = ''

class Gaps:
    def __init__(self): self.m = {}; self.v = {}
    def nm(self, k): return sum(1 for x in self.m.get(k, []) if not x.startswith('s_') and not x.endswith(':'))
    def fixed(self, k, lst):
        for x in lst:
            (self.v if x.startswith('v_') else self.m).setdefault(k, []).append(x)
    def place(self, lst, start, step=0, cap=1):
        k = start; pend = []; last = start; prevv = False
        for x in lst:
            pend.append(x)
            if x.startswith('s_'): continue
            isv = x.startswith('v_')
            if prevv and k == last and (not isv or len(pend) > 1): k += 1
            while (len(self.v.get(k, [])) if isv else self.nm(k)) >= cap: k += 1
            self.fixed(k, pend); pend = []; last = k; k += step; prevv = isv
        if pend: self.fixed(last + (1 if prevv else 0), pend)
        return last
    def nvm(self, upto):
        return sum(1 for k, v in self.m.items() if k <= upto for x in v if x.startswith('buffer_'))
    def nds_after(self, pat, upto):
        seq = [x for k in sorted(self.m) if k <= upto for x in self.m[k] if x.startswith('ds_')]
        idx = max(i for i, x in enumerate(seq) if pat in x)
        return len(seq) - 1 - idx
    def weave(self, stream, last):
        items = {}
        for kk in sorted(set(self.m) | set(self.v)):
            items.setdefault(min(kk, last), []).extend(self.m.get(kk, []) + self.v.get(kk, []))
        out = []; k = -1; i = 0
        while i < len(stream):
            ins = stream[i]; out.append(ins); i += 1
            if ins.startswith('v_smfmac') or ins.startswith('v_mfma'):
                k += 1
                if k in XST: out.extend(TSI(XST[k]))
                it = items.get(k, [])
                tail = []
                while i < len(stream) and stream[i].startswith('s_'):
                    tail.append(stream[i]); i += 1
                nv = [x for x in it if not x.startswith('v_')] if k < last else it
                vv = [x for x in it if x.startswith('v_')] if k < last else []
                out.extend(nv + tail + vv)
        return out

def first_waits(stream):
    out = []; k = 0
    for ins in stream:
        if ins.startswith(SM) and k < 7:
            out.append(f's_waitcnt lgkmcnt({6-k})'); k += 1
        out.append(ins)
    return out

def mem_frag_reads(a):
    for c in range(7):
        a(f'ds_read_b128 {R(vMem+4*c,4)}, {R(vL16)} offset:{c*1024}')

def step_end(a, Lloop):
    TS(a, 15)
    if INSTR: a('s_memrealtime s[72:73]')
    ts_dump(a)
    a(f's_add_u32 {S(sStep)}, {S(sStep)}, 1')
    a(f's_cmp_lt_u32 {S(sStep)}, {NSTEP}')
    a(f's_cbranch_scc1 {Lloop}')

CH = [[0, 1], [2, 3], [4, 5], [6, 0]]
def poll_mem(a, chunks, exit_label, pre=None):
    L = a.newlabel('PM')
    n = len(chunks)
    def rnd():
        for i, c in enumerate(chunks):
            if c < 4:
                a(f'buffer_load_dwordx4 {R(vMem+4*c,4)}, {R(vL16)}, {S(sWS,4)}, {S(sCur)} offen offset:{c*1024} sc1')
            else:
                a(f'buffer_load_dwordx4 {R(vMem+4*c,4)}, {R(vA7)}, {S(sWS,4)}, {S(sCur)} offen offset:{(c-4)*1024} sc1')
    a('s_waitcnt vmcnt(0)')
    for x in (pre or []): a(x)
    if A_BE: a('s_barrier')
    if A_SLEEP: a(f's_sleep {A_SLEEP}')
    TS(a, 0)
    for d in range(PDEPTH - 1):
        rnd()
        if PSTAG: a(f's_sleep {PSTAG}')
    a('s_waitcnt lgkmcnt(0)')
    a.label(L)
    rnd()
    spin_guard(a, exit_label)
    for i, c in enumerate(chunks):
        a(f's_waitcnt vmcnt({n*(PDEPTH-1) + n-1-i})')
        for x in acc_max(vT0, range(vMem+4*c, vMem+4*c+4), i == 0): a(x)
    a(f'v_cmp_eq_u32 vcc, -1, {R(vT0)}')
    a(f's_cbranch_vccnz {L}')
    TS(a, 2)
    if INSTR: a(f's_mov_b32 s46, {S(sSpin)}')

def kdma(kt):
    out = []
    for q in range(4):
        out += [f's_add_u32 {S(sT0)}, {S(sStr)}, {kt*14336 + q*4096}', f's_mov_b32 m0, {A_KX + kt*14336 + q*4096}']
        for k in range(4):
            if 4 * q + k < 14:
                out.append(f'buffer_load_dwordx4 {R(vL16)}, {S(sWS,4)}, {S(sT0)} offen offset:{k*1024} sc1 lds')
    return out

def tprime_write(acc, t):
    return [f'v_cvt_pk_bf16_f32 {R(vT0)}, {R(acc)}, {R(acc+1)}',
            f'v_cvt_pk_bf16_f32 {R(vT1)}, {R(acc+2)}, {R(acc+3)}',
            f'ds_write_b64 {R(vA0)}, {R(vT0,2)} offset:{A_XT + t*2048}']
def tpm(accs, t, c):
    return f'{SM} {R(accs[t],4)}, {R(vMem+4*c,4)}, {R(WREG(t,c),8)}, {R(vIdx)}'
def early_part(gp, accs, own, ne, wr_own=None):
    first = [(t, c) for c in own for t in range(7)][:ne]
    G = [tpm(accs, t, c) for t, c in first]
    for i, c in enumerate(wr_own or own):
        gp.fixed(i, [f'ds_write_b128 {R(vL16)}, {R(vMem+4*c,4)} offset:{c*1024}'])
    oth = [c for c in range(7) if c not in own]
    gp.fixed(B1AT, ['s_waitcnt lgkmcnt(0)', 's_barrier'] + TSI(3))
    gp.place([f'ds_read_b128 {R(vMem+4*c,4)}, {R(vL16)} offset:{c*1024}' for c in oth], B1AT, cap=2)
    rest = [[c for c in own + oth if (t, c) not in first] for t in range(7)]
    return G, rest
vTag = 0; vFlA = vA6
def flagw(t): return f'ds_write_b32 {R(vFlA)}, {R(vTag)} offset:{A_FL + t*16}'
def late_part(gp, accs, rest, base, flags=True, flex=False):
    G = []; wr = []
    for t in range(7):
        G += [tpm(accs, t, c) for c in rest[t]]
        e = base + len(G) - 1
        p = tprime_write(accs[t], t) + ([flagw(t)] if flags else [])
        if flex:
            wr.append(gp.place(p, max(e + 3, wr[-1] if wr else 0), cap=FLEXCAP, step=1))
        else:
            for i, x in enumerate(p): gp.fixed(e + 3 + i, [x])
            wr.append(e + 3 + len(p) - 1)
    return G, wr
B1AT = 4

def row_map(a, row, key, tmp):
    a(f'v_bfe_u32 {R(row)}, {R(vLane)}, 4, 1')
    a(f'v_lshlrev_b32 {R(row)}, 2, {R(row)}')
    a(f'v_bfe_u32 {R(tmp)}, {R(vLane)}, 5, 1')
    a(f'v_lshl_add_u32 {R(row)}, {R(tmp)}, 1, {R(row)}')
    a(f'v_bfe_u32 {R(tmp)}, {R(vLane)}, 3, 1')
    a(f'v_add_u32 {R(row)}, {R(row)}, {R(tmp)}')
    a(f'v_and_b32 {R(key)}, 7, {R(vLane)}')

def gen_A(a, EXIT, stamp=None):
    common_lane_setup(a)
    a(f'v_add_u32 {R(vA7)}, 4096, {R(vL16)}')
    n, g = vT0, vT1
    a(f'v_and_b32 {R(n)}, 15, {R(vLane)}')
    a(f'v_lshrrev_b32 {R(g)}, 4, {R(vLane)}')
    a(f'v_lshrrev_b32 {R(vT2)}, 2, {R(n)}')
    a(f'v_xor_b32 {R(vT3)}, {R(g)}, {R(vT2)}')
    a(f'v_and_b32 {R(vA0)}, 3, {R(n)}')
    a(f'v_lshl_add_u32 {R(vA0)}, {R(vA0)}, 2, {R(vT3)}')
    a(f'v_and_b32 {R(vT3)}, 1, {R(vT2)}')
    a(f's_and_b32 {S(sT0)}, {S(sWave)}, 1')
    a(f'v_xor_b32 {R(vT3)}, {S(sT0)}, {R(vT3)}')
    a(f'v_lshl_add_u32 {R(vA0)}, {R(vT3)}, 4, {R(vA0)}')
    a(f'v_lshlrev_b32 {R(vA0)}, 3, {R(vA0)}')
    a(f'v_lshl_add_u32 {R(vA0)}, {R(vT2)}, 8, {R(vA0)}')
    a(f's_lshr_b32 {S(sT0)}, {S(sWave)}, 1')
    a(f's_lshl_b32 {S(sT0)}, {S(sT0)}, 10')
    a(f'v_add_u32 {R(vA0)}, {S(sT0)}, {R(vA0)}')
    a(f'v_and_b32 {R(vT2)}, 3, {R(n)}')
    a(f'v_xor_b32 {R(vT2)}, {R(vT2)}, {R(g)}')
    a(f'v_and_b32 {R(vT3)}, 12, {R(n)}')
    a(f'v_add_u32 {R(vT2)}, {R(vT2)}, {R(vT3)}')
    a(f'v_and_b32 {R(vT3)}, 1, {R(g)}')
    a(f'v_lshl_add_u32 {R(vT2)}, {R(vT3)}, 4, {R(vT2)}')
    a(f'v_lshlrev_b32 {R(vT2)}, 3, {R(vT2)}')
    a(f'v_lshl_add_u32 {R(vA1)}, {R(g)}, 8, {R(vT2)}')
    a(f'v_xor_b32 {R(vA2)}, 128, {R(vA1)}')
    for z in zero4(vAcc): a(z)
    a(f'ds_write_b128 {R(vL16)}, {R(vAcc,4)} offset:{A_Z}')
    def toff(t):
        a(f's_mul_i32 {S(sT0)}, {S(sRole)}, {MAT}')
        a(f's_mul_i32 {S(sT1)}, {S(sWave)}, 14336')
        a(f's_add_u32 {S(sT0)}, {S(sT0)}, {S(sT1)}')
        a(f's_add_u32 {S(sT0)}, {S(sT0)}, {WIMG + t*4*14336}')
    load_weights(a, toff)
    a(f's_mov_b32 {S(sSpin)}, 0')
    a(f's_mul_i32 {S(sT0)}, {S(sRole)}, 28672')
    a(f's_add_u32 {S(sStr)}, {S(sT0)}, {KIMG}')
    LW = [a.newlabel('AW') for _ in range(4)]
    for w in (1, 2, 3):
        a(f's_cmp_eq_u32 {S(sWave)}, {w}')
        a(f's_cbranch_scc1 {LW[w]}')
    for w in range(4):
        a.label(LW[w]); a.reset_hist()
        gen_A_wave(a, w, EXIT, stamp)

def gen_A_wave(a, w, EXIT, stamp):
    post = []
    row, key = vT2, vT3
    M1 = vAcc + 10
    if w == 0:
        row_map(a, row, key, vT0)
        a(f'v_lshlrev_b32 {R(vA5)}, 3, {R(row)}')
        a(f'v_and_b32 {R(vT0)}, 1, {R(key)}')
        a(f'v_cmp_eq_u32 s[36:37], 0, {R(vT0)}')
        a(f'v_lshlrev_b32 {R(vA4)}, 11, {R(vT0)}')
        a(f'v_lshl_add_u32 {R(vA4)}, {R(row)}, 4, {R(vA4)}')
        a(f'v_lshrrev_b32 {R(vT1)}, 1, {R(key)}')
        a(f'v_lshl_add_u32 {R(vA4)}, {R(vT1)}, 2, {R(vA4)}')
        a(f's_lshl_b32 {S(sT0)}, {S(sRole)}, 7')
        a(f's_add_u32 {S(sT0)}, {S(sT0)}, {PB}')
        a(f'v_add_u32 {R(vA4)}, {S(sT0)}, {R(vA4)}')
        a(f'v_add_u32 {R(vT0)}, 1, {R(row)}')
        a(f'v_cmp_eq_u32 s[38:39], {R(vT0)}, {R(key)}')
        a(f'v_cmp_eq_u32 s[42:43], {R(row)}, {R(key)}')
        a(f's_andn2_b64 s[38:39], s[38:39], s[36:37]')
        a(f's_andn2_b64 s[42:43], s[42:43], s[36:37]')
        a(f'v_mov_b32 {R(M1)}, -1')
        for sl in range(4):
            a(f's_mov_b32 {S(sT0)}, {TBOX + sl*SLOT}')
            a(f'buffer_store_dword {R(M1)}, {R(vA4)}, {S(sWS,4)}, {S(sT0)} offen sc1')
    elif w == 3:
        a(f'v_lshrrev_b32 {R(row)}, 3, {R(vLane)}')
        a(f'v_and_b32 {R(key)}, 7, {R(vLane)}')
        a(f'v_lshrrev_b32 {R(vA1)}, 2, {R(row)}')
        a(f'v_lshlrev_b32 {R(vA1)}, 8, {R(vA1)}')
        a(f'v_and_b32 {R(vT0)}, 3, {R(key)}')
        a(f'v_lshl_add_u32 {R(vA1)}, {R(vT0)}, 6, {R(vA1)}')
        a(f'v_lshrrev_b32 {R(vT0)}, 2, {R(key)}')
        a(f'v_lshl_add_u32 {R(vA1)}, {R(vT0)}, 4, {R(vA1)}')
        a(f'v_and_b32 {R(vA2)}, 3, {R(row)}')
        a(f'v_lshl_add_u32 {R(vA1)}, {R(vA2)}, 2, {R(vA1)}')
        a(f'v_add_u32 {R(vA1)}, {A_SX}, {R(vA1)}')
        a(f'v_add_u32 {R(vA2)}, 1024, {R(vA1)}')
        a(f'v_lshlrev_b32 {R(vA5)}, 3, {R(row)}')
        a(f'v_mov_b32 {R(vA3)}, 0')
        a(f's_lshr_b32 {S(sT0)}, {S(sRole)}, 2')
        a(f's_lshl_b32 {S(sT0)}, {S(sT0)}, 11')
        a(f's_and_b32 {S(sT1)}, {S(sRole)}, 1')
        a(f's_lshl_b32 {S(sT1)}, {S(sT1)}, 10')
        a(f's_add_u32 {S(sT0)}, {S(sT0)}, {S(sT1)}')
        a(f's_and_b32 {S(sT1)}, {S(sRole)}, 2')
        a(f's_lshl_b32 {S(sT1)}, {S(sT1)}, 6')
        a(f's_add_u32 {S(sT0)}, {S(sT0)}, {S(sT1)}')
        a(f's_add_u32 {S(sT0)}, {S(sT0)}, {EB}')
        a(f'v_lshrrev_b32 {R(vT0)}, 1, {R(key)}')
        a(f'v_lshl_add_u32 {R(vA4)}, {R(vT0)}, 8, {S(sT0)}')
        a(f'v_lshl_add_u32 {R(vA4)}, {R(row)}, 4, {R(vA4)}')
        a(f'v_and_b32 {R(vT0)}, 1, {R(key)}')
        a(f'v_lshl_add_u32 {R(vA4)}, {R(vT0)}, 3, {R(vA4)}')
        a(f'v_mov_b32 {R(M1)}, -1')
        a(f'v_mov_b32 {R(M1+1)}, -1')
        for sl in range(4):
            a(f's_mov_b32 {S(sT0)}, {TBOX + sl*SLOT}')
            a(f'buffer_store_dwordx2 {R(M1,2)}, {R(vA4)}, {S(sWS,4)}, {S(sT0)} offen sc1')
    else:
        a(f'v_add_u32 {R(vA1)}, {A_KX + (w-1)*14336}, {R(vL16)}')
        ensure_rdy(a, EXIT, 1, None)
        for i in kdma(w - 1): a(i)
    a(f'v_mov_b32 {R(vFlA)}, {4*w}')
    a(f'v_mov_b32 {R(vTag)}, 0')
    team_barrier(a, EXIT)
    both_modes(a, lambda: gen_A_loop(a, w, EXIT, stamp))

def gen_A_loop(a, w, EXIT, stamp):
    post = []
    M1 = vAcc + 10
    a(f's_mov_b32 {S(sStep)}, 0')
    if stamp: stamp(a, 0)
    L = a.newlabel('ALOOP')
    a.label(L); a.reset_hist()
    slots(a, False)
    a(f'v_add_u32 {R(vTag)}, 1, {R(vTag)}')
    a(f's_mov_b32 {S(sSpin)}, 0')
    pre_poll = None
    KF = [76 + 8 * i for i in range(5)] + [76, 84]
    if w == 0:
        accs = [vBig, vBig + 4, vBig + 8, vBig + 12, vBig + 44, vBig + 48, vBig + 52]
        pz = accs + [vAcc]
        a(f'buffer_store_dword {R(M1)}, {R(vA4)}, {S(sWS,4)}, {S(sPrv)} offen {ST}')
    elif w == 3:
        accs = [vBig + 4 * i for i in range(7)]
        pz = accs
        a(f'buffer_store_dwordx2 {R(M1,2)}, {R(vA4)}, {S(sWS,4)}, {S(sPrv)} offen {ST}')
    else:
        if STRM_MASK is None: a(f's_add_u32 {S(sStr)}, {S(sStr)}, {16*28672}')
        ensure_rdy(a, EXIT, 2)
        accs = [44 + 4 * i for i in range(7)]
        SX = 72
        pz = accs + [SX]
        kord = CH[w] + [c for c in range(7) if c not in CH[w]]
        def kread(i):
            return [f'ds_read_b128 {R(KF[i]+4*hh,4)}, {R(vA1)} offset:{(2*kord[i]+hh)*1024}' for hh in range(2)]
        pre_poll = [x for i in range(5) for x in kread(i)]
    for x in pz:
        for z in zero4(x): a(z)
    poll_mem(a, CH[w], EXIT, pre_poll)
    gp = Gaps()
    XTW = lambda t: f'ds_write_b64 {R(vA0)}, {R(vT0,2)} offset:{A_XT + t*2048}'
    ne = NE if w in (1, 2) else NE + 2
    G1, rest = early_part(gp, accs, CH[w], ne, [6] if w == 3 else None)
    if w == 0:
        def trr(c):
            b = vBig + 8 * c
            return [f'ds_read_b64_tr_b16 {R(b,2)}, {R(vA1)} offset:{A_XT + c*2048}',
                    f'ds_read_b64_tr_b16 {R(b+2,2)}, {R(vA2)} offset:{A_XT + c*2048}',
                    f'ds_read_b64_tr_b16 {R(b+4,2)}, {R(vA1)} offset:{A_XT + c*2048 + 1024}',
                    f'ds_read_b64_tr_b16 {R(b+6,2)}, {R(vA2)} offset:{A_XT + c*2048 + 1024}']
        def smm(c): return f'{SM} {R(vAcc,4)}, {R(vMem+4*c,4)}, {R(vBig+8*c,8)}, {R(vIdx)}'
        G2, wr = late_part(gp, accs, rest, ne, flags=False)
        FR = [vPoll, vPoll + 4]; vOk = vA3; OK = [vAcc + 6, vAcc + 7, vAcc + 8, vAcc + 9]
        def flr(c): return f'ds_read_b128 {R(FR[c%2],4)}, {R(vFlA)} offset:{A_FL + c*16}'
        def flc(c, dst):
            f = FR[c % 2]
            return f'v_min3_u32 {R(dst)}, {R(f+1)}, {R(f+2)}, {R(f+3)}'
        for c in range(NSH):
            k = gp.place([flr(c)] + trr(c), SPEC[c])
            kk = k + 1
            gp.fixed(kk, [f's_waitcnt lgkmcnt({gp.nds_after(flr(c), kk)})'])
            gp.place([flc(c, OK[c])], kk)
        G = G1 + ['s_waitcnt lgkmcnt(0)'] + G2
        for i in gp.weave(G, 48): a(i)
        TS(a, 4)
        mx = vAcc + 4; lx = vAcc + 5
        def spin_chunk(c, extra=[], do=True):
            Ls = a.newlabel('SPC')
            a.label(Ls)
            a(flr(c))
            for i in trr(c) + extra: a(i)
            spin_guard(a, EXIT)
            a(f's_waitcnt lgkmcnt({4 + len(extra)})')
            a(flc(c, vOk))
            a(f'v_cmp_lt_u32 vcc, {R(vOk)}, {R(vTag)}')
            a(f's_cbranch_vccnz {Ls}')
            a('s_waitcnt lgkmcnt(0)')
            if do: a(smm(c))
        a(f'v_min3_u32 {R(vOk)}, {R(OK[0])}, {R(OK[1])}, {R(OK[NSH-1])}')
        assert NSH == 3
        a(f'v_cmp_lt_u32 vcc, {R(vOk)}, {R(vTag)}')
        Lsl = a.newlabel('SSL'); Lbk = a.newlabel('SBK')
        a(f's_cbranch_vccnz {Lsl}')
        a.label(Lbk)
        a('s_waitcnt lgkmcnt(1)')
        L34 = a.newlabel('S34'); L34b = a.newlabel('S34B')
        r34 = [flr(4)] + trr(3) + trr(4)
        a(smm(0))
        for x in r34[:3]: a(x)
        a(smm(1))
        for x in r34[3:6]: a(x)
        a(smm(2))
        for x in r34[6:]: a(x)
        a.label(L34b)
        a('s_waitcnt lgkmcnt(8)')
        a(flc(4, vOk))
        a(f'v_cmp_lt_u32 vcc, {R(vOk)}, {R(vTag)}')
        a(f's_cbranch_vccnz {L34}')
        r5 = [flr(5)] + trr(5)
        for x in r5: a(x)
        a('s_waitcnt lgkmcnt(9)')
        a(smm(3))
        a('s_waitcnt lgkmcnt(5)')
        a(smm(4))
        L5 = a.newlabel('S5'); L5b = a.newlabel('S5B')
        a.label(L5b)
        a('s_waitcnt lgkmcnt(4)')
        a(flc(5, vOk))
        a(f'v_cmp_lt_u32 vcc, {R(vOk)}, {R(vTag)}')
        a(f's_cbranch_vccnz {L5}')
        r6 = [flr(6)] + trr(6) + [f'ds_read_b64 {R(mx,2)}, {R(vA5)} offset:{A_ST}']
        TS(a, 8)
        for x in r6: a(x)
        a('s_waitcnt lgkmcnt(6)')
        a(smm(5))
        L6 = a.newlabel('S6'); L6b = a.newlabel('S6B')
        a.label(L6b)
        a('s_waitcnt lgkmcnt(5)')
        a(flc(6, vOk))
        a(f'v_cmp_lt_u32 vcc, {R(vOk)}, {R(vTag)}')
        a(f's_cbranch_vccnz {L6}')
        a('s_waitcnt lgkmcnt(1)')
        a(smm(6))
        a('s_waitcnt lgkmcnt(0)')
        def retry(Lx, Lb, rs):
            def f():
                a.label(Lx); a.reset_hist()
                for x in rs: a(x)
                spin_guard(a, EXIT)
                a(f's_branch {Lb}')
            return f
        post.extend([retry(L34, L34b, r34), retry(L5, L5b, r5), retry(L6, L6b, r6)])
        def slow0():
            a.label(Lsl); a.reset_hist()
            Ls = a.newlabel('SPS')
            a.label(Ls)
            a(flr(NSH - 1))
            spin_guard(a, EXIT)
            a('s_waitcnt lgkmcnt(0)')
            a(flc(NSH - 1, vOk))
            a(f'v_cmp_lt_u32 vcc, {R(vOk)}, {R(vTag)}')
            a(f's_cbranch_vccnz {Ls}')
            if INSTR: a(f's_add_u32 {S(sSpin)}, {S(sSpin)}, 100')
            for c in range(NSH):
                for i in trr(c): a(i)
            a('s_waitcnt lgkmcnt(0)')
            a(f's_branch {Lbk}')
        post.append(slow0)
        TS(a, 9)
        if INSTR: a(f's_mov_b32 s54, {S(sSpin)}')
        D0 = vAcc
        z = vT0; t = vT1; sx = vT2; e = vT3; nlo = vAcc + 6; nhi = vAcc + 7; en = vAcc + 8
        a(f'v_permlane32_swap_b32 {R(D0)}, {R(D0+2)}')
        a(f'v_permlane32_swap_b32 {R(D0+1)}, {R(D0+3)}')
        a(f'v_add_f32 {R(D0)}, {R(D0)}, {R(D0+2)}')
        a(f'v_add_f32 {R(D0+1)}, {R(D0+1)}, {R(D0+3)}')
        a(f'v_add_f32_dpp {R(z)}, {R(D0)}, {R(D0)} row_ror:8 row_mask:0xf bank_mask:0x3')
        a(f'v_add_f32_dpp {R(z)}, {R(D0+1)}, {R(D0+1)} row_ror:8 row_mask:0xf bank_mask:0xc')
        a(f'v_max_f32 {R(t)}, {R(z)}, {R(mx)}')
        a(f'v_max_f32_dpp {R(t)}, {R(t)}, {R(t)} quad_perm:[1,0,3,2] {DP}')
        a(f'v_max_f32_dpp {R(t)}, {R(t)}, {R(t)} quad_perm:[2,3,0,1] {DP}')
        a(f'v_max_f32_dpp {R(t)}, {R(t)}, {R(t)} row_half_mirror {DP}')
        a(f'v_sub_f32 {R(e)}, {R(z)}, {R(t)}')
        a(f'v_sub_f32 {R(sx)}, {R(mx)}, {R(t)}')
        a(f'v_exp_f32 {R(e)}, {R(e)}')
        a(f'v_exp_f32 {R(sx)}, {R(sx)}')
        a(f'v_mov_b32_dpp {R(en)}, {R(e)} quad_perm:[1,0,3,2] {DP}')
        a(f'v_cndmask_b32 {R(nlo)}, 0, {R(sx)}, s[38:39]')
        a(f'v_add_f32 {R(t)}, {R(e)}, {R(en)}')
        a(f'v_cndmask_b32 {R(nhi)}, 0, {R(sx)}, s[42:43]')
        a(f'v_cndmask_b32 {R(nlo)}, {R(nlo)}, {R(e)}, s[36:37]')
        a(f'v_add_f32_dpp {R(t)}, {R(t)}, {R(t)} quad_perm:[2,3,0,1] {DP}')
        a(f'v_cndmask_b32 {R(nhi)}, {R(nhi)}, {R(en)}, s[36:37]')
        a(f'v_add_f32_dpp {R(t)}, {R(t)}, {R(t)} row_half_mirror {DP}')
        a(f'v_fma_f32 {R(t)}, {R(lx)}, {R(sx)}, {R(t)}')
        a(f'v_rcp_f32 {R(t)}, {R(t)}')
        a(f'v_mul_f32 {R(nlo)}, {R(nlo)}, {R(t)}')
        a(f'v_mul_f32 {R(nhi)}, {R(nhi)}, {R(t)}')
        a(f'v_cvt_pk_bf16_f32 {R(nlo)}, {R(nlo)}, {R(nhi)}')
        a(f'v_min_u32 {R(nlo)}, -2, {R(nlo)}')
        a(f'buffer_store_dword {R(nlo)}, {R(vA4)}, {S(sWS,4)}, {S(sCur)} offen {ST}')
    elif w == 3:
        sx0 = vBig + 32
        s0, s1, s2, s3 = sx0, sx0 + 1, sx0 + 2, sx0 + 3
        m = vAcc; l = vAcc + 1; q = vAcc + 2
        F2 = vPoll
        sxr = [f'ds_read_b128 {R(F2,4)}, {R(vA3)} offset:{A_FL + 7*16}',
               f'ds_read2_b32 {R(sx0,2)}, {R(vA1)} offset0:0 offset1:8',
               f'ds_read2_b32 {R(sx0+4,2)}, {R(vA1)} offset0:128 offset1:136',
               f'ds_read2_b32 {R(sx0+2,2)}, {R(vA2)} offset0:0 offset1:8',
               f'ds_read2_b32 {R(sx0+6,2)}, {R(vA2)} offset0:128 offset1:136']
        k = gp.place(sxr, SXAT, cap=3)
        chk = [f'v_min_u32 {R(F2)}, {R(F2+1)}, {R(F2+2)}', f'v_cmp_lt_u32 vcc, {R(F2)}, {R(vTag)}']
        ops = [f'v_add_f32 {R(x)}, {R(x)}, {R(x+4)}' for x in (s0, s1, s2, s3)]
        ops += [f'v_max3_f32 {R(m)}, {R(s0)}, {R(s1)}, {R(s2)}', f'v_max_f32 {R(m)}, {R(m)}, {R(s3)}',
               f'v_max_f32_dpp {R(m)}, {R(m)}, {R(m)} quad_perm:[1,0,3,2] {DP}',
               f'v_max_f32_dpp {R(m)}, {R(m)}, {R(m)} quad_perm:[2,3,0,1] {DP}',
               f'v_max_f32_dpp {R(m)}, {R(m)}, {R(m)} row_half_mirror {DP}']
        ops += [f'v_sub_f32 {R(x)}, {R(x)}, {R(m)}' for x in (s0, s2, s1, s3)]
        ops += [f'v_exp_f32 {R(x)}, {R(x)}' for x in (s0, s2, s1, s3)]
        ops += [f'v_cvt_pk_bf16_f32 {R(q)}, {R(s0)}, {R(s2)}', f'v_cvt_pk_bf16_f32 {R(q+1)}, {R(s1)}, {R(s3)}',
               f'v_min_u32 {R(q)}, -2, {R(q)}', f'v_min_u32 {R(q+1)}, -2, {R(q+1)}',
               f'buffer_store_dwordx2 {R(q,2)}, {R(vA4)}, {S(sWS,4)}, {S(sCur)} offen {ST}'] + TSI(9)
        k0 = k + XS0
        Lsl = a.newlabel('SXS'); Lbk = a.newlabel('SXB')
        gp.fixed(k0 - 1, ['s_waitcnt lgkmcnt(@)'] + chk)
        gp.fixed(k0, [f's_cbranch_vccnz {Lsl}', Lbk + ':'])
        k = gp.place(ops[:6], k0, cap=XCAP)
        k = gp.place(ops[6:9], k + 1, cap=XCAP, step=1)
        k = gp.place(ops[9:], k, cap=XCAP)
        ops2 = [f'v_add_f32 {R(s0)}, {R(s0)}, {R(s2)}', f'v_add_f32 {R(l)}, {R(s1)}, {R(s3)}', f'v_add_f32 {R(l)}, {R(l)}, {R(s0)}',
                f'v_add_f32_dpp {R(l)}, {R(l)}, {R(l)} quad_perm:[1,0,3,2] {DP}',
                f'v_add_f32_dpp {R(l)}, {R(l)}, {R(l)} quad_perm:[2,3,0,1] {DP}',
                f'v_add_f32_dpp {R(l)}, {R(l)}, {R(l)} row_half_mirror {DP}',
                f'ds_write_b64 {R(vA5)}, {R(m,2)} offset:{A_ST}']
        print('E store at', k)
        G2, wr = late_part(gp, accs, rest, ne, flex=True)
        print('wave3 flags', wr)
        gp.m[k0 - 1].remove('s_waitcnt lgkmcnt(@)')
        gp.m[k0 - 1].insert(0, f's_waitcnt lgkmcnt({gp.nds_after("ds_read2", k0 - 2)})')
        kst = gp.place(ops2, k + 1, cap=2, step=1)
        assert kst < wr[6], kst
        for i in gp.weave(G1 + ['s_waitcnt lgkmcnt(0)'] + G2, 48): a(i)
        TS(a, 4)
        def slow3():
            a.label(Lsl); a.reset_hist()
            for x in sxr: a(x)
            spin_guard(a, EXIT)
            a('s_waitcnt lgkmcnt(0)')
            for x in chk: a(x)
            a(f's_cbranch_vccnz {Lsl}')
            a(f's_branch {Lbk}')
        post.append(slow3)
        if SPARE_PF:
            Ls = a.newlabel('NPG')
            a(f's_cmp_lg_u32 {S(sRole)}, 0')
            a(f's_cbranch_scc1 {Ls}')
            a(f'v_mov_b32 {R(vT0)}, {S(sStep)}')
            a(f'v_mov_b32 {R(vT1)}, 0')
            a(f's_mov_b32 {S(sT0)}, {PROG}')
            a(f'buffer_store_dword {R(vT0)}, {R(vT1)}, {S(sWS,4)}, {S(sT0)} offen {ST}')
            a.label(Ls)
    else:
        def sxm(i): return f'{SM} {R(SX,4)}, {R(vMem+4*kord[i],4)}, {R(KF[i],8)}, {R(vIdx)}'
        G0 = [sxm(0), sxm(1)] + G1 + ['s_waitcnt lgkmcnt(0)'] + [sxm(i) for i in range(2, 7)]
        gp.place(kread(5) + kread(6), B1AT + 2, cap=2)
        ksx = 2 + NE + 4
        G2, wr = late_part(gp, accs, rest, NE + 7)
        if w == 1: print('tile flags at', wr)
        gp.fixed(ksx + 3, [f'ds_write_b128 {R(vL16)}, {R(SX,4)} offset:{A_SX + (w-1)*1024}'])
        gp.fixed(ksx + 3, [flagw(7)])
        if not NOSTREAM: gp.place(kdma(w - 1), KLD0 + (w - 1) * (KLDE // 2), step=KLDE)
        for i in gp.weave(G0 + G2, 55): a(i)
        TS(a, 7)
    step_end(a, L)
    if stamp: stamp(a, 1)
    a(f's_branch {EXIT}')
    for f in post: f()
SPEC = [32, 38, 43]; SXAT = 23; FLEXCAP = 2

HL = [0, 2, 1, 3, 4, 6, 5, 7]
def cvdma():
    out = []
    for q in range(2):
        out += [f's_add_u32 {S(sT0)}, {S(sStr)}, {q*4096}', f's_add_u32 m0, {S(sVX)}, {q*4096}']
        out += [f'buffer_load_dwordx4 {R(vL16)}, {S(sWS,4)}, {S(sT0)} offen offset:{k*1024} sc1 lds' for k in range(4)]
    return out

def gen_C(a, EXIT, stamp=None):
    common_lane_setup(a)
    n, g = vT0, vT1
    a(f's_and_b32 {S(sT0)}, {S(sWave)}, 1')
    a(f's_lshl_b32 {S(sJ)}, {S(sRole)}, 1')
    a(f's_add_u32 {S(sJ)}, {S(sJ)}, {S(sT0)}')
    a(f'v_and_b32 {R(n)}, 15, {R(vLane)}')
    a(f'v_lshrrev_b32 {R(g)}, 4, {R(vLane)}')
    a(f'v_and_b32 {R(vT2)}, 1, {R(g)}')
    a(f'v_lshlrev_b32 {R(vT2)}, 2, {R(vT2)}')
    a(f'v_and_b32 {R(vT3)}, 2, {R(g)}')
    a(f'v_add_u32 {R(vT2)}, {R(vT2)}, {R(vT3)}')
    a(f'v_and_b32 {R(vT3)}, 1, {R(n)}')
    a(f'v_cmp_eq_u32 s[36:37], 0, {R(vT3)}')
    a(f'v_add_u32 {R(vT2)}, {R(vT2)}, {R(vT3)}')
    a(f'v_bfe_u32 {R(vT3)}, {R(n)}, 1, 1')
    a(f'v_lshl_add_u32 {R(vA0)}, {R(vT3)}, 3, {R(vT2)}')
    a(f'v_lshlrev_b32 {R(vA0)}, 4, {R(vA0)}')
    a(f'v_and_b32 {R(vT3)}, 12, {R(n)}')
    a(f'v_add_u32 {R(vA0)}, {R(vA0)}, {R(vT3)}')
    a(f's_lshl_b32 {S(sT0)}, {S(sJ)}, 8')
    a(f'v_add_u32 {R(vA0)}, {S(sT0)}, {R(vA0)}')
    a(f'v_mul_u32_u24 {R(vA1)}, 896, {R(vT2)}')
    a(f'v_and_b32 {R(vT3)}, 14, {R(n)}')
    a(f'v_lshl_add_u32 {R(vA1)}, {R(vT3)}, 1, {R(vA1)}')
    a(f's_lshl_b32 {S(sT0)}, {S(sJ)}, 5')
    a(f'v_add_u32 {R(vA1)}, {S(sT0)}, {R(vA1)}')
    a(f's_lshr_b32 {S(sT0)}, {S(sWave)}, 1')
    a(f's_lshl_b32 {S(sT0)}, {S(sT0)}, 12')
    a(f's_add_u32 {S(sT0)}, {S(sT0)}, {EB}')
    a(f'v_add_u32 {R(vA2)}, {S(sT0)}, {R(vL16)}')
    a(f'v_add_u32 {R(vA3)}, {PB}, {R(vL16)}')
    a(f's_mul_i32 {S(sT0)}, {S(sWave)}, 14336')
    a(f's_add_u32 {S(sT0)}, {S(sT0)}, {C_W}')
    a(f'v_add_u32 {R(vA5)}, {S(sT0)}, {R(vL16)}')
    a(f's_mov_b32 m0, {S(sT0)}')
    a(f's_and_b32 {S(sT0)}, {S(sWave)}, 1')
    a(f's_lshl_b32 {S(sT0)}, {S(sT0)}, 12')
    a(f's_add_u32 {S(sT0)}, {S(sT0)}, {C_X}')
    a(f'v_add_u32 {R(vA6)}, {S(sT0)}, {R(vL16)}')
    def toff(hl):
        a(f's_lshr_b32 {S(sT0)}, {S(sWave)}, 1')
        a(f's_lshl_b32 {S(sT0)}, {S(sT0)}, 3')
        a(f's_add_u32 {S(sT0)}, {S(sT0)}, {16 + hl}')
        a(f's_mul_i32 {S(sT0)}, {S(sT0)}, {MAT}')
        a(f's_mul_i32 {S(sT1)}, {S(sJ)}, 14336')
        a(f's_add_u32 {S(sT0)}, {S(sT0)}, {S(sT1)}')
    toff(HL[0])
    for q in range(4):
        for k in range(4):
            if 4 * q + k < 14:
                a(f'buffer_load_dwordx4 {R(vL16)}, {S(sWS,4)}, {S(sT0)} offen offset:{k*1024} sc1 lds')
        a(f's_add_u32 {S(sT0)}, {S(sT0)}, 4096')
        a(f's_add_u32 m0, m0, 4096')
    load_weights(a, lambda t: toff(HL[t + 1]))
    a(f's_lshl_b32 {S(sStr)}, {S(sJ)}, 14')
    a(f's_lshr_b32 {S(sT0)}, {S(sWave)}, 1')
    a(f's_lshl_b32 {S(sT0)}, {S(sT0)}, 13')
    a(f's_add_u32 {S(sStr)}, {S(sStr)}, {S(sT0)}')
    a(f's_add_u32 {S(sStr)}, {S(sStr)}, {VIMG}')
    a(f's_lshl_b32 {S(sVX)}, {S(sWave)}, 13')
    a(f's_add_u32 {S(sVX)}, {S(sVX)}, {C_VX}')
    a(f's_mov_b32 {S(sSpin)}, 0')
    ensure_rdy(a, EXIT, 1, None)
    for i in cvdma(): a(i)
    Lhi = a.newlabel('CHI')
    a(f's_cmp_ge_u32 {S(sWave)}, 2')
    a(f's_cbranch_scc1 {Lhi}')
    for hiw in (0, 1):
        if hiw:
            a.label(Lhi); a.reset_hist()
        gen_C_wave(a, hiw, EXIT, stamp)

def gen_C_wave(a, hiw, EXIT, stamp):
    ACC = [vAcc, vAcc + 4, vAcc + 8, vT0]
    UB = vPoll
    EF = vBig; VF = [vBig + 16 + 4 * i for i in range(8)]
    WACC = [vBig + 48, vBig + 52, vMem, vMem + 4]
    WBK = vAcc
    if hiw == 0:
        a(f'buffer_load_dword {R(vT0)}, {R(vA1)}, s[32:35], 0 offen')
        a(f'v_and_b32 {R(vA1)}, 0x70, {R(vA0)}')
        a(f'v_bfe_u32 {R(vT1)}, {R(vLane)}, 3, 1')
        a(f'v_lshl_add_u32 {R(vA1)}, {R(vT1)}, 8, {R(vA1)}')
        a(f'v_bfe_u32 {R(vT1)}, {R(vLane)}, 1, 2')
        a(f'v_lshl_add_u32 {R(vA1)}, {R(vT1)}, 2, {R(vA1)}')
        a(f's_lshl_b32 {S(sT0)}, {S(sJ)}, 9')
        a(f'v_add_u32 {R(vA1)}, {S(sT0)}, {R(vA1)}')
        a('s_waitcnt vmcnt(0)')
        a(f'v_min_u32 {R(vT0)}, -2, {R(vT0)}')
        a(f's_mov_b32 {S(sT0)}, {TBOX}')
        a(f'buffer_store_dword {R(vT0)}, {R(vA0)}, {S(sWS,4)}, {S(sT0)} offen sc1')
        a(f's_mov_b32 {S(sT0)}, {MBOX}')
        a(f'buffer_store_dword {R(vT0)}, {R(vA1)}, {S(sWS,4)}, {S(sT0)} offen sc1')
    else:
        a(f'v_mov_b32 {R(vA1)}, -1')
        for sl in range(1, 4):
            a(f's_mov_b32 {S(sT0)}, {TBOX + sl*SLOT}')
            a(f'buffer_store_dword {R(vA1)}, {R(vA0)}, {S(sWS,4)}, {S(sT0)} offen sc1')
        a(f'v_mov_b32 {R(vT0)}, 0')
        a(f's_mov_b32 {S(sT0)}, {PROG}')
        a(f'buffer_store_dword {R(vT0)}, {R(vT0)}, {S(sWS,4)}, {S(sT0)} offen sc1')
    a(f's_lshl_b32 s30, {S(sWave)}, 11')
    a(f's_min_u32 s30, s30, 5120')
    a(f'v_add_u32 v0, s30, {R(vL16)}')
    team_barrier(a, EXIT)
    both_modes(a, lambda: gen_C_loop(a, hiw, EXIT, stamp))

def gen_C_loop(a, hiw, EXIT, stamp):
    ACC = [vAcc, vAcc + 4, vAcc + 8, vT0]
    UB = vPoll
    EF = vBig; VF = [vBig + 16 + 4 * i for i in range(8)]
    WACC = [vBig + 48, vBig + 52, vMem, vMem + 4]
    WBK = vAcc
    a(f's_mov_b32 {S(sStep)}, 0')
    if stamp: stamp(a, 0)
    L = a.newlabel('CLOOP')
    a.label(L); a.reset_hist()
    if not hiw: a('s_barrier')
    slots(a)
    a(f's_mov_b32 {S(sSpin)}, 0')
    a(f'v_add_u32 {R(vA7)}, {S(sVX)}, {R(vL16)}')
    a(f's_sub_u32 {S(sT0)}, {S(sVX)}, {C_VX}')
    a(f's_xor_b32 {S(sT0)}, {S(sT0)}, 32768')
    a(f's_add_u32 {S(sVX)}, {S(sT0)}, {C_VX}')
    if STRM_MASK is None: a(f's_add_u32 {S(sStr)}, {S(sStr)}, {16*28672}')
    ensure_rdy(a, EXIT, 2)
    wpre = [f'ds_read_b128 {R(vBig+4*k,4)}, {R(vA5)} offset:{k*1024}' for k in range(14)]
    a(f's_add_u32 {S(sT3)}, s30, {S(sCur)}')
    if hiw:
        a('s_waitcnt vmcnt(0)')
        for x in wpre: a(x)
        for z in zero4(ACC[0]) + zero4(ACC[1]) + zero4(ACC[2]): a(z)
        a(f'v_lshlrev_b32 {R(vT1)}, 7, {R(vLane)}')
        a(f's_add_u32 {S(sT1)}, {S(sStr)}, {(PFD-1)*16*28672}')
        a('s_barrier')
        for k in range(C_PF):
            if k: a(f's_xor_b32 {S(sT1)}, {S(sT1)}, 8192')
            a(f'buffer_load_dword {R(vT2)}, {R(vT1)}, {S(sWS,4)}, {S(sT1)} offen sc1')
        if C_SLEEP: a(f's_sleep {C_SLEEP}')
    else:
        a(f's_waitcnt vmcnt(2)')
        for x in wpre: a(x)
        for z in zero4(ACC[0]) + zero4(ACC[1]) + zero4(ACC[2]): a(z)
    Lp = a.newlabel('CPM')
    TS(a, 0)
    def rnd():
        for k in range(2):
            a(f'buffer_load_dwordx4 {R(vPoll+4*k,4)}, {R(vL16)}, {S(sWS,4)}, {S(sT3)} offen offset:{k*1024} sc1')
    for d in range(CMDEPTH - 1):
        rnd()
        a('s_sleep 1')
    a.label(Lp)
    rnd()
    spin_guard(a, EXIT)
    for k in range(2):
        a(f's_waitcnt vmcnt({2*(CMDEPTH-1) + 1 - k})')
        for x in acc_max(vT0, range(vPoll+4*k, vPoll+4*k+4), k == 0): a(x)
        a(f'ds_write_b128 v0, {R(vPoll+4*k,4)} offset:{k*1024}')
    a(f'v_cmp_eq_u32 vcc, -1, {R(vT0)}')
    a(f's_cbranch_vccnz {Lp}')
    TS(a, 2)
    for z in zero4(ACC[3]): a(z)
    a('s_waitcnt lgkmcnt(0)')
    a('s_barrier')
    TS(a, 3)
    mem_frag_reads(a)
    def comb(p):
        x, y = ACC[(2*p) % 4], ACC[(2*p+1) % 4]
        r0 = UB + 4 * (p // 2) + (p % 2)
        o = [f'v_permlane32_swap_b32 {R(x+r)}, {R(y+r)}' for r in range(4)]
        o += [f'v_add_f32 {R(x+r)}, {R(x+r)}, {R(y+r)}' for r in range(4)]
        o += [f'v_cvt_pk_bf16_f32 {R(r0)}, {R(x)}, {R(x+1)}', f'v_cvt_pk_bf16_f32 {R(r0+2)}, {R(x+2)}, {R(x+3)}']
        return o
    G = []
    for t in range(8):
        for c in range(7):
            wr = WREG(t - 1, c) if t else vBig + 8 * c
            G.append(f'{SM} {R(ACC[t%4],4)}, {R(vMem+4*c,4)}, {R(wr,8)}, {R(vIdx)}')
    gp = Gaps()
    k = gp.place(comb(0), 16); gp.fixed(26, zero4(ACC[0])); gp.place(zero4(ACC[1]), 27)
    k = gp.place(comb(1), 30); gp.fixed(40, zero4(ACC[2])); gp.place(zero4(ACC[3]), 41)
    gp.place(comb(2), 44)
    def vread(i): return f'ds_read_b128 {R(VF[i],4)}, {R(vA7)} offset:{HL[i]*1024}'
    def eld(i): return f'buffer_load_dwordx4 {R(EF+4*i,4)}, {R(vA2)}, {S(sWS,4)}, {S(sCur)} offen offset:{i*1024} sc1'
    if not NOSTREAM: gp.place(cvdma(), 0, step=CVLDE)
    k = gp.place([vread(i) for i in range(8)], 7)
    sw = []
    for p in range(4):
        sw += [f'v_swap_b32 {R(VF[2*p]+1)}, {R(VF[2*p+1])}', f'v_swap_b32 {R(VF[2*p]+3)}, {R(VF[2*p+1]+2)}']
    k = gp.place([eld(i) for i in range(4)], EPOLL, step=ESTEP)
    k = gp.place([eld(i) for i in range(4)], EPOLL2, step=ESTEP); assert k <= 55
    gp.place(zero4(WACC[0]) + zero4(WACC[1]), 8)
    gp.fixed(22, ['s_waitcnt lgkmcnt(0)'])
    gp.place(sw, 22, cap=2, step=4)
    if hiw: gp.place([f'buffer_store_dword {R(vA1)}, {R(vA0)}, {S(sWS,4)}, {S(sPrv)} offen {ST}'], 1)
    gp.fixed(15, [f's_waitcnt vmcnt({gp.nvm(15)})'])
    for i in gp.weave(first_waits(G), 55): a(i)
    TS(a, 4)
    for z in zero4(WACC[2]) + zero4(WACC[3]): a(z)
    for x in comb(3): a(x)
    if hiw:
        a(f'ds_write_b128 {R(vA6)}, {R(UB,4)}')
        a(f'ds_write_b128 {R(vA6)}, {R(UB+4,4)} offset:1024')
    Le = a.newlabel('CPE'); Lg = a.newlabel('CEG')
    a('s_waitcnt vmcnt(4)')
    check_regs(a, EF, 16, vA4)
    a(f's_cbranch_vccz {Lg}')
    a.label(Le)
    for i in range(4): a(eld(i))
    spin_guard(a, EXIT)
    a('s_waitcnt vmcnt(4)')
    check_regs(a, EF, 16, vA4)
    a(f's_cbranch_vccnz {Le}')
    a.label(Lg)
    TS(a, 5)
    def wcv(p):
        r0 = WBK + 4 * (p // 2) + (p % 2)
        return [f'v_cvt_pk_bf16_f32 {R(r0)}, {R(WACC[p])}, {R(WACC[p]+1)}', f'v_cvt_pk_bf16_f32 {R(r0+2)}, {R(WACC[p]+2)}, {R(WACC[p]+3)}']
    for p in range(4):
        a(f'{SM} {R(WACC[p],4)}, {R(EF+4*p,4)}, {R(VF[2*p],8)}, {R(vIdx)}')
    for x in wcv(0) + wcv(1): a(x)
    if hiw: a(f'ds_write_b128 {R(vA6)}, {R(WBK,4)} offset:2048')
    for x in wcv(2) + wcv(3): a(x)
    if hiw:
        a(f'ds_write_b128 {R(vA6)}, {R(WBK+4,4)} offset:3072')
        a('s_waitcnt lgkmcnt(0)')
        a('s_barrier')
    else:
        UB2 = vBig; WB2 = vBig + 8; PF = vMem + 8; DD = vAcc + 8
        def pr():
            for k in range(4):
                a(f'buffer_load_dwordx4 {R(PF+4*k,4)}, {R(vA3)}, {S(sWS,4)}, {S(sCur)} offen offset:{k*1024} sc1')
        for z in zero4(DD): a(z)
        pr()
        a('s_waitcnt vmcnt(4)')
        a('s_barrier')
        for k in range(4):
            a(f'ds_read_b128 {R(UB2+4*k,4)}, {R(vA6)} offset:{k*1024}')
        TS(a, 6)
        Lq = a.newlabel('CPP')
        for d in range(CDEPTH - 2):
            pr()
            if CSTAG: a(f's_sleep {CSTAG}')
        a('s_waitcnt lgkmcnt(0)')
        a.label(Lq)
        pr()
        spin_guard(a, EXIT)
        for k in range(4):
            a(f's_waitcnt vmcnt({4*(CDEPTH-1) + 3 - k})')
            for x in acc_max(vT0, range(PF+4*k, PF+4*k+4), k == 0): a(x)
        a(f'v_cmp_eq_u32 vcc, -1, {R(vT0)}')
        a(f's_cbranch_vccnz {Lq}')
        TS(a, 7)
        if INSTR: a(f's_mov_b32 s46, {S(sSpin)}')
        a(f'{SM} {R(DD,4)}, {R(PF,4)}, {R(UB,8)}, {R(vIdx)}')
        a(f'{SM} {R(DD,4)}, {R(PF+4,4)}, {R(UB2,8)}, {R(vIdx)}')
        a(f'{SM} {R(DD,4)}, {R(PF+8,4)}, {R(WBK,8)}, {R(vIdx)}')
        a(f'{SM} {R(DD,4)}, {R(PF+12,4)}, {R(WB2,8)}, {R(vIdx)}')
        a(f'v_permlane32_swap_b32 {R(DD)}, {R(DD+2)}')
        a(f'v_permlane32_swap_b32 {R(DD+1)}, {R(DD+3)}')
        a(f'v_add_f32 {R(DD)}, {R(DD)}, {R(DD+2)}')
        a(f'v_add_f32 {R(DD+1)}, {R(DD+1)}, {R(DD+3)}')
        a(f'v_mov_b32_dpp {R(DD+2)}, {R(DD)} quad_perm:[1,0,3,2] {DP}')
        a(f'v_mov_b32_dpp {R(DD+3)}, {R(DD+1)} quad_perm:[1,0,3,2] {DP}')
        a(f'v_cvt_pk_bf16_f32 {R(DD)}, {R(DD)}, {R(DD+2)}')
        a(f'v_cvt_pk_bf16_f32 {R(DD+1)}, {R(DD+3)}, {R(DD+1)}')
        a(f'v_cndmask_b32 {R(DD)}, {R(DD+1)}, {R(DD)}, s[36:37]')
        a(f'v_min_u32 {R(DD)}, -2, {R(DD)}')
        TS(a, 8)
        a(f'buffer_store_dword {R(DD)}, {R(vA0)}, {S(sWS,4)}, {S(sNxt)} offen {ST}')
        a(f'buffer_store_dword {R(DD)}, {R(vA1)}, {S(sWS,4)}, {S(sMc)} offen {ST}')
    step_end(a, L)
    if stamp: stamp(a, 1)
    a(f's_branch {EXIT}')

def gen_PF(a, EXIT):
    a(f'v_and_b32 {R(vLane)}, 63, v0')
    a(f'v_lshlrev_b32 {R(vL16)}, 7, {R(vLane)}')
    a(f's_mov_b32 {S(sSpin)}, 0')
    team_barrier(a, EXIT, arrive=False)
    a(f's_lshl_b32 {S(sJ)}, {S(sRole)}, 2')
    a(f's_add_u32 {S(sJ)}, {S(sJ)}, {S(sWave)}')
    a(f's_mov_b32 {S(sStep)}, 1')
    a(f'v_mov_b32 {R(vT0)}, 0')
    a(f's_mov_b32 {S(sT3)}, {PROG}')
    L = a.newlabel('PFL'); Lw = a.newlabel('PFW'); Lgo = a.newlabel('PFG')
    a.label(L)
    a(f's_mov_b32 {S(sSpin)}, 0')
    a.label(Lw)
    a(f'buffer_load_dword {R(vT1)}, {R(vT0)}, {S(sWS,4)}, {S(sT3)} offen sc1')
    spin_guard(a, EXIT)
    a('s_waitcnt vmcnt(0)')
    a(f'v_readfirstlane_b32 {S(sT0)}, {R(vT1)}')
    a(f's_add_u32 {S(sT0)}, {S(sT0)}, {PFD}')
    a(f's_cmp_le_u32 {S(sStep)}, {S(sT0)}')
    a(f's_cbranch_scc1 {Lgo}')
    a('s_sleep 4')
    a(f's_branch {Lw}')
    a.label(Lgo)
    a(f's_mul_i32 {S(sT0)}, {S(sStep)}, {16*28672}')
    a(f's_lshl_b32 {S(sT1)}, {S(sJ)}, 14')
    a(f's_add_u32 {S(sT0)}, {S(sT0)}, {S(sT1)}')
    a(f's_add_u32 {S(sT0)}, {S(sT0)}, {VIMG}')
    for i in range(4):
        if i == 3:
            Ls = a.newlabel('PFS')
            a(f's_cmp_ge_u32 {S(sJ)}, 4')
            a(f's_cbranch_scc1 {Ls}')
        a(f'buffer_load_dword {R(vT2)}, {R(vL16)}, {S(sWS,4)}, {S(sT0)} offen sc1')
        a(f's_add_u32 {S(sT0)}, {S(sT0)}, {8*16384}')
    a.label(Ls)
    a(f's_add_u32 {S(sStep)}, {S(sStep)}, 1')
    a(f's_cmp_lt_u32 {S(sStep)}, 64')
    a(f's_cbranch_scc1 {L}')
    a(f's_branch {EXIT}')


def gen_spare(a, EXIT):
    a(f'v_and_b32 {R(vLane)}, 63, v0')
    a(f's_mov_b32 {S(sSpin)}, 0')
    Lpf = a.newlabel('SPF'); Lex = a.newlabel('SEX'); Lgk = a.newlabel('SGK'); Ltb = a.newlabel('STB')
    a(f's_lshl_b32 {S(sJ)}, {S(sRole)}, 2')
    a(f's_add_u32 {S(sJ)}, {S(sJ)}, {S(sWave)}')
    a(f's_cmp_eq_u32 {S(sJ)}, 1')
    a(f's_cbranch_scc1 {Lgk}')
    a(f's_cmp_eq_u32 {S(sJ)}, 5')
    a(f's_cbranch_scc1 {Lex}')
    Lw0 = a.newlabel('SW0')
    a(f's_mov_b32 {S(sT0)}, {F_TBAR}')
    a(f's_cmp_lg_u32 {S(sWave)}, 0')
    a(f's_cbranch_scc1 {Lw0}')
    a(f'v_mov_b32 {R(vT1)}, {S(sArr)}')
    a('s_mov_b64 exec, 1')
    a(f'buffer_atomic_add {R(vT1)}, off, {S(sWS,4)}, {S(sT0)} sc1')
    a('s_mov_b64 exec, -1')
    a.label(Lw0)
    a(f'buffer_load_dword {R(vT2)}, off, {S(sWS,4)}, {S(sT0)} sc1')
    spin_guard(a, EXIT)
    a('s_sleep 8')
    a('s_waitcnt vmcnt(0)')
    a(f'v_and_b32 {R(vT1)}, 0x3f, {R(vT2)}')
    a(f'v_cmp_gt_u32 vcc, 32, {R(vT1)}')
    a(f's_cbranch_vccnz {Lw0}')
    a(f's_cmp_gt_u32 {S(sJ)}, 5')
    a(f's_cselect_b32 {S(sT1)}, 2, 1')
    a(f's_cmp_eq_u32 {S(sJ)}, 0')
    a(f's_cselect_b32 {S(sT1)}, 0, {S(sT1)}')
    a(f's_sub_u32 {S(sJ)}, {S(sJ)}, {S(sT1)}')
    a(f'v_lshlrev_b32 {R(vL16)}, 7, {R(vLane)}')
    a(f's_mov_b32 {S(sStep)}, 1')
    a(f's_mov_b32 {S(sT3)}, {PROG}')
    L = a.newlabel('PFL'); Lw = a.newlabel('PFW'); Lgo = a.newlabel('PFG')
    a.label(L)
    a(f's_mov_b32 {S(sSpin)}, 0')
    ensure_rdy(a, EXIT, 1)
    a.label(Lw)
    a(f'buffer_load_dword {R(vT1)}, off, {S(sWS,4)}, {S(sT3)} sc1')
    spin_guard(a, EXIT)
    a('s_waitcnt vmcnt(0)')
    a(f'v_readfirstlane_b32 {S(sT0)}, {R(vT1)}')
    a(f's_add_u32 {S(sT0)}, {S(sT0)}, {PFD}')
    a(f's_cmp_le_u32 {S(sStep)}, {S(sT0)}')
    a(f's_cbranch_scc1 {Lgo}')
    a('s_sleep 4')
    a(f's_branch {Lw}')
    a.label(Lgo)
    a(f's_mul_i32 {S(sT0)}, {S(sStep)}, {16*28672}')
    a(f's_lshl_b32 {S(sT1)}, {S(sJ)}, 14')
    a(f's_add_u32 {S(sT0)}, {S(sT0)}, {S(sT1)}')
    a(f's_add_u32 {S(sT0)}, {S(sT0)}, {VIMG}')
    for i in range(5):
        if i == 4:
            Ls = a.newlabel('PFS')
            a(f's_cmp_ge_u32 {S(sJ)}, 4')
            a(f's_cbranch_scc1 {Ls}')
        a(f'buffer_load_dword {R(vT2)}, {R(vL16)}, {S(sWS,4)}, {S(sT0)} offen sc1')
        a(f's_add_u32 {S(sT0)}, {S(sT0)}, {6*16384}')
    a.label(Ls)
    a(f's_add_u32 {S(sStep)}, {S(sStep)}, 1')
    a(f's_cmp_lt_u32 {S(sStep)}, 64')
    a(f's_cbranch_scc1 {L}')
    a(f's_branch {EXIT}')
    a.label(Lgk); a.reset_hist()
    a(f'v_lshlrev_b32 {R(vL16)}, 3, {R(vLane)}')
    a(f's_mov_b32 {S(sStep)}, 0')
    a(f's_mov_b32 {S(sT3)}, {F_KV}')
    a(f's_mov_b32 {S(sT2)}, {F_RDY}')
    for ng in (7, 1):
        Lg = a.newlabel('GKL')
        a.label(Lg)
        for i in range(ng):
            a(f'buffer_load_dwordx2 {R(vMem+2*i,2)}, {R(vL16)}, {S(sWS,4)}, {S(sT3)} offen offset:{i*512} sc1')
        spin_guard(a, EXIT)
        a('s_sleep 2')
        a('s_waitcnt vmcnt(0)')
        a(f'v_min_u32 {R(vT0)}, {R(vMem)}, {R(vMem+1)}')
        for i in range(1, ng):
            a(f'v_min3_u32 {R(vT0)}, {R(vT0)}, {R(vMem+2*i)}, {R(vMem+2*i+1)}')
        a(f'v_cmp_eq_u32 vcc, 0, {R(vT0)}')
        a(f's_cbranch_vccnz {Lg}')
        a(f's_add_u32 {S(sStep)}, {S(sStep)}, {ng}')
        a(f'v_mov_b32 {R(vT2)}, {S(sStep)}')
        a('s_mov_b64 exec, 1')
        a(f'buffer_store_dword {R(vT2)}, off, {S(sWS,4)}, {S(sT2)} sc1')
        a('s_mov_b64 exec, -1')
        if ng == 7:
            a(f's_add_u32 {S(sT3)}, {S(sT3)}, {7*512}')
            a(f's_cmp_lt_u32 {S(sStep)}, 63')
            a(f's_cbranch_scc1 {Lg}')
    a(f's_branch {EXIT}')
    a.label(Lex); a.reset_hist()
    a(f'v_lshrrev_b32 {R(vT0)}, 3, {R(vLane)}')
    a(f'v_lshlrev_b32 {R(vT0)}, 8, {R(vT0)}')
    a(f'v_and_b32 {R(vT1)}, 7, {R(vLane)}')
    a(f'v_lshl_add_u32 {R(vA0)}, {R(vT1)}, 4, {R(vT0)}')
    for i in range(1, 4): a(f'v_add_u32 {R(vA0+i)}, {4096*i}, {R(vA0)}')
    a(f's_mov_b32 {S(sStep)}, 0')
    a(f's_mov_b32 {S(sT3)}, {MBOX}')
    Le = a.newlabel('EXL')
    a.label(Le)
    for c in range(7):
        a(f'buffer_load_dwordx4 {R(vMem+4*c,4)}, {R(vA0 + c//2)}, {S(sWS,4)}, {S(sT3)} offen offset:{(c%2)*2048} sc1')
    spin_guard(a, EXIT)
    a('s_waitcnt vmcnt(0)')
    check_regs(a, vMem, 28, vT0)
    a(f's_cbranch_vccnz {Le}')
    a(f's_add_u32 {S(sT2)}, {S(sT3)}, {MEMX - MBOX}')
    for c in range(7):
        a(f'buffer_store_dwordx4 {R(vMem+4*c,4)}, {R(vA0 + c//2)}, {S(sWS,4)}, {S(sT2)} offen offset:{(c%2)*2048} sc1')
    a(f's_mov_b32 {S(sSpin)}, 0')
    a(f's_bitcmp1_b32 {S(sStep)}, 0')
    a(f's_cselect_b32 {S(sT0)}, {14336 - 256}, 0')
    a(f's_add_u32 {S(sT3)}, {S(sT3)}, {S(sT0)}')
    a(f's_add_u32 {S(sT3)}, {S(sT3)}, 128')
    a(f's_add_u32 {S(sStep)}, {S(sStep)}, 1')
    a(f's_cmp_lt_u32 {S(sStep)}, 64')
    a(f's_cbranch_scc1 {Le}')
    a(f's_branch {EXIT}')
```

```python
from asmlib import *
from layout import *
from prep import f2u, LOG2E, srd
import phase0
MF = 'v_mfma_f32_16x16x32_bf16'
MF16 = 'v_mfma_f32_16x16x16_bf16'
WST = ''
WLD = ''
sWS = 8; sRole = 12; sWave = 13
def WREG(t, c):
    i = t * 7 + c
    return 120 + 8 * i if i < 17 else 256 + 8 * (i - 17)
def W(t, ks): return WREG(t, ks // 2) + 4 * (ks % 2)
X_RING = 0; S_RED = 4 * 28672
def acc(qt, t): return 64 + 4 * (7 * qt + t)

WINSTR = False
def WT(a, k):
    if WINSTR: a(f's_memtime s[{60+2*k}:{61+2*k}]')
def wdump(a, cond_reg, val):
    if not WINSTR: return
    L = a.newlabel('WD')
    a(f's_cmp_lg_u32 {cond_reg}, {val}')
    a(f's_cbranch_scc1 {L}')
    a('s_waitcnt lgkmcnt(0)')
    a('s_lshl_b32 s82, s83, 8')
    a('s_lshl_b32 s81, s13, 6')
    a('s_add_u32 s82, s82, s81')
    a(f's_add_u32 s82, s82, {DBG + 131072}')
    for k in range(10):
        a(f'v_mov_b32 v15, s{60+2*k}')
        a(f'buffer_store_dword v15, off, s[8:11], s82 offset:{4*k}')
    a('s_waitcnt vmcnt(0)')
    a.label(L)

class Hooks:
    def wait(self, a, what): pass
    def signal(self, a, what): pass

def lane_setup(a):
    a('v_and_b32 v1, 63, v0')
    a('v_lshlrev_b32 v2, 4, v1')
    a('v_and_b32 v3, 15, v1')
    a('v_lshrrev_b32 v4, 4, v1')

def kv_setup(a):
    lane_setup(a)
    a('s_mul_i32 s14, s12, 9363')
    a('s_lshr_b32 s14, s14, 16')
    a('s_mul_i32 s15, s14, 7')
    a('s_sub_u32 s15, s12, s15')
    a('s_and_b32 s16, s14, 15')

def kv_weights(a):
    a('s_and_b32 s17, s13, 1')
    a('s_mul_i32 s18, s13, 7')
    a('s_add_u32 s19, s18, s17')
    a('s_xor_b32 s20, s17, 1')
    a('s_mul_i32 s20, s20, 6')
    a('s_add_u32 s20, s20, s18')
    a(f's_mul_i32 s21, s14, {MAT}')
    for t in range(7):
        if t < 6: a(f's_add_u32 s22, s19, {t}')
        else: a('s_mov_b32 s22, s20')
        a('s_mul_i32 s22, s22, 14336')
        a('s_add_u32 s22, s22, s21')
        for q in range(4):
            if q: a('s_add_u32 s22, s22, 4096')
            for k in range(4):
                ks = 4 * q + k
                if ks < 14:
                    a(f'buffer_load_dwordx4 {R(W(t,ks),4)}, v2, s[8:11], s22 offen offset:{k*1024} {WLD}')
    a('s_lshr_b32 s23, s19, 1')
    a('s_lshl_b32 s23, s23, 10')
    a('s_lshr_b32 s24, s20, 1')
    a('s_lshl_b32 s24, s24, 10')
    a('s_lshl_b32 s25, s17, 3')
    a('s_add_u32 s24, s24, s25')

def xdma(a, seg_s, slot_s):
    a(f's_mul_i32 s26, {seg_s}, 28672')
    a('s_mul_i32 s27, s13, 7168')
    a('s_add_u32 s26, s26, s27')
    a(f's_add_u32 s26, s26, {XIMG}')
    a(f's_add_u32 m0, {slot_s}, s27')
    for k in range(7):
        if k == 4:
            a('s_add_u32 s26, s26, 4096')
            a('s_add_u32 m0, m0, 4096')
        a(f'buffer_load_dwordx4 v2, s[8:11], s26 offen offset:{(k%4)*1024} {WLD} lds')

KFR = 36
def k_cvt(a, kt, accq):
    for p in range(3):
        for b in range(2):
            for q in range(2):
                a(f'v_cvt_pk_bf16_f32 {R(KFR+14*kt+4*p+2*b+q)}, {R(acc(accq,2*p+b)+2*q)}, {R(acc(accq,2*p+b)+2*q+1)}')
    for q in range(2):
        a(f'v_cvt_pk_bf16_f32 {R(KFR+14*kt+12+q)}, {R(acc(accq,6)+2*q)}, {R(acc(accq,6)+2*q+1)}')

def xq_reads(a, dst, off):
    for p in range(3):
        a(f'ds_read_b128 {R(dst+4*p,4)}, v5 offset:{off + p*1024}')
    a(f'ds_read_b64 {R(dst+12,2)}, v6 offset:{off}')

def s_tiles(a, lst):
    for p in range(3):
        for d, kf, xq in lst:
            a(f'{MF} {R(d,4)}, {R(kf+4*p,4)}, {R(xq+4*p,4)}, {"0" if p == 0 else R(d,4)}')
    for d, kf, xq in lst:
        a(f'{MF16} {R(d,4)}, {R(kf+12,2)}, {R(xq+12,2)}, {R(d,4)}')

def gen_kv(a, hooks, isK):
    a('s_mov_b32 s28, s15')
    a(f's_mov_b32 s29, {X_RING}')
    xdma(a, 's28', 's29')
    a('s_mov_b32 s34, 0')
    a('s_waitcnt vmcnt(0)')
    L = a.newlabel('KVL'); Ln = a.newlabel('KVN'); Ld = a.newlabel('KVD')
    a.label(L); a.reset_hist()
    a('s_barrier')
    a('s_add_u32 s30, s28, 7')
    a('s_sub_u32 s31, 28672, s29')
    a('s_cmp_ge_u32 s30, 64')
    a(f's_cbranch_scc1 {Ln}')
    xdma(a, 's30', 's31')
    a.label(Ln)
    a('v_add_u32 v7, s29, v2')
    def xr(ks):
        b = 16 + 8 * (ks % 2)
        a(f'ds_read_b128 {R(b,4)}, v7 offset:{ks*1024}')
        a(f'ds_read_b128 {R(b+4,4)}, v7 offset:{14336 + ks*1024}')
    xr(0); xr(1)
    for ks in range(14):
        a(f's_waitcnt lgkmcnt({2 if ks < 13 else 0})')
        b = 16 + 8 * (ks % 2)
        for qt in range(2):
            for t in range(7):
                c = '0' if ks == 0 else R(acc(qt, t), 4)
                x = R(b + 4 * qt, 4); w = R(W(t, ks), 4)
                a(f'{MF} {R(acc(qt,t),4)}, {w if isK else x}, {x if isK else w}, {c}')
        if ks + 2 < 14: xr(ks + 2)
        if ks == 6: hooks.signal(a, ('kvmid',))
    if isK:
        a('s_lshl_b32 s26, s28, 4')
        a('s_add_u32 s26, s26, s16')
        a('s_mul_i32 s27, s26, 3072')
        a(f's_add_u32 s27, s27, {SXX}')
        a('s_mul_i32 s26, s26, 28672')
        a(f's_add_u32 s26, s26, {KIMG}')
        a('v_add_u32 v5, s23, v7')
        a('v_add_u32 v6, s24, v7')
        for kt in range(2):
            k_cvt(a, kt, kt)
            xq_reads(a, 64 + 28 * kt, kt * 14336)
            a(f's_add_u32 s32, s26, s23')
            a(f's_add_u32 s33, s26, s24')
            for p in range(3):
                a(f'buffer_store_dwordx4 {R(KFR+14*kt+4*p,4)}, v2, s[8:11], s32 offen offset:{p*1024} {WST}')
            a(f'buffer_store_dwordx2 {R(KFR+14*kt+12,2)}, v2, s[8:11], s33 offen {WST}')
            if kt == 0: a('s_add_u32 s26, s26, 14336')
        a('s_waitcnt lgkmcnt(0)')
        SD = 16
        s_tiles(a, [(SD, KFR, 64), (SD + 4, KFR, 92), (SD + 8, KFR + 14, 92)])
        a('s_mul_i32 s32, s13, 3072')
        a(f's_add_u32 s32, s32, {S_RED}')
        a('v_add_u32 v5, s32, v2')
        for i in range(3):
            a(f'ds_write_b128 v5, {R(SD+4*i,4)} offset:{i*1024}')
        a('s_waitcnt lgkmcnt(0)')
        a('s_barrier')
        Ls = a.newlabel('KVS')
        a('s_min_u32 s32, s13, 2')
        a('s_lshl_b32 s32, s32, 10')
        a('v_add_u32 v5, s32, v2')
        a(f'v_add_u32 v6, {S_RED}, v5')
        for i in range(4):
            a(f'ds_read_b128 {R(64+4*i,4)}, v6 offset:{i*3072}')
        a('s_waitcnt lgkmcnt(0)')
        for r in range(4):
            a(f'v_add_f32 {R(64+r)}, {R(64+r)}, {R(68+r)}')
            a(f'v_add_f32 {R(72+r)}, {R(72+r)}, {R(76+r)}')
        for r in range(4):
            a(f'v_add_f32 {R(32+r)}, {R(64+r)}, {R(72+r)}')
        a(f'buffer_store_dwordx4 v[32:35], v5, s[8:11], s27 offen {WST}')
        nst = 9
    else:
        a('s_mul_i32 s26, s28, 28')
        a('s_add_u32 s27, s26, s20')
        a('s_add_u32 s26, s26, s19')
        a('s_lshl_b32 s32, s16, 10')
        a(f's_add_u32 s32, s32, {VIMG}')
        a('s_lshl_b32 s26, s26, 14')
        a('s_lshl_b32 s27, s27, 14')
        a('s_add_u32 s26, s26, s32')
        a('s_add_u32 s27, s27, s32')
        for t in range(7):
            o = KFR + 4 * t
            for r in range(4):
                a(f'v_cvt_pk_bf16_f32 {R(o+r)}, {R(acc(0,t)+r)}, {R(acc(1,t)+r)}')
            a(f'buffer_store_dwordx4 {R(o,4)}, v2, s[8:11], {"s26" if t < 6 else "s27"} offen {WST}')
            if t < 5: a('s_add_u32 s26, s26, 16384')
        nst = 7
    hooks.signal(a, ('kv', nst))
    a(f's_waitcnt vmcnt({nst})')
    a('s_mov_b32 s28, s30')
    a('s_mov_b32 s29, s31')
    a('s_cmp_lt_u32 s28, 64')
    a(f's_cbranch_scc1 {L}')
    hooks.signal(a, ('kvmid',))

MFR = [16 + 4 * i for i in range(12)] + [92, 96]
def gen_mirror(a, hooks, isK, z0, zstep, src):
    for i in range(1, 4): a(f'v_add_u32 v{11+i}, {4096*i}, v2')
    a(f's_mov_b32 s28, {z0}')
    if isK:
        a('v_add_u32 v5, s23, v2')
        a('v_add_u32 v6, s24, v2')
        a('v_and_b32 v9, 1, v4')
        a('v_lshlrev_b32 v9, 4, v9')
        a('v_lshl_add_u32 v9, v3, 5, v9')
        a('v_lshrrev_b32 v10, 1, v4')
        a('s_lshr_b32 s26, s13, 1')
        a('v_cmp_eq_u32 vcc, s26, v10')
        a('v_mov_b32 v10, 0x80000000')
        a('v_cndmask_b32 v9, v10, v9, vcc')
    else:
        a('v_lshrrev_b32 v9, 1, v4')
        a(f'v_mul_u32_u24 v9, {16*7168}, v9')
        a('v_and_b32 v10, 31, v1')
        a('v_lshl_add_u32 v9, v10, 4, v9')
        a('v_cmp_gt_u32 vcc, 16, v10')
        a('v_mov_b32 v10, 0x80000000')
        a('v_cndmask_b32 v10, v10, v9, vcc')
    def xpair(zs):
        a(f's_lshl_b32 s30, {zs}, 1')
        a(f's_and_b32 s31, {zs}, 1')
        a('s_mul_i32 s31, s31, 57344')
        xdma(a, 's30', 's31')
        a('s_add_u32 s30, s30, 1')
        a('s_add_u32 s31, s31, 28672')
        xdma(a, 's30', 's31')
    if isK:
        a('s_barrier')
        xpair('s28')
    a('s_mov_b32 s34, 0')
    L = a.newlabel('MIR')
    a.label(L); a.reset_hist()
    WT(a, 0)
    a('s_mul_i32 s26, s28, 14336')
    a(f's_add_u32 s26, s26, {src}')
    Lr = a.newlabel('MIRP'); Lq = a.newlabel('MIRQ')
    a('s_mov_b32 s35, 0')
    a(f's_branch {Lr}')
    a.label(Lq)
    hooks.wait(a, ('mem0', MFR[13]))
    a.label(Lr)
    for ks in range(14):
        a(f'buffer_load_dwordx4 {R(MFR[ks],4)}, {"v2" if ks < 4 else "v%d" % (11 + ks//4)}, s[8:11], s26 offen offset:{(ks%4)*1024} {WLD}')
    WT(a, 1)
    hooks.signal(a, ('pend', 14))
    WT(a, 2)
    hooks.wait(a, ('mem1', Lq))
    WT(a, 3)
    if isK:
        a('s_and_b32 s31, s28, 1')
        a('s_mul_i32 s31, s31, 57344')
        a('s_add_u32 s30, s31, s23')
        a('v_add_u32 v5, s30, v2')
        a('s_add_u32 s30, s31, s24')
        a('v_add_u32 v6, s30, v2')
    fill = []
    if isK:
        a(f's_add_u32 s29, s28, {zstep}')
        a('s_min_u32 s30, s29, 31')
        a('s_lshl_b32 s30, s30, 1')
        a('s_and_b32 s31, s29, 1')
        a('s_mul_i32 s31, s31, 57344')
        rec = fill.append
        xdma(rec, 's30', 's31')
        rec('s_add_u32 s30, s30, 1'); rec('s_add_u32 s31, s31, 28672')
        xdma(rec, 's30', 's31')
    for ks in range(14):
        for t in range(7):
            c = '0' if ks == 0 else R(acc(0, t), 4)
            x = R(MFR[ks], 4); w = R(W(t, ks), 4)
            a(f'{MF} {R(acc(0,t),4)}, {w if isK else x}, {x if isK else w}, {c}')
            if t == 0:
                while fill:
                    i = fill.pop(0); a(i)
                    if i.startswith('buffer_'): break
    if isK:
        WT(a, 4)
        a('s_barrier')
        WT(a, 5)
        k_cvt(a, 0, 0)
        XQ = [64, 78, 92, 106]
        for i in range(4): xq_reads(a, XQ[i], i * 14336)
        a('s_waitcnt lgkmcnt(0)')
        SD = 16
        WT(a, 6)
        s_tiles(a, [(SD + 4 * i, KFR, XQ[i]) for i in range(4)])
        a('s_lshl_b32 s32, s13, 12')
        a(f's_add_u32 s32, s32, {S_RED}')
        a('v_add_u32 v7, s32, v2')
        for i in range(4):
            a(f'ds_write_b128 v7, {R(SD+4*i,4)} offset:{i*1024}')
        a('s_waitcnt lgkmcnt(0)')
        a('s_barrier')
        WT(a, 7)
        a('s_lshl_b32 s32, s13, 10')
        a(f's_add_u32 s32, s32, {S_RED}')
        a('v_add_u32 v7, s32, v2')
        for i in range(4):
            a(f'ds_read_b128 {R(64+4*i,4)}, v7 offset:{i*4096}')
        a('s_lshr_b32 s26, s13, 1')
        a('s_lshl_b32 s27, s28, 1')
        a('s_add_u32 s26, s26, s27')
        a('s_lshl_b32 s26, s26, 4')
        a('s_add_u32 s26, s26, s16')
        a('s_lshl_b32 s26, s26, 1')
        a('s_add_u32 s26, s26, s17')
        a('s_lshl_b32 s26, s26, 9')
        a(f's_add_u32 s26, s26, {SXM}')
        a('s_waitcnt lgkmcnt(0)')
        for r in range(4):
            a(f'v_add_f32 {R(64+r)}, {R(64+r)}, {R(68+r)}')
            a(f'v_add_f32 {R(72+r)}, {R(72+r)}, {R(76+r)}')
        for r in range(4):
            a(f'v_add_f32 {R(100+r)}, {R(64+r)}, {R(72+r)}')
        a(f'buffer_store_dwordx4 v[100:103], v9, s[8:11], s26 offen {WST}')
    else:
        a('s_lshl_b32 s26, s28, 5')
        a('s_add_u32 s26, s26, s16')
        a('s_mul_i32 s26, s26, 28')
        a('s_add_u32 s27, s26, s20')
        a('s_add_u32 s26, s26, s19')
        a('s_lshl_b32 s26, s26, 8')
        a('s_lshl_b32 s27, s27, 8')
        a(f's_add_u32 s26, s26, {UIMG}')
        a(f's_add_u32 s27, s27, {UIMG}')
        for p in range(4):
            o = 100 + 4 * p
            for b in range(2):
                t = min(2 * p + b, 6)
                for q in range(2):
                    a(f'v_cvt_pk_bf16_f32 {R(o+2*b+q)}, {R(acc(0,t)+2*q)}, {R(acc(0,t)+2*q+1)}')
            a(f'v_permlane16_swap_b32 {R(o)}, {R(o+2)}')
            a(f'v_permlane16_swap_b32 {R(o+1)}, {R(o+3)}')
            if p < 3: a(f'buffer_store_dwordx4 {R(o,4)}, v9, s[8:11], s26 offen offset:{p*512} {WST}')
            else: a(f'buffer_store_dwordx4 {R(o,4)}, v10, s[8:11], s27 offen {WST}')
    WT(a, 8)
    wdump(a, 's28', 12)
    hooks.signal(a, ('mir', 's28'))
    a(f's_add_u32 s28, s28, {zstep}')
    a('s_cmp_lt_u32 s28, 32')
    a(f's_cbranch_scc1 {L}')
    hooks.signal(a, ('pend', 0))

def gen_H(a, hooks, item='s12'):
    lane_setup(a)
    a(f's_mul_i32 s14, {item}, 2341')
    a('s_lshr_b32 s14, s14, 16')
    a('s_mul_i32 s15, s14, 28')
    a(f's_sub_u32 s15, {item}, s15')
    a('s_and_b32 s17, s13, 1')
    a('s_lshl_b32 s16, s15, 1')
    a('s_add_u32 s16, s16, s17')
    def HW(m, b, ks): return 256 + 4 * ((2 * m + b) * 14 + ks)
    srd(a, 44, 64, 448 * 3584)
    srd(a, 48, 72, 448 * 3584)
    phase0.raw_lane(a, 'v6', 'v7', 3584)
    a(f's_mul_i32 s18, s13, {14*8*3584}')
    a('s_lshl_b32 s19, s15, 7')
    a('s_add_u32 s18, s18, s19')
    a('s_mul_i32 s25, s13, 14336')
    a('s_waitcnt lgkmcnt(0)')
    a('s_barrier')
    for m in range(2):
        for i in range(14):
            a(f's_add_u32 m0, s25, {m*57344 + i*1024}')
            a(f's_add_u32 s19, s18, {i*8*3584}')
            a(f'buffer_load_dwordx4 v6, {S(44+4*m,4)}, s19 offen lds')
    a('v_lshrrev_b32 v7, 2, v3')
    a('v_and_b32 v8, 3, v3')
    a('v_xor_b32 v8, v8, v7')
    a('v_lshlrev_b32 v8, 4, v8')
    a('v_lshl_add_u32 v8, v7, 7, v8')
    a('v_lshl_add_u32 v8, v4, 10, v8')
    a('s_lshl_b32 s19, s17, 6')
    a('v_add_u32 v8, s19, v8')
    a('v_xor_b32 v9, 0x240, v8')
    a('s_lshr_b32 s20, s13, 1')
    a('s_lshl_b32 s20, s20, 3')
    a('s_lshl_b32 s21, s14, 4')
    a('s_add_u32 s20, s20, s21')
    a('s_mul_i32 s21, s20, 14336')
    a(f's_add_u32 s21, s21, {XIMG}')
    a('s_mul_i32 s22, s20, 57344')
    a('s_lshl_b32 s23, s16, 10')
    a('s_add_u32 s22, s22, s23')
    a(f's_add_u32 s22, s22, {HIMG}')
    a('s_lshl_b32 s23, s20, 6')
    a(f's_add_u32 s23, s23, {GVEC}')
    a('v_lshlrev_b32 v5, 2, v3')
    a(f's_mov_b32 s24, {f2u(-LOG2E)}')
    XB = [16, 76, 136]; GB = [72, 132, 192]
    def xl(i):
        b = XB[i % 3]
        for ks in range(14):
            if ks % 4 == 0: a(f's_add_u32 s19, s21, {i*14336 + ks*1024}')
            a(f'buffer_load_dwordx4 {R(b+4*ks,4)}, v2, s[8:11], s19 offen offset:{(ks%4)*1024} {WLD}')
        a(f'buffer_load_dword {R(GB[i%3])}, v5, s[8:11], s23 offen offset:{i*64} {WLD}')
    xl(0); xl(1)
    a('s_waitcnt vmcnt(30)')
    a('s_barrier')
    for m in range(2):
        if m:
            a('v_add_u32 v8, 57344, v8')
            a('v_add_u32 v9, 57344, v9')
        for ks in range(14):
            for b in range(2):
                for hf in range(2):
                    a(f'ds_read_b64_tr_b16 {R(HW(m,b,ks)+2*hf,2)}, v{8+hf} offset:{ks*4096 + 8*b}')
    a('s_waitcnt lgkmcnt(0)')
    AC = 200; T = 216; O = 232
    for i in range(8):
        if i + 2 < 8: xl(i + 2)
        n = 15 * (min(i + 2, 7) - i) + min(i, 2)
        a(f's_waitcnt vmcnt({n})')
        b = XB[i % 3]
        for ks in range(14):
            for m in range(2):
                for bb in range(2):
                    d = AC + 4 * (2 * m + bb)
                    a(f'{MF} {R(d,4)}, {R(HW(m,bb,ks),4)}, {R(b+4*ks,4)}, {"0" if ks == 0 else R(d,4)}')
        g = GB[i % 3]
        a(f'v_sub_f32 {R(g)}, 1.0, {R(g)}')
        for r in range(8): a(f'v_mul_f32 {R(T+r)}, s24, {R(AC+r)}')
        for r in range(8): a(f'v_exp_f32 {R(T+r)}, {R(T+r)}')
        for r in range(8): a(f'v_mul_f32 {R(T+8+r)}, {R(AC+r)}, {R(AC+8+r)}')
        for r in range(8): a(f'v_add_f32 {R(T+r)}, 1.0, {R(T+r)}')
        for r in range(8): a(f'v_rcp_f32 {R(T+r)}, {R(T+r)}')
        for r in range(8): a(f'v_mul_f32 {R(T+8+r)}, {R(T+8+r)}, {R(g)}')
        for r in range(8): a(f'v_mul_f32 {R(T+r)}, {R(T+r)}, {R(T+8+r)}')
        o = O + 4 * (i % 2)
        for q in range(4): a(f'v_cvt_pk_bf16_f32 {R(o+q)}, {R(T+2*q)}, {R(T+2*q+1)}')
        a(f'buffer_store_dwordx4 {R(o,4)}, v2, s[8:11], s22 offen {WST}')
        a('s_add_u32 s22, s22, 57344')
    hooks.signal(a, ('h', 's14'))

def red_g(a, x, t, op):
    for sw in ('v_permlane16_swap_b32', 'v_permlane32_swap_b32'):
        a(f'v_mov_b32 {R(t)}, {R(x)}')
        a(f'{sw} {R(x)}, {R(t)}')
        a(f'{op} {R(x)}, {R(x)}, {R(t)}')

def gen_token(a, hooks, nitems=2, seg0='s14', segstep=32):
    lane_setup(a)
    def WD(t, ks): return 256 + 4 * (14 * t + ks)
    srd(a, 44, 80, 1792 * 896)
    phase0.raw_lane(a, 'v6', 'v7', 896)
    a(f's_mul_i32 s18, s13, {448*896}')
    a('s_lshl_b32 s20, s15, 7')
    a('s_add_u32 s18, s18, s20')
    a('s_mul_i32 s19, s13, 14336')
    a('s_lshl_b32 s21, s19, 1')
    a('v_lshrrev_b32 v9, 2, v3')
    a('v_bfe_u32 v10, v3, 1, 1')
    a('v_xor_b32 v10, v10, v9')
    a('v_lshlrev_b32 v10, 4, v10')
    a('v_lshl_add_u32 v10, v9, 7, v10')
    a('v_lshl_add_u32 v10, v4, 10, v10')
    a('v_and_b32 v9, 1, v3')
    a('v_lshl_add_u32 v10, v9, 3, v10')
    a('v_add_u32 v10, s21, v10')
    a('v_xor_b32 v11, 32, v10')
    a('s_waitcnt lgkmcnt(0)')
    for rd in range(2):
        for i in range(28):
            a(f's_add_u32 m0, s21, {i*1024}')
            a(f's_add_u32 s20, s18, {(224*rd + 8*i)*896}')
            a('buffer_load_dwordx4 v6, s[44:47], s20 offen lds')
        a('s_waitcnt vmcnt(0)')
        for k in range(7):
            for t in range(4):
                for hf in range(2):
                    a(f'ds_read_b64_tr_b16 {R(WD(t,7*rd+k)+2*hf,2)}, v{10 + t%2} offset:{k*4096 + hf*512 + ((t//2)^hf)*64}')
        a('s_waitcnt lgkmcnt(0)')
    a('s_barrier')
    a('v_lshlrev_b32 v5, 2, v4')
    for r in range(4):
        a(f'v_add_u32 v6, {r}, v5')
        a(f'v_cmp_le_u32 s[{48+2*r}:{49+2*r}], v6, v3')
    for hl in range(4):
        a(f'v_cmp_eq_u32 s[{60+2*hl}:{61+2*hl}], {hl}, v4')
    a('v_lshlrev_b32 v7, 10, v4')
    a('v_lshl_add_u32 v7, v3, 5, v7')
    a('v_mul_u32_u24 v15, 7168, v4')
    a('v_lshl_add_u32 v15, v3, 4, v15')
    a('v_lshlrev_b32 v8, 2, v3')
    a('v_lshrrev_b32 v9, 3, v0')
    a('v_and_b32 v10, 7, v0')
    a('v_mul_u32_u24 v11, 896, v9')
    a('v_lshl_add_u32 v11, v10, 4, v11')
    a('v_lshrrev_b32 v12, 4, v9')
    a('v_lshlrev_b32 v12, 12, v12')
    a('v_lshl_add_u32 v12, v10, 9, v12')
    a('v_and_b32 v9, 15, v9')
    a('v_lshl_add_u32 v12, v9, 4, v12')
    a('s_lshl_b32 s20, s13, 13')
    a('v_add_u32 v13, s20, v2')
    a(f'v_mov_b32 v14, {f2u(-1e30)}')
    a(f's_mov_b32 s28, {seg0}')
    a(f's_mov_b32 s29, {nitems}')
    HF = 16; VF = 128; UF = 192; XX = 208; AC = 256 + 224
    L = a.newlabel('TOK')
    a.label(L); a.reset_hist()
    hooks.wait(a, ('h', 's28'))
    hooks.wait(a, ('kv', 's28'))
    a(f's_mul_i32 s20, s28, {2*57344}')
    a('s_add_u32 s20, s20, s19')
    a(f's_add_u32 s20, s20, {HIMG}')
    for qt in range(2):
        for ks in range(14):
            if ks % 4 == 0: a(f's_add_u32 s21, s20, {qt*57344 + ks*1024}')
            a(f'buffer_load_dwordx4 {R(HF+4*(14*qt+ks),4)}, v2, s[8:11], s21 offen offset:{(ks%4)*1024} {WLD}')
    a('s_mul_i32 s20, s28, 28')
    a('s_lshl_b32 s21, s15, 2')
    a('s_add_u32 s22, s20, s21')
    a('s_lshl_b32 s20, s22, 14')
    a('s_lshl_b32 s21, s13, 12')
    a('s_add_u32 s20, s20, s21')
    a(f's_add_u32 s20, s20, {VIMG}')
    for t in range(4):
        for hl in range(4):
            a(f'buffer_load_dwordx4 {R(VF+4*(4*t+hl),4)}, v2, s[8:11], s20 offen offset:{hl*1024} {WLD}')
        a('s_add_u32 s20, s20, 16384')
    a('s_lshl_b32 s23, s28, 4')
    a('s_lshl_b32 s21, s13, 2')
    a('s_add_u32 s23, s23, s21')
    a('s_mul_i32 s20, s23, 3072')
    a(f's_add_u32 s20, s20, {SXX}')
    for i in range(12):
        if i and i % 4 == 0: a('s_add_u32 s20, s20, 4096')
        a(f'buffer_load_dwordx4 {R(XX+4*i,4)}, v2, s[8:11], s20 offen offset:{(i%4)*1024} {WLD}')
    a('s_lshl_b32 s20, s28, 7')
    a(f's_add_u32 s20, s20, {GVEC}')
    a(f'buffer_load_dword v5, v8, s[8:11], s20 offen {WLD}')
    a(f'buffer_load_dword v6, v8, s[8:11], s20 offen offset:64 {WLD}')
    a('s_waitcnt vmcnt(30)')
    for ks in range(14):
        for qt in range(2):
            for t in range(4):
                d = AC + 4 * (4 * qt + t)
                a(f'{MF} {R(d,4)}, {R(WD(t,ks),4)}, {R(HF+4*(14*qt+ks),4)}, {"0" if ks == 0 else R(d,4)}')
    XM = 16; PX = 48; PMF = 96; m = 104; l = 105; t0 = 106; t1 = 107; MX = 80; LX = 82; FF = 84
    a('s_waitcnt vmcnt(0)')
    def xsl(hl, qt): return [XX + 12 * hl + r for r in range(4)] if qt == 0 else [XX + 12 * hl + 4 + r for r in range(8)]
    def maxall(dst, al):
        a(f'v_max3_f32 {R(dst)}, {R(al[0])}, {R(al[1])}, {R(al[2])}')
        i = 3
        while i < len(al):
            if i + 1 < len(al):
                a(f'v_max3_f32 {R(dst)}, {R(dst)}, {R(al[i])}, {R(al[i+1])}'); i += 2
            else:
                a(f'v_max_f32 {R(dst)}, {R(dst)}, {R(al[i])}'); i += 1
    for hl in range(4):
        for qt in range(2):
            xs = xsl(hl, qt); diag = xs[-4:]
            for r in range(4):
                a(f'v_cndmask_b32 {R(diag[r])}, v14, {R(diag[r])}, s[{48+2*r}:{49+2*r}]')
            maxall(m, xs)
            red_g(a, m, t0, 'v_max_f32')
            for x in xs: a(f'v_sub_f32 {R(x)}, {R(x)}, {R(m)}')
            for x in xs: a(f'v_exp_f32 {R(x)}, {R(x)}')
            a(f'v_add_f32 {R(l)}, {R(xs[0])}, {R(xs[1])}')
            for x in xs[2:]: a(f'v_add_f32 {R(l)}, {R(l)}, {R(x)}')
            red_g(a, l, t0, 'v_add_f32')
            a(f'v_cndmask_b32 {R(MX+qt)}, {R(MX+qt)}, {R(m)}, s[{60+2*hl}:{61+2*hl}]')
            a(f'v_cndmask_b32 {R(LX+qt)}, {R(LX+qt)}, {R(l)}, s[{60+2*hl}:{61+2*hl}]')
    a('s_lshl_b32 s20, s23, 10')
    a(f's_add_u32 s20, s20, {SXM}')
    a('s_mul_i32 s21, s23, 7168')
    a('s_lshl_b32 s22, s15, 10')
    a('s_add_u32 s21, s21, s22')
    a(f's_add_u32 s21, s21, {UIMG}')
    hooks.wait(a, ('mir', 's28'))
    for i in range(4):
        a(f'buffer_load_dwordx4 {R(XM+4*i,4)}, v7, s[8:11], s20 offen offset:{(i//2)*512 + (i%2)*16} {WLD}')
    for t in range(4):
        a(f'buffer_load_dwordx4 {R(UF+4*t,4)}, v15, s[8:11], s21 offen offset:{t*256} {WLD}')
    for qt in range(2):
        a(f's_waitcnt vmcnt({6 - 2*qt})')
        ms = [XM + 8 * qt + r for r in range(8)]
        maxall(m, ms + [MX + qt])
        for x in ms + [MX + qt]: a(f'v_sub_f32 {R(x)}, {R(x)}, {R(m)}')
        for x in ms + [MX + qt]: a(f'v_exp_f32 {R(x)}, {R(x)}')
        a(f'v_add_f32 {R(l)}, {R(ms[0])}, {R(ms[1])}')
        a(f'v_add_f32 {R(t1)}, {R(ms[2])}, {R(ms[3])}')
        for i in (4, 6):
            a(f'v_add_f32 {R(l)}, {R(l)}, {R(ms[i])}')
            a(f'v_add_f32 {R(t1)}, {R(t1)}, {R(ms[i+1])}')
        a(f'v_fma_f32 {R(l)}, {R(LX+qt)}, {R(MX+qt)}, {R(l)}')
        a(f'v_add_f32 {R(l)}, {R(l)}, {R(t1)}')
        a(f'v_rcp_f32 {R(l)}, {R(l)}')
        a(f'v_mul_f32 {R(l)}, {R(l)}, {R(5+qt)}')
        a(f'v_mul_f32 {R(MX+qt)}, {R(MX+qt)}, {R(l)}')
        f = FF + 4 * qt
        a(f'v_mov_b32 {R(f)}, {R(MX+qt)}')
        a(f'v_mov_b32 {R(f+1)}, {R(MX+qt)}')
        for x in ms[:4]: a(f'v_mul_f32 {R(x)}, {R(x)}, {R(l)}')
        a(f'v_permlane16_swap_b32 {R(f)}, {R(f+1)}')
        a(f'v_mov_b32 {R(f+2)}, {R(f)}')
        a(f'v_mov_b32 {R(f+3)}, {R(f+1)}')
        for x in ms[4:]: a(f'v_mul_f32 {R(x)}, {R(x)}, {R(l)}')
        a(f'v_permlane32_swap_b32 {R(f)}, {R(f+2)}')
        a(f'v_permlane32_swap_b32 {R(f+1)}, {R(f+3)}')
        for q in range(4):
            a(f'v_cvt_pk_bf16_f32 {R(PMF+4*qt+q)}, {R(ms[2*q])}, {R(ms[2*q+1])}')
        for hl in range(4):
            xs = xsl(hl, qt)
            for x in xs: a(f'v_mul_f32 {R(x)}, {R(x)}, {R(f+hl)}')
            p = PX + 4 * (2 * hl + qt)
            for r in range(4):
                a(f'v_cvt_pk_bf16_f32 {R(p+r)}, {R(xs[r])}, {R(xs[4+r]) if qt else 0}')
            for t in range(4):
                d = AC + 4 * (4 * qt + t)
                a(f'{MF} {R(d,4)}, {R(VF+4*(4*t+hl),4)}, {R(p,4)}, {R(d,4)}')
    a('s_waitcnt vmcnt(0)')
    for qt in range(2):
        for t in range(4):
            d = AC + 4 * (4 * qt + t)
            a(f'{MF} {R(d,4)}, {R(UF+4*t,4)}, {R(PMF+4*qt,4)}, {R(d,4)}')
    for i in range(8):
        a(f'ds_write_b128 v13, {R(AC+4*i,4)} offset:{i*1024}')
    a('s_waitcnt lgkmcnt(0)')
    a('s_barrier')
    for w in range(4):
        for hf in range(2):
            a(f'ds_read_b128 {R(16+8*w+4*hf,4)}, v12 offset:{w*8192 + hf*256}')
    a(f's_mul_i32 s20, s28, {32*896}')
    a('s_lshl_b32 s21, s15, 7')
    a('s_add_u32 s20, s20, s21')
    a('s_waitcnt lgkmcnt(0)')
    a('s_barrier')
    for r in range(8):
        a(f'v_add_f32 {R(16+r)}, {R(16+r)}, {R(24+r)}')
        a(f'v_add_f32 {R(32+r)}, {R(32+r)}, {R(40+r)}')
    for r in range(8): a(f'v_add_f32 {R(16+r)}, {R(16+r)}, {R(32+r)}')
    for q in range(4): a(f'v_cvt_pk_bf16_f32 {R(108+q)}, {R(16+2*q)}, {R(16+2*q+1)}')
    a('buffer_store_dwordx4 v[108:111], v11, s[36:39], s20 offen')
    a(f's_add_u32 s28, s28, {segstep}')
    a('s_cmp_lt_u32 s28, 64')
    a(f's_cbranch_scc1 {L}')
```

```python
import sys, os
from asmlib import *
from layout import *
import prep, workers, team2
from prep import srd
from team2 import F_KV, F_MIR, F_H, F_W, F_X
import phase0
team2.MEGA = True; team2.SPARE_PF = 1
for k_, v_ in dict(A_SLEEP=4, CDEPTH=2, PDEPTH=2, PSTAG=2, C_SLEEP=4, C_PF=1).items(): setattr(team2, k_, v_)
OPT = dict(FORCE_SLOW=0, TIMING=0, STATIC=0)
for kv in sys.argv[1:]:
    if '=' in kv:
        k_, v_ = kv.split('=')
        if k_ in OPT: OPT[k_] = eval(v_)
        else: setattr(team2, k_, eval(v_))
workers.WINSTR = bool(OPT['TIMING'])
workers.WST = 'sc1'; workers.WLD = 'sc1'
REF = open('gated_mix__memory_aug_recurrent_mem_tr__swiglu_ffn__prompt.s.ref').read()
head_comments = ''.join(l + '\n' for l in REF.split('\n') if l.startswith(';') and '@launch' not in l and 'Override launch' not in l and 'grid=ceil' not in l)
def kbegin(name): return f".globl {name}\n.p2align 8\n.type {name},@function\n{name}:\n"
def kdesc(name, vg=512, acc=256, sg=96):
    return f""".amdhsa_kernel {name}
  .amdhsa_next_free_vgpr {vg}
  .amdhsa_next_free_sgpr {sg}
  .amdhsa_accum_offset {acc}
  .amdhsa_group_segment_fixed_size 0
  .amdhsa_kernarg_size 120
  .amdhsa_user_sgpr_count 2
  .amdhsa_user_sgpr_kernarg_segment_ptr 1
  .amdhsa_system_sgpr_workgroup_id_x 1
.end_amdhsa_kernel
"""
EXIT = 'MEGA_EXIT'
SPINW = 4000000
def tmark(a, k):
    if not OPT['TIMING']: return
    a('s_memrealtime s[80:81]')
    a('s_waitcnt lgkmcnt(0)')
    a('s_lshl_b32 s82, s83, 6')
    a(f's_add_u32 s82, s82, {DBG + 4*k}')
    a('v_mov_b32 v15, s80')
    a('buffer_store_dword v15, off, s[8:11], s82')
class H(workers.Hooks):
    def guard(self, a):
        a('s_add_u32 s35, s35, 1')
        a(f's_cmp_gt_u32 s35, {SPINW}')
        a(f's_cbranch_scc1 {EXIT}')
    def flag(self, a, soff):
        a('v_mov_b32 v15, 1')
        a('s_mov_b64 exec, 1')
        a(f'buffer_store_dword v15, off, s[8:11], {soff} sc1')
        a('s_mov_b64 exec, -1')
    def poll(self, a, t, wide, addr, sleep):
        L = a.newlabel('WF')
        a('s_mov_b32 s35, 0')
        for x in addr: a(x)
        Lf = a.newlabel('WF0')
        a(f's_branch {Lf}')
        a.label(L)
        a(f's_sleep {sleep}')
        a.label(Lf)
        if wide: a(f'buffer_load_dwordx2 {R(t+2,2)}, {R(t)}, s[8:11], s30 offen sc1')
        else: a(f'buffer_load_dword {R(t+2)}, {R(t)}, s[8:11], s30 offen sc1')
        self.guard(a)
        a('s_waitcnt vmcnt(0)')
        if wide: a(f'v_min_u32 {R(t+2)}, {R(t+2)}, {R(t+3)}')
        a(f'v_cmp_eq_u32 vcc, 0, {R(t+2)}')
        a(f's_cbranch_vccnz {L}')
    def wait(self, a, what):
        k = what[0]
        if k == 'h':
            self.poll(a, 16, False, [f's_lshr_b32 s30, {what[1]}, 2', 's_lshl_b32 s30, s30, 8', f's_add_u32 s30, s30, {F_H}',
                                     'v_min_u32 v16, 55, v1', 'v_lshlrev_b32 v16, 2, v16'], 16)
        elif k == 'kv':
            self.poll(a, 16, True, [f's_lshl_b32 s30, {what[1]}, 9', f's_add_u32 s30, s30, {F_KV}', 'v_lshlrev_b32 v16, 3, v1'], 16)
        elif k == 'mir':
            self.poll(a, 112, True, [f's_lshr_b32 s30, {what[1]}, 1', 's_lshl_b32 s30, s30, 9', f's_add_u32 s30, s30, {F_MIR}',
                                     'v_lshlrev_b32 v112, 3, v1'], 4)
        elif k == 'mem0':
            L = a.newlabel('WM'); Lf = a.newlabel('WM0')
            r = what[1]
            a(f's_branch {Lf}')
            a.label(L)
            a('s_sleep 2')
            a.label(Lf)
            a(f'buffer_load_dwordx4 {R(r,4)}, v14, s[8:11], s26 offen offset:1024 sc1')
            self.guard(a)
            a('s_waitcnt vmcnt(0)')
            a(f'v_cmp_eq_u32 vcc, -1, {R(r+3)}')
            a(f's_cbranch_vccnz {L}')
        elif k == 'mem1':
            self.guard(a)
            first = True
            for ks in range(14):
                a(f's_waitcnt vmcnt({14-ks})')
                for x in team2.acc_max(15, range(workers.MFR[ks], workers.MFR[ks] + 4), first): a(x)
                first = False
            a('v_cmp_eq_u32 vcc, -1, v15')
            a(f's_cbranch_vccnz {what[1]}')
    def signal(self, a, what):
        k = what[0]
        if k == 'kv':
            a('s_lshl_b32 s34, s28, 9')
            a('s_lshl_b32 s33, s14, 4')
            a('s_add_u32 s34, s34, s33')
            a('s_lshl_b32 s33, s13, 2')
            a('s_add_u32 s34, s34, s33')
            a(f's_add_u32 s34, s34, {F_KV}')
        elif k == 'kvmid':
            L = a.newlabel('NF')
            a('s_cmp_eq_u32 s34, 0')
            a(f's_cbranch_scc1 {L}')
            a('s_waitcnt vmcnt(0)')
            self.flag(a, 's34')
            a.label(L)
        elif k == 'mir':
            a('s_lshl_b32 s34, s28, 9')
            a('s_lshl_b32 s33, s14, 4')
            a('s_add_u32 s34, s34, s33')
            a('s_lshl_b32 s33, s13, 2')
            a('s_add_u32 s34, s34, s33')
            a(f's_add_u32 s34, s34, {F_MIR}')
        elif k == 'pend':
            L = a.newlabel('NF')
            a('s_cmp_eq_u32 s34, 0')
            a(f's_cbranch_scc1 {L}')
            a(f's_waitcnt vmcnt({what[1]})')
            self.flag(a, 's34')
            a('s_mov_b32 s34, 0')
            if what[1]:
                L2 = a.newlabel('NF2')
                a(f's_branch {L2}')
                a.label(L)
                a('buffer_load_dword v11, off, s[8:11], s26 sc1')
                a.label(L2)
            else:
                a.label(L)
        elif k == 'h':
            a('s_lshl_b32 s34, s14, 1')
            a('s_lshr_b32 s33, s13, 1')
            a('s_add_u32 s34, s34, s33')
            a('s_lshl_b32 s34, s34, 8')
            a('s_lshl_b32 s33, s16, 2')
            a('s_add_u32 s34, s34, s33')
            a(f's_add_u32 s34, s34, {F_H}')
            a('s_waitcnt vmcnt(0)')
            self.flag(a, 's34')
hooks = H()
a = Asm()
NAME = 'gated_mix__memory_aug_recurrent_mem_tr__swiglu_ffn__prompt_kernel'
def wait_init(a):
    L = a.newlabel('WI')
    a('s_mov_b32 s35, 0')
    a('v_mov_b32 v16, 0')
    a.label(L)
    a('global_load_dword v17, v16, s[4:5] sc1')
    hooks.guard(a)
    a('s_waitcnt vmcnt(0)')
    a('v_cmp_eq_u32 vcc, 0, v17')
    a(f's_cbranch_vccnz {L}')
def wait_x(a):
    hooks.poll(a, 16, True, [f's_mov_b32 s30, {F_X}', 'v_lshlrev_b32 v16, 3, v1'], 2)
def wait_unit(a, us):
    hooks.poll(a, 16, False, [f's_lshl_b32 s30, {us}, 7', f's_add_u32 s30, s30, {F_W}', 'v_min_u32 v16, 27, v1', 'v_lshlrev_b32 v16, 2, v16'], 2)
a.raw(kbegin(NAME)); a.reset_hist()
a('s_cmp_ge_u32 s2, 256')
a(f's_cbranch_scc1 {EXIT}')
srd(a, 8, 112, WS_BYTES)
a('s_load_dwordx2 s[4:5], s[0:1], 104')
a('v_readfirstlane_b32 s13, v0')
a('s_lshr_b32 s13, s13, 6')
if OPT['FORCE_SLOW']:
    a('s_mov_b32 s12, s2')
else:
    a('s_and_b32 s12, s2, 7')
    a('s_lshl_b32 s12, s12, 5')
    a('s_lshr_b32 s3, s2, 3')
    a('s_add_u32 s12, s12, s3')
a('s_mov_b32 s83, s12')
a('s_waitcnt lgkmcnt(0)')
tmark(a, 0)
a('s_cmp_ge_u32 s12, 32')
a('s_cbranch_scc1 WORKER')
a('s_cmp_lg_u32 s12, 30')
a('s_cbranch_scc1 NOINIT')
a('v_lshlrev_b32 v2, 4, v0')
for r in range(4): a(f'v_mov_b32 v{8+r}, 0')
for k in range(16):
    a(f's_mov_b32 s18, {FLAGS + k*4096}')
    a('buffer_store_dwordx4 v[8:11], v2, s[8:11], s18 offen sc1')
a('s_waitcnt vmcnt(0)')
a('s_barrier')
a('v_mov_b32 v12, 1')
a('s_mov_b64 exec, 1')
a('global_store_dword v8, v12, s[4:5] sc1')
a('s_mov_b64 exec, -1')
a.label('NOINIT')
phase0.gen_misc(a)
wait_init(a)
a('s_lshl_b32 s34, s20, 2')
a(f's_add_u32 s34, s34, {F_X}')
hooks.flag(a, 's34')
a('s_getreg_b32 s3, hwreg(HW_REG_XCC_ID)')
a('s_and_b32 s3, s3, 15')
a('s_mul_i32 s41, s3, s3')
a('s_lshl_b32 s41, s41, 16')
a('s_lshl_b32 s3, s3, 6')
a('s_add_u32 s41, s41, s3')
a('s_add_u32 s41, s41, 1')
a('s_cmp_lt_u32 s12, 16')
a('s_cbranch_scc1 ROLE_A')
wait_x(a)
a('s_mov_b32 s26, 0')
a('s_cmp_ge_u32 s12, 30')
a('s_cbranch_scc1 ROLE_P')
hooks.poll(a, 16, False, ['s_sub_u32 s30, s12, 16', 's_lshr_b32 s30, s30, 1', 's_lshl_b32 s30, s30, 4', f's_add_u32 s30, s30, {F_W + 16*128}',
                          'v_lshrrev_b32 v16, 2, v1', 'v_lshlrev_b32 v16, 7, v16', 'v_and_b32 v17, 3, v1', 'v_lshl_add_u32 v16, v17, 2, v16'], 2)
srd(a, 32, 8, 7168)
a('s_waitcnt lgkmcnt(0)')
tmark(a, 3)
a('s_branch ROLE_C')
a.label('ROLE_A'); a.reset_hist()
wait_unit(a, 's12')
a('s_mov_b32 s26, 0')
tmark(a, 3)
stamp = (lambda a, k: tmark(a, 1 + k)) if OPT['TIMING'] else None
team2.gen_A(a, EXIT, stamp)
a.label('ROLE_C'); a.reset_hist()
a('s_sub_u32 s12, s12, 16')
team2.gen_C(a, EXIT, stamp)
a.label('ROLE_P'); a.reset_hist()
a('s_sub_u32 s12, s12, 30')
team2.gen_spare(a, EXIT)
a.label('WORKER'); a.reset_hist()
a('s_sub_u32 s12, s12, 32')
workers.kv_setup(a)
a('s_cmp_ge_u32 s14, 16')
a('s_cbranch_scc1 W_P0V')
phase0.gen_phase0(a, True)
a('s_branch W_P0D')
a.label('W_P0V'); a.reset_hist()
phase0.gen_phase0(a, False)
a.label('W_P0D'); a.reset_hist()
a('s_nop 1')
wait_init(a)
a('s_lshl_b32 s34, s14, 7')
a('s_lshl_b32 s33, s15, 4')
a('s_add_u32 s34, s34, s33')
a('s_lshl_b32 s33, s13, 2')
a('s_add_u32 s34, s34, s33')
a(f's_add_u32 s34, s34, {F_W}')
hooks.flag(a, 's34')
tmark(a, 4)
wait_x(a)
wait_unit(a, 's14')
tmark(a, 5)
workers.kv_weights(a)
a('s_barrier')
a('s_cmp_ge_u32 s14, 16')
a('s_cbranch_scc1 W_V')
workers.gen_kv(a, hooks, True)
tmark(a, 1)
a('s_cmp_lg_u32 s15, 6')
a('s_cbranch_scc1 W_H')
workers.gen_mirror(a, hooks, True, 0, 1, MEMX)
tmark(a, 2)
a(f's_branch {EXIT}')
a.label('W_V'); a.reset_hist()
workers.gen_kv(a, hooks, False)
tmark(a, 1)
a('s_cmp_lg_u32 s15, 6')
a('s_cbranch_scc1 W_H')
workers.gen_mirror(a, hooks, False, 0, 1, MEMX)
tmark(a, 2)
a(f's_branch {EXIT}')
a.label('W_H'); a.reset_hist(); a.flush()
a('s_mul_i32 s12, s14, 6')
a('s_add_u32 s12, s12, s15')
a('s_mov_b32 s58, s12')
a.label('W_HL'); a.reset_hist()
workers.gen_H(a, hooks, 's58')
a('s_add_u32 s58, s58, 32')
a('s_cmp_lt_u32 s58, 192')
a('s_cbranch_scc1 W_T')
a('s_cmp_lt_u32 s58, 224')
a('s_cbranch_scc1 W_HL')
a.label('W_T'); a.reset_hist()
tmark(a, 2)
a('s_cmp_ge_u32 s12, 189')
a(f's_cbranch_scc1 {EXIT}')
srd(a, 36, 96, 2048 * 896)
a('s_mul_i32 s14, s12, 9363')
a('s_lshr_b32 s14, s14, 16')
a('s_mul_i32 s15, s14, 7')
a('s_sub_u32 s15, s12, s15')
a('s_waitcnt lgkmcnt(0)')
a('s_barrier')
workers.gen_token(a, hooks, 0, 's14', 27)
tmark(a, 3)
a.label(EXIT); a('s_endpgm')

out = head_comments + f'; @launch grid=(256,1,1) block=(256,1,1) lds={phase0.P0_LDS}\n'
out += '.amdgcn_target "amdgcn-amd-amdhsa--gfx950"\n.text\n' + a.text() + '.section .rodata,"a"\n.p2align 6\n' + kdesc(NAME)
open(os.environ.get('OUT', 'mega.s'), 'w').write(out)
print('lines', len(a.lines), 'nops', a.nops_added, 'bytes', len(out))
```

```python
from asmlib import *
from layout import *
from prep import f2u, LOG2E, srd
MF = 'v_mfma_f32_16x16x32_bf16'
WSZ = 448 * 4096 * 2
P0_LDS = 163840
B_OFF = 131072
TOUCH = 1
WT = lambda a, k: None
def gen_phase0(a, isK):
    WT(a, 0)
    srd(a, 44, 24 if isK else 32, WSZ)
    srd(a, 48, 16 if isK else 40, WSZ)
    a('s_lshl_b32 s23, s13, 2')
    a('s_min_u32 s23, s23, 10')
    a('v_lshrrev_b32 v5, 5, v1')
    a('v_and_b32 v6, 31, v1')
    a('v_lshlrev_b32 v6, 4, v6')
    a('v_lshlrev_b32 v7, 6, v5')
    a('v_xor_b32 v6, v6, v7')
    a('v_lshl_add_u32 v6, v5, 13, v6')
    a('v_xor_b32 v7, 128, v6')
    if not isK: raw_lane(a, 'v8', 'v9', 896)
    a('s_lshl_b32 s17, s16, 9')
    a('s_lshl_b32 s18, s23, 18')
    a('s_add_u32 s18, s18, s17')
    if isK:
        a('s_lshl_b32 s19, s15, 19')
        a('s_lshl_b32 s20, s13, 17')
        a('s_add_u32 s19, s19, s20')
        a('s_add_u32 s19, s19, s17')
    else:
        a(f's_mul_i32 s19, s16, {256*896}')
        a(f's_mul_i32 s20, s13, {64*896}')
        a('s_add_u32 s19, s19, s20')
        a('s_lshl_b32 s20, s15, 7')
        a('s_add_u32 s19, s19, s20')
    a('s_lshl_b32 s21, s13, 15')
    a('s_lshl_b32 s22, s13, 13')
    a(f's_add_u32 s22, s22, {B_OFF}')
    a('v_lshrrev_b32 v9, 2, v1')
    a('v_lshlrev_b32 v9, 13, v9')
    a('v_and_b32 v10, 3, v1')
    a('v_lshl_add_u32 v9, v10, 7, v9')
    a('s_lshl_b32 s24, s15, 19')
    a('s_lshl_b32 s25, s13, 17')
    a('s_add_u32 s24, s24, s25')
    a('s_add_u32 s24, s24, s17')
    a('s_waitcnt lgkmcnt(0)')
    if TOUCH: a('buffer_load_dword v11, v9, s[44:47], s24 offen')
    for i in range(8):
        a(f's_add_u32 m0, s22, {i*1024}')
        if isK:
            a(f's_add_u32 s24, s19, {i*2*8192}')
            a(f'buffer_load_dwordx4 v{6 + i%2}, s[48:51], s24 offen lds')
        else:
            a(f's_add_u32 s24, s19, {8*i*896}')
            a('buffer_load_dwordx4 v8, s[48:51], s24 offen lds')
    def prot(p, dst, sh):
        return [f's_add_u32 {dst}, s15, {p}', f's_and_b32 {dst}, {dst}, 3', f's_lshl_b32 {dst}, {dst}, {sh}']
    def dma(p):
        out = prot(p, 's28', 18) + ['s_add_u32 s28, s28, s18']
        for i in range(16):
            out += [f's_add_u32 m0, s21, {(p%2)*16384 + i*1024}', f's_add_u32 s24, s28, {i*2*8192}',
                    f'buffer_load_dwordx4 v{6 + i%2}, s[44:47], s24 offen lds']
        return out
    if TOUCH == 2: a('s_waitcnt vmcnt(8)')
    for x in dma(0) + dma(1): a(x)
    WT(a, 1)
    a('v_lshrrev_b32 v9, 2, v3')
    a('v_lshlrev_b32 v9, 12, v9')
    a('v_and_b32 v10, 3, v3')
    a('v_lshl_add_u32 v9, v10, 9, v9')
    a('v_lshl_add_u32 v9, v10, 6, v9')
    a('v_lshl_add_u32 v9, v4, 4, v9')
    BF = 256; AF = 16; ACC = 80; OUT = 144
    a('s_waitcnt vmcnt(32)')
    a('s_barrier')
    if isK:
        for k in range(4):
            a(f'v_xor_b32 v{12+k}, {64*k}, v9')
            a(f'v_add_u32 v{12+k}, {B_OFF}, v{12+k}')
        for es in range(8):
            for t in range(4):
                a(f'ds_read_b128 {R(BF+16*es+4*t,4)}, v{12 + es%4} offset:{(t//2)*16384 + (t%2)*2048 + (es//4)*256}')
    else:
        tr_lane(a, 'v12', 'v10')
        a(f'v_add_u32 v12, {B_OFF}, v12')
        a('v_xor_b32 v13, 64, v12')
        for es in range(8):
            for t in range(4):
                for hf in range(2):
                    a(f'ds_read_b64_tr_b16 {R(BF+16*es+4*t+2*hf,2)}, v{12 + t//2} offset:{es*4096 + hf*512 + (t%2)*32}')
    for k in range(4):
        a(f'v_xor_b32 v{12+k}, {64*k}, v9')
        a(f'v_add_u32 v{12+k}, s21, v{12+k}')
    a(f's_mul_i32 s29, s14, {MAT}')
    a(f's_mul_i32 s25, s15, {4*14336}')
    a('s_add_u32 s29, s29, s25')
    a('s_lshl_b32 s25, s23, 10')
    a('s_add_u32 s29, s29, s25')
    if isK:
        a(f's_mov_b32 s26, {f2u(LOG2E/16)}')
    def acc(p, b, t): return ACC + 32 * (p % 2) + 4 * (4 * b + t)
    def epi(p):
        out = prot(p, 's27', 10) + ['s_add_u32 s27, s27, s29']
        for t in range(4):
            o = OUT + 4 * t
            for b in range(2):
                r = acc(p, b, t)
                if isK: out += [f'v_mul_f32 {R(r+q)}, s26, {R(r+q)}' for q in range(4)]
                out += [f'v_cvt_pk_bf16_f32 {R(o+2*b+q)}, {R(r+2*q)}, {R(r+2*q+1)}' for q in range(2)]
            out.append(f'buffer_store_dwordx4 {R(o,4)}, v2, s[8:11], s27 offen sc1')
            if t < 3: out.append('s_add_u32 s27, s27, 14336')
        return out
    NV = [16, 16, 20, 4]
    for p in range(4):
        a(f's_waitcnt vmcnt({NV[p]})')
        WT(a, 2 + p)
        for es in range(8):
            for b in range(2):
                a(f'ds_read_b128 {R(AF+8*es+4*b,4)}, v{12 + es%4} offset:{(p%2)*16384 + b*2048 + (es//4)*256}')
        fe = epi(p - 1) if p else []
        fd = dma(p + 2) if p + 2 < 4 else []
        k = 0
        for es in range(8):
            a(f's_waitcnt lgkmcnt({max(0, 12 - 4*es)})' if es < 4 else 's_nop 0')
            for b in range(2):
                for t in range(4):
                    c = '0' if es == 0 else R(acc(p, b, t), 4)
                    a(f'{MF} {R(acc(p,b,t),4)}, {R(AF+8*es+4*b,4)}, {R(BF+16*es+4*t,4)}, {c}')
                    k += 1
                    if es < 4:
                        for _ in range(2):
                            while fe:
                                x = fe.pop(0); a(x)
                                if not x.startswith('s_'): break
                    elif k % 2 == 0:
                        while fd:
                            x = fd.pop(0); a(x)
                            if not x.startswith('s_'): break
        assert not fe and not fd
    WT(a, 6)
    for x in epi(3): a(x)
    WT(a, 7)

def gen_misc(a):
    a('v_and_b32 v1, 63, v0')
    a('v_lshlrev_b32 v2, 4, v1')
    a('v_and_b32 v3, 15, v1')
    a('v_lshrrev_b32 v4, 4, v1')
    a('s_lshl_b32 s20, s12, 2')
    a('s_add_u32 s20, s20, s13')
    srd(a, 44, 0, 2048 * 896)
    srd(a, 48, 88, 896)
    a('v_mul_u32_u24 v5, 896, v3')
    a('v_lshl_add_u32 v5, v4, 4, v5')
    a('v_lshlrev_b32 v6, 4, v4')
    a(f's_mul_i32 s21, s20, {16*896}')
    a('s_waitcnt lgkmcnt(0)')
    XF = 16; GF = 72
    for ks in range(14):
        a(f'buffer_load_dwordx4 {R(XF+4*ks,4)}, v5, s[44:47], s21 offen offset:{ks*64}')
    for ks in range(14):
        a(f'buffer_load_dwordx4 {R(GF+4*ks,4)}, v6, s[48:51], 0 offen offset:{ks*64}')
    for r in range(4): a(f'v_mov_b32 v{128+r}, -1')
    a('s_mul_i32 s22, s20, 3584')
    for base in (MEMNAT, MEMX):
        a(f's_add_u32 s23, s22, {base}')
        for k in range(4):
            a(f'buffer_store_dwordx4 v[128:131], v2, s[8:11], s23 offen offset:{min(k*1024, 2560)} sc1')
    a(f's_add_u32 s22, s21, {XIMG}')
    a('s_waitcnt vmcnt(8)')
    for ks in range(14):
        if ks and ks % 4 == 0: a('s_add_u32 s22, s22, 4096')
        a(f'buffer_store_dwordx4 {R(XF+4*ks,4)}, v2, s[8:11], s22 offen offset:{(ks%4)*1024} sc1')
        a(f'{MF} v[8:11], {R(GF+4*ks,4)}, {R(XF+4*ks,4)}, {"0" if ks == 0 else "v[8:11]"}')
    a(f's_mov_b32 s23, {f2u(-LOG2E)}')
    a('v_mul_f32 v12, s23, v8')
    a('v_exp_f32 v12, v12')
    a('v_add_f32 v12, 1.0, v12')
    a('v_rcp_f32 v12, v12')
    a('v_lshlrev_b32 v13, 2, v3')
    a('s_lshl_b32 s22, s20, 6')
    a(f's_add_u32 s22, s22, {GVEC}')
    a('s_mov_b64 exec, 0xffff')
    a('buffer_store_dword v12, v13, s[8:11], s22 offen sc1')
    a('s_mov_b64 exec, -1')

def raw_lane(a, vdst, vt, stride):
    a(f'v_lshrrev_b32 {vt}, 3, v1')
    a(f'v_mul_u32_u24 {vdst}, {stride}, {vt}')
    a(f'v_bfe_u32 {vt}, v1, 4, 1')
    a(f'v_lshlrev_b32 {vt}, 2, {vt}')
    a(f'v_xor_b32 {vt}, {vt}, v1')
    a(f'v_and_b32 {vt}, 7, {vt}')
    a(f'v_lshl_add_u32 {vdst}, {vt}, 4, {vdst}')

def tr_lane(a, vdst, vt):
    a(f'v_lshrrev_b32 {vt}, 2, v3')
    a(f'v_lshlrev_b32 {vdst}, 7, {vt}')
    a(f'v_lshl_add_u32 {vdst}, v4, 10, {vdst}')
    a(f'v_bfe_u32 {vt}, v3, 3, 1')
    a(f'v_lshl_add_u32 {vdst}, {vt}, 6, {vdst}')
    a(f'v_and_b32 {vt}, 3, v3')
    a(f'v_lshl_add_u32 {vdst}, {vt}, 3, {vdst}')
```

```python
from asmlib import *
from layout import *

NSTEP = 63
SM = 'v_smfmac_f32_16x16x64_bf16'
MF = 'v_mfma_f32_16x16x32_bf16'
DP = 'row_mask:0xf bank_mask:0xf'
sWS = 8; sRole = 12; sWave = 13; sStep = 14; sCur = 15; sNxt = 16; sPrv = 17
sT0 = 18; sT1 = 19; sT2 = 20; sT3 = 21; sSpin = 22; sStr = 23; sVX = 24; sJ = 25
SPIN_MAX = 2000000
MBOX = MEMNAT
sMc = 31
EB = WB
PROG = TBOX + 4 * SLOT - 256
F_CLAIM = FLAGS
F_TBAR = FLAGS + 8 * 256
F_RDY = FLAGS + 9 * 256
F_KV = FLAGS + 4096
F_MIR = F_KV + 64 * 512
F_H = F_MIR + 32 * 512
F_W = F_H + 16 * 256
F_X = F_W + 4096
FLAGS_BYTES = 65536
MEGA = False
sMode = 40; sArr = 41; sRdy = 26; sNeed = 27
L_MODE = 7200
INSTR = False; XST = {0: 10, 12: 11, 14: 12, 41: 13}
NTOUCH = 16; PACE = 2; BE_EARLY = 1; KFIX = 0; VFIX = 0; STRM_MASK = None; NOSTREAM = 0; NONAT = 0
A_BE = 1; PDEPTH = 3; PSTAG = 1; A_SLEEP = 2
CDEPTH = 3; CSTAG = 1; CMDEPTH = 2; CMSTAG = 2; C_SLEEP = 1; CW_SLEEP = 0; C_PF = 0; PFD = 3; SPARE_PF = 0
B2AT = 20; B2A3 = 2; B3A = 43; B3B = 53; NSH = 4; NSH2 = 5; NE = 9; KLD0 = 8; KLDE = 3; A_PF = 1; XS0 = 4; XCAP = 3; EPOLL = 40; ESTEP = 2; EPOLL2 = 48; CVLD0 = 8; CVLDE = 4
ST = ''

def WREG(t, c):
    i = t * 7 + c
    return 120 + 8 * i if i < 17 else 256 + 8 * (i - 17)

A_MEM = 0; A_XT = 8192; A_SX = 28672; A_Z = 24576; A_FL = 24576; A_ST = 25600; A_KX = 28672
C_MEM = 0; C_X = 8192; C_W = 16384; C_VX = C_W + 4 * 14336
LDS_TEAM = C_VX + 65536

vLane = 1; vL16 = 2; vIdx = 3
vA0 = 4; vA1 = 5; vA2 = 6; vA3 = 7; vA4 = 8; vA5 = 9; vA6 = 10; vA7 = 11
vT0 = 12; vT1 = 13; vT2 = 14; vT3 = 15
vMem = 16; vAcc = 44; vPoll = 56; vBig = 64

def TSI(k): return [f's_memtime s[{44+2*k}:{45+2*k}]'] if INSTR else []
def TS(a, k):
    for i in TSI(k): a(i)
def ts_dump(a):
    if not INSTR: return
    a('s_waitcnt lgkmcnt(0)')
    for k in range(16):
        a(f'v_writelane_b32 {R(vT1)}, s{44+2*k}, {k}')
    a('s_lshr_b32 s18, s2, 3')
    a('s_lshl_b32 s18, s18, 2')
    a('s_add_u32 s18, s18, s13')
    a('s_lshl_b32 s18, s18, 6')
    a(f's_add_u32 s18, s18, {S(sStep)}')
    a('s_lshl_b32 s18, s18, 6')
    a(f's_add_u32 s18, s18, {DBG + 4096}')
    a(f'v_lshrrev_b32 {R(vT0)}, 2, {R(vL16)}')
    a('s_mov_b64 exec, 0xffff')
    a(f'buffer_store_dword {R(vT1)}, {R(vT0)}, s[8:11], s18 offen')
    a('s_mov_b64 exec, -1')

def slots(a, nxt=True):
    a(f's_and_b32 {S(sT0)}, {S(sStep)}, 3')
    a(f's_lshl_b32 {S(sT0)}, {S(sT0)}, 17')
    a(f's_add_u32 {S(sCur)}, {S(sT0)}, {TBOX}')
    a(f's_xor_b32 {S(sPrv)}, {S(sCur)}, {2*SLOT}')
    if nxt:
        a(f's_add_u32 {S(sT0)}, {S(sStep)}, 1')
        a(f's_lshr_b32 {S(sMc)}, {S(sT0)}, 1')
        a(f's_mul_i32 {S(sMc)}, {S(sMc)}, 14336')
        a(f's_and_b32 {S(sT1)}, {S(sT0)}, 1')
        a(f's_lshl_b32 {S(sT1)}, {S(sT1)}, 7')
        a(f's_add_u32 {S(sMc)}, {S(sMc)}, {S(sT1)}')
        a(f's_add_u32 {S(sMc)}, {S(sMc)}, {MBOX}')
        a(f's_and_b32 {S(sT0)}, {S(sT0)}, 3')
        a(f's_lshl_b32 {S(sT0)}, {S(sT0)}, 17')
        a(f's_add_u32 {S(sNxt)}, {S(sT0)}, {TBOX}')

def acc_max(tmp, regs, first):
    regs = list(regs); o = []
    if first:
        o.append(f'v_max3_u32 {R(tmp)}, {R(regs[0])}, {R(regs[1])}, {R(regs[2])}'); regs = regs[3:]
    while regs:
        if len(regs) >= 2:
            o.append(f'v_max3_u32 {R(tmp)}, {R(tmp)}, {R(regs[0])}, {R(regs[1])}'); regs = regs[2:]
        else:
            o.append(f'v_max_u32 {R(tmp)}, {R(tmp)}, {R(regs[0])}'); regs = regs[1:]
    return o

def check_regs(a, base, n, tmp):
    for x in acc_max(tmp, range(base, base + n), True): a(x)
    a(f'v_cmp_eq_u32 vcc, -1, {R(tmp)}')

def spin_guard(a, exit_label):
    a(f's_add_u32 {S(sSpin)}, {S(sSpin)}, 1')
    a(f's_cmp_gt_u32 {S(sSpin)}, {SPIN_MAX}')
    a(f's_cbranch_scc1 {exit_label}')

def zero4(r): return [f'v_mov_b64 {R(r,2)}, 0', f'v_mov_b64 {R(r+2,2)}, 0']

def load_weights(a, tile_off):
    for t in range(7):
        tile_off(t)
        for q in range(4):
            if q: a(f's_add_u32 {S(sT0)}, {S(sT0)}, 4096')
            for k in range(4):
                ks = 4 * q + k
                if ks >= 14: break
                reg = WREG(t, ks // 2) + 4 * (ks % 2)
                a(f'buffer_load_dwordx4 {R(reg,4)}, {R(vL16)}, {S(sWS,4)}, {S(sT0)} offen offset:{k*1024} sc1')

def common_lane_setup(a):
    a(f'v_and_b32 {R(vLane)}, 63, v0')
    a(f'v_lshlrev_b32 {R(vL16)}, 4, {R(vLane)}')
    a(f'v_and_b32 {R(vT0)}, 8, {R(vLane)}')
    a(f'v_cmp_eq_u32 vcc, 0, {R(vT0)}')
    a(f'v_mov_b32 {R(vT1)}, 0xeeee')
    a(f'v_mov_b32 {R(vT2)}, 0x4444')
    a(f'v_cndmask_b32 {R(vIdx)}, {R(vT1)}, {R(vT2)}, vcc')

def team_barrier_old(a, exit_label, n=30, arrive=True):
    a('s_waitcnt vmcnt(0) lgkmcnt(0)')
    a('s_barrier')
    Lw = a.newlabel('TBW'); Ls = a.newlabel('TBS')
    a(f's_cmp_lg_u32 {S(sWave)}, 0')
    a(f's_cbranch_scc1 {Ls}')
    a(f'v_mov_b32 {R(vT0)}, 0')
    a(f'v_mov_b32 {R(vT1)}, 1')
    a('s_mov_b64 exec, 1')
    if arrive: a(f'global_atomic_add {R(vT0)}, {R(vT1)}, s[4:5] offset:128 sc1')
    a.label(Lw)
    a(f'global_load_dword {R(vT2)}, {R(vT0)}, s[4:5] offset:128 sc1')
    spin_guard(a, exit_label)
    a('s_waitcnt vmcnt(0)')
    a(f'v_cmp_gt_u32 vcc, {n}, {R(vT2)}')
    a(f's_cbranch_vccnz {Lw}')
    a('s_mov_b64 exec, -1')
    a.label(Ls)
    a('s_barrier')

def team_barrier(a, exit_label, n=30, arrive=True):
    if not MEGA: return team_barrier_old(a, exit_label, n, arrive)
    a('s_waitcnt vmcnt(0) lgkmcnt(0)')
    a('s_barrier')
    Lw = a.newlabel('TBW'); Ls = a.newlabel('TBS')
    a(f'v_mov_b32 {R(vT0)}, {L_MODE}')
    a(f's_cmp_lg_u32 {S(sWave)}, 0')
    a(f's_cbranch_scc1 {Ls}')
    a(f'v_mov_b32 {R(vT1)}, {S(sArr)}')
    a(f's_mov_b32 {S(sT0)}, {F_TBAR}')
    a('s_mov_b64 exec, 1')
    a(f'buffer_atomic_add {R(vT1)}, off, {S(sWS,4)}, {S(sT0)} sc1')
    a.label(Lw)
    a(f'buffer_load_dword {R(vT2)}, off, {S(sWS,4)}, {S(sT0)} sc1')
    spin_guard(a, exit_label)
    a('s_waitcnt vmcnt(0)')
    a(f'v_and_b32 {R(vT1)}, 0x3f, {R(vT2)}')
    a(f'v_cmp_gt_u32 vcc, 32, {R(vT1)}')
    a(f's_cbranch_vccnz {Lw}')
    a(f'v_bfe_u32 {R(vT1)}, {R(vT2)}, 6, 10')
    a(f'v_mul_u32_u24 {R(vT1)}, {R(vT1)}, {R(vT1)}')
    a(f'v_lshrrev_b32 {R(vT2)}, 16, {R(vT2)}')
    a(f'v_lshlrev_b32 {R(vT2)}, 5, {R(vT2)}')
    a(f'v_sub_u32 {R(vT2)}, {R(vT2)}, {R(vT1)}')
    a(f'ds_write_b32 {R(vT0)}, {R(vT2)}')
    a('s_waitcnt lgkmcnt(0)')
    a('s_mov_b64 exec, -1')
    a.label(Ls)
    a('s_barrier')
    a(f'ds_read_b32 {R(vT1)}, {R(vT0)}')
    a('s_waitcnt lgkmcnt(0)')
    a(f'v_readfirstlane_b32 {S(sMode)}, {R(vT1)}')

def ensure_rdy(a, exit_label, ahead, base=sStep):
    if not MEGA: return
    Lok = a.newlabel('RDO'); Lp = a.newlabel('RDP')
    if base is None: a(f's_mov_b32 {S(sNeed)}, {ahead}')
    else:
        a(f's_add_u32 {S(sNeed)}, {S(base)}, {ahead}')
        a(f's_min_u32 {S(sNeed)}, {S(sNeed)}, 64')
    a(f's_cmp_ge_u32 {S(sRdy)}, {S(sNeed)}')
    a(f's_cbranch_scc1 {Lok}')
    a(f's_mov_b32 {S(sT0)}, {F_RDY}')
    a.label(Lp)
    a(f'buffer_load_dword {R(vT0)}, off, {S(sWS,4)}, {S(sT0)} sc1')
    spin_guard(a, exit_label)
    a('s_waitcnt vmcnt(0)')
    a(f'v_readfirstlane_b32 {S(sRdy)}, {R(vT0)}')
    a(f's_cmp_lt_u32 {S(sRdy)}, {S(sNeed)}')
    a(f's_cbranch_scc1 {Lp}')
    a.label(Lok)

def both_modes(a, body):
    global ST
    if not MEGA:
        body(); return
    Lslow = a.newlabel('SLOW')
    a(f's_cmp_lg_u32 {S(sMode)}, 0')
    a(f's_cbranch_scc1 {Lslow}')
    ST = ''; body()
    a.label(Lslow); a.reset_hist()
    ST = 'sc1'; body(); ST = ''

class Gaps:
    def __init__(self): self.m = {}; self.v = {}
    def nm(self, k): return sum(1 for x in self.m.get(k, []) if not x.startswith('s_') and not x.endswith(':'))
    def fixed(self, k, lst):
        for x in lst:
            (self.v if x.startswith('v_') else self.m).setdefault(k, []).append(x)
    def place(self, lst, start, step=0, cap=1):
        k = start; pend = []; last = start; prevv = False
        for x in lst:
            pend.append(x)
            if x.startswith('s_'): continue
            isv = x.startswith('v_')
            if prevv and k == last and (not isv or len(pend) > 1): k += 1
            while (len(self.v.get(k, [])) if isv else self.nm(k)) >= cap: k += 1
            self.fixed(k, pend); pend = []; last = k; k += step; prevv = isv
        if pend: self.fixed(last + (1 if prevv else 0), pend)
        return last
    def nvm(self, upto):
        return sum(1 for k, v in self.m.items() if k <= upto for x in v if x.startswith('buffer_'))
    def nds_after(self, pat, upto):
        seq = [x for k in sorted(self.m) if k <= upto for x in self.m[k] if x.startswith('ds_')]
        idx = max(i for i, x in enumerate(seq) if pat in x)
        return len(seq) - 1 - idx
    def weave(self, stream, last):
        items = {}
        for kk in sorted(set(self.m) | set(self.v)):
            items.setdefault(min(kk, last), []).extend(self.m.get(kk, []) + self.v.get(kk, []))
        out = []; k = -1; i = 0
        while i < len(stream):
            ins = stream[i]; out.append(ins); i += 1
            if ins.startswith('v_smfmac') or ins.startswith('v_mfma'):
                k += 1
                if k in XST: out.extend(TSI(XST[k]))
                it = items.get(k, [])
                tail = []
                while i < len(stream) and stream[i].startswith('s_'):
                    tail.append(stream[i]); i += 1
                nv = [x for x in it if not x.startswith('v_')] if k < last else it
                vv = [x for x in it if x.startswith('v_')] if k < last else []
                out.extend(nv + tail + vv)
        return out

def first_waits(stream):
    out = []; k = 0
    for ins in stream:
        if ins.startswith(SM) and k < 7:
            out.append(f's_waitcnt lgkmcnt({6-k})'); k += 1
        out.append(ins)
    return out

def mem_frag_reads(a):
    for c in range(7):
        a(f'ds_read_b128 {R(vMem+4*c,4)}, {R(vL16)} offset:{c*1024}')

def step_end(a, Lloop):
    TS(a, 15)
    if INSTR: a('s_memrealtime s[72:73]')
    ts_dump(a)
    a(f's_add_u32 {S(sStep)}, {S(sStep)}, 1')
    a(f's_cmp_lt_u32 {S(sStep)}, {NSTEP}')
    a(f's_cbranch_scc1 {Lloop}')

CH = [[0, 1], [2, 3], [4, 5], [6, 0]]
def poll_mem(a, chunks, exit_label, pre=None, w=1):
    L = a.newlabel('PM')
    n = len(chunks)
    def rnd():
        for i, c in enumerate(chunks):
            if c < 4:
                a(f'buffer_load_dwordx4 {R(vMem+4*c,4)}, {R(vL16)}, {S(sWS,4)}, {S(sCur)} offen offset:{c*1024} sc1')
            else:
                a(f'buffer_load_dwordx4 {R(vMem+4*c,4)}, {R(vA7)}, {S(sWS,4)}, {S(sCur)} offen offset:{(c-4)*1024} sc1')
    if w or not BE_EARLY: a('s_barrier')
    for x in (pre or []): a(x)
    if A_SLEEP: a(f's_sleep {A_SLEEP}')
    TS(a, 0)
    for d in range(PDEPTH - 1):
        rnd()
        if PSTAG: a(f's_sleep {PSTAG}')
    a('s_waitcnt lgkmcnt(0)')
    a.label(L)
    rnd()
    spin_guard(a, exit_label)
    for i, c in enumerate(chunks):
        a(f's_waitcnt vmcnt({n*(PDEPTH-1) + n-1-i})')
        for x in acc_max(vT0, range(vMem+4*c, vMem+4*c+4), i == 0): a(x)
    a(f'v_cmp_eq_u32 vcc, -1, {R(vT0)}')
    a(f's_cbranch_vccnz {L}')
    TS(a, 2)
    if INSTR: a(f's_mov_b32 s46, {S(sSpin)}')

def kdma(kt):
    out = []
    for q in range(4):
        out += [f's_add_u32 {S(sT0)}, {S(sStr)}, {kt*14336 + q*4096}', f's_mov_b32 m0, {A_KX + kt*14336 + q*4096}']
        for k in range(4):
            if 4 * q + k < 14:
                out.append(f'buffer_load_dwordx4 {R(vL16)}, {S(sWS,4)}, {S(sT0)} offen offset:{k*1024} sc1 lds')
    return out

KSET = {1: [(2, 0), (3, 0), (1, 0), (4, 0), (5, 0)], 2: [(4, 1), (5, 1), (1, 1), (2, 1), (3, 1)], 3: [(6, 0), (6, 1), (0, 0), (0, 1)]}
KR = 80; SXR = 72
def kld(w, i):
    c, kt = KSET[w][i]
    return [f's_add_u32 {S(sT0)}, {S(sStr)}, {kt*14336 + c*2048}'] + \
           [f'buffer_load_dwordx4 {R(KR+8*i+4*hh,4)}, {R(vL16)}, {S(sWS,4)}, {S(sT0)} offen offset:{hh*1024} sc1' for hh in range(2)]
def sxm(w, i):
    c, kt = KSET[w][i]
    return f'{SM} {R(SXR+4*kt,4)}, {R(vMem+4*c,4)}, {R(KR+8*i,8)}, {R(vIdx)}'
def sxadd(kt):
    return [f'ds_add_f32 {R(vA2)}, {R(SXR+4*kt+r)} offset:{A_SX + r*128 + kt*8}' for r in range(4)]

def sxout(kt, off):
    r = SXR + 4 * kt
    return [f'v_permlane32_swap_b32 {R(r)}, {R(r+2)}', f'v_permlane32_swap_b32 {R(r+1)}, {R(r+3)}',
            f'v_add_f32 {R(r)}, {R(r)}, {R(r+2)}', f'v_add_f32 {R(r+1)}, {R(r+1)}, {R(r+3)}',
            f'ds_write_b64 {R(vA1)}, {R(r,2)} offset:{A_SX + off + kt*512}']

def tprime_write(acc, t):
    return [f'v_cvt_pk_bf16_f32 {R(vT0)}, {R(acc)}, {R(acc+1)}',
            f'v_cvt_pk_bf16_f32 {R(vT1)}, {R(acc+2)}, {R(acc+3)}',
            f'ds_write_b64 {R(vA0)}, {R(vT0,2)} offset:{A_XT + t*2048}']
def tpm(accs, t, c):
    return f'{SM} {R(accs[t],4)}, {R(vMem+4*c,4)}, {R(WREG(t,c),8)}, {R(vIdx)}'
def early_part(gp, accs, own, ne, wr_own=None):
    first = [(t, c) for c in own for t in range(7)][:ne]
    G = [tpm(accs, t, c) for t, c in first]
    for i, c in enumerate(wr_own or own):
        gp.fixed(i, [f'ds_write_b128 {R(vL16)}, {R(vMem+4*c,4)} offset:{c*1024}'])
    oth = [c for c in range(7) if c not in own]
    gp.fixed(B1AT, ['s_waitcnt lgkmcnt(0)', 's_barrier'] + TSI(3))
    gp.place([f'ds_read_b128 {R(vMem+4*c,4)}, {R(vL16)} offset:{c*1024}' for c in oth], B1AT, cap=2)
    rest = [[c for c in own + oth if (t, c) not in first] for t in range(7)]
    return G, rest
vTag = 0; vFlA = vA6
def flagw(t): return f'ds_write_b32 {R(vFlA)}, {R(vTag)} offset:{A_FL + t*16}'
def late_part(gp, accs, rest, base, flags=True, flex=False):
    G = []; wr = []
    for t in range(7):
        G += [tpm(accs, t, c) for c in rest[t]]
        e = base + len(G) - 1
        p = tprime_write(accs[t], t) + ([flagw(t)] if flags and t < NSH else [])
        if flex:
            wr.append(gp.place(p, max(e + 3, wr[-1] if wr else 0), cap=FLEXCAP, step=1))
        else:
            for i, x in enumerate(p): gp.fixed(e + 3 + i, [x])
            wr.append(e + 3 + len(p) - 1)
    return G, wr
B1AT = 4

def row_map(a, row, key, tmp):
    a(f'v_bfe_u32 {R(row)}, {R(vLane)}, 4, 1')
    a(f'v_lshlrev_b32 {R(row)}, 2, {R(row)}')
    a(f'v_bfe_u32 {R(tmp)}, {R(vLane)}, 5, 1')
    a(f'v_lshl_add_u32 {R(row)}, {R(tmp)}, 1, {R(row)}')
    a(f'v_bfe_u32 {R(tmp)}, {R(vLane)}, 3, 1')
    a(f'v_add_u32 {R(row)}, {R(row)}, {R(tmp)}')
    a(f'v_and_b32 {R(key)}, 7, {R(vLane)}')

def e_addr(a, dst, row, key):
    a(f's_lshr_b32 {S(sT0)}, {S(sRole)}, 2')
    a(f's_lshl_b32 {S(sT0)}, {S(sT0)}, 11')
    a(f's_and_b32 {S(sT1)}, {S(sRole)}, 1')
    a(f's_lshl_b32 {S(sT1)}, {S(sT1)}, 10')
    a(f's_add_u32 {S(sT0)}, {S(sT0)}, {S(sT1)}')
    a(f's_and_b32 {S(sT1)}, {S(sRole)}, 2')
    a(f's_lshl_b32 {S(sT1)}, {S(sT1)}, 6')
    a(f's_add_u32 {S(sT0)}, {S(sT0)}, {S(sT1)}')
    a(f's_add_u32 {S(sT0)}, {S(sT0)}, {EB}')
    a(f'v_lshrrev_b32 {R(vT0)}, 1, {R(key)}')
    a(f'v_lshl_add_u32 {R(dst)}, {R(vT0)}, 8, {S(sT0)}')
    a(f'v_lshl_add_u32 {R(dst)}, {R(row)}, 4, {R(dst)}')
    a(f'v_and_b32 {R(vT0)}, 1, {R(key)}')
    a(f'v_lshl_add_u32 {R(dst)}, {R(vT0)}, 3, {R(dst)}')

def gen_A(a, EXIT, stamp=None):
    common_lane_setup(a)
    a(f'v_add_u32 {R(vA7)}, 4096, {R(vL16)}')
    n, g = vT0, vT1
    a(f'v_and_b32 {R(n)}, 15, {R(vLane)}')
    a(f'v_lshrrev_b32 {R(g)}, 4, {R(vLane)}')
    a(f'v_lshrrev_b32 {R(vT2)}, 2, {R(n)}')
    a(f'v_xor_b32 {R(vT3)}, {R(g)}, {R(vT2)}')
    a(f'v_and_b32 {R(vA0)}, 3, {R(n)}')
    a(f'v_lshl_add_u32 {R(vA0)}, {R(vA0)}, 2, {R(vT3)}')
    a(f'v_and_b32 {R(vT3)}, 1, {R(vT2)}')
    a(f's_and_b32 {S(sT0)}, {S(sWave)}, 1')
    a(f'v_xor_b32 {R(vT3)}, {S(sT0)}, {R(vT3)}')
    a(f'v_lshl_add_u32 {R(vA0)}, {R(vT3)}, 4, {R(vA0)}')
    a(f'v_lshlrev_b32 {R(vA0)}, 3, {R(vA0)}')
    a(f'v_lshl_add_u32 {R(vA0)}, {R(vT2)}, 8, {R(vA0)}')
    a(f's_lshr_b32 {S(sT0)}, {S(sWave)}, 1')
    a(f's_lshl_b32 {S(sT0)}, {S(sT0)}, 10')
    a(f'v_add_u32 {R(vA0)}, {S(sT0)}, {R(vA0)}')
    a(f'v_and_b32 {R(vT2)}, 3, {R(n)}')
    a(f'v_xor_b32 {R(vT2)}, {R(vT2)}, {R(g)}')
    a(f'v_and_b32 {R(vT3)}, 12, {R(n)}')
    a(f'v_add_u32 {R(vT2)}, {R(vT2)}, {R(vT3)}')
    a(f'v_and_b32 {R(vT3)}, 1, {R(g)}')
    a(f'v_lshl_add_u32 {R(vT2)}, {R(vT3)}, 4, {R(vT2)}')
    a(f'v_lshlrev_b32 {R(vT2)}, 3, {R(vT2)}')
    a(f'v_lshl_add_u32 {R(vA1)}, {R(g)}, 8, {R(vT2)}')
    a(f'v_xor_b32 {R(vA2)}, 128, {R(vA1)}')
    for z in zero4(vAcc): a(z)
    a(f'ds_write_b128 {R(vL16)}, {R(vAcc,4)} offset:{A_Z}')
    a(f'ds_write_b128 {R(vL16)}, {R(vAcc,4)} offset:{A_SX}')
    def toff(t):
        a(f's_mul_i32 {S(sT0)}, {S(sRole)}, {MAT}')
        a(f's_mul_i32 {S(sT1)}, {S(sWave)}, 14336')
        a(f's_add_u32 {S(sT0)}, {S(sT0)}, {S(sT1)}')
        a(f's_add_u32 {S(sT0)}, {S(sT0)}, {WIMG + t*4*14336}')
    load_weights(a, toff)
    a(f's_mov_b32 {S(sSpin)}, 0')
    a(f's_mul_i32 {S(sT0)}, {S(sRole)}, {K_H}')
    a(f's_add_u32 {S(sStr)}, {S(sT0)}, {KIMG}')
    LW = [a.newlabel('AW') for _ in range(4)]
    for w in (1, 2, 3):
        a(f's_cmp_eq_u32 {S(sWave)}, {w}')
        a(f's_cbranch_scc1 {LW[w]}')
    for w in range(4):
        a.label(LW[w]); a.reset_hist()
        gen_A_wave(a, w, EXIT, stamp)

def gen_A_wave(a, w, EXIT, stamp):
    post = []
    row, key = vT2, vT3
    M1 = vAcc + 10
    if w == 0:
        row_map(a, row, key, vT0)
        a(f'v_and_b32 {R(vT0)}, 1, {R(key)}')
        a(f'v_cmp_eq_u32 s[36:37], 0, {R(vT0)}')
        a(f's_lshl_b32 {S(sT0)}, {S(sRole)}, 7')
        a(f's_add_u32 {S(sT0)}, {S(sT0)}, {PB}')
        a(f'v_lshl_add_u32 {R(vA4)}, {R(row)}, 4, {S(sT0)}')
        a(f'v_lshl_add_u32 {R(vA4)}, {R(key)}, 1, {R(vA4)}')
        a(f's_and_b32 {S(sT0)}, {S(sRole)}, 7')
        a(f's_lshl_b32 {S(sT0)}, {S(sT0)}, 6')
        a(f's_lshr_b32 {S(sT1)}, {S(sRole)}, 3')
        a(f's_lshl_b32 {S(sT1)}, {S(sT1)}, 2')
        a(f's_add_u32 {S(sT0)}, {S(sT0)}, {S(sT1)}')
        a(f's_add_u32 {S(sT0)}, {S(sT0)}, {PB + 2048}')
        a(f'v_lshl_add_u32 {R(vT1)}, {R(row)}, 3, {S(sT0)}')
        a(f'v_cndmask_b32 {R(vA4)}, {R(vT1)}, {R(vA4)}, s[36:37]')
        a(f'v_and_b32 {R(vT0)}, 1, {R(row)}')
        a(f'v_cmp_eq_u32 s[38:39], 0, {R(vT0)}')
        a(f'v_cmp_eq_u32 s[42:43], 1, {R(vT0)}')
        a(f'v_mov_b32 {R(M1)}, -1')
        for sl in range(4):
            a(f's_mov_b32 {S(sT0)}, {TBOX + sl*SLOT}')
            a(f'buffer_store_dword {R(M1)}, {R(vA4)}, {S(sWS,4)}, {S(sT0)} offen sc1')
        e_addr(a, vA5, row, key)
        SA, SB = vLane, vAcc + 11
        a(f'v_lshrrev_b32 {R(SB)}, 4, {R(vLane)}')
        a(f'v_lshlrev_b32 {R(SB)}, 7, {R(SB)}')
        a(f'v_and_b32 {R(vT0)}, 3, {R(key)}')
        a(f'v_lshl_add_u32 {R(SB)}, {R(vT0)}, 5, {R(SB)}')
        a(f'v_lshrrev_b32 {R(vT0)}, 2, {R(key)}')
        a(f'v_lshl_add_u32 {R(SB)}, {R(vT0)}, 3, {R(SB)}')
        a(f'v_and_b32 {R(vT0)}, 1, {R(row)}')
        a(f'v_lshl_add_u32 {R(SB)}, {R(vT0)}, 2, {R(SB)}')
        a(f'v_add_u32 {R(SA)}, {A_SX}, {R(SB)}')
        a(f'v_add_u32 {R(SB)}, {A_SX + 16}, {R(SB)}')
    elif w == 3:
        a(f'v_lshrrev_b32 {R(row)}, 3, {R(vLane)}')
        a(f'v_and_b32 {R(key)}, 7, {R(vLane)}')
        e_addr(a, vA4, row, key)
        a(f'v_mov_b32 {R(M1)}, -1')
        a(f'v_mov_b32 {R(M1+1)}, -1')
        for sl in range(4):
            a(f's_mov_b32 {S(sT0)}, {TBOX + sl*SLOT}')
            a(f'buffer_store_dwordx2 {R(M1,2)}, {R(vA4)}, {S(sWS,4)}, {S(sT0)} offen sc1')
    if w:
        a(f'v_lshlrev_b32 {R(vA1)}, 3, {R(vLane)}')
        ensure_rdy(a, EXIT, 1, None)
        for i in range(len(KSET[w])):
            for x in kld(w, i): a(x)
    a(f'v_mov_b32 {R(vFlA)}, {4*w}')
    a(f'v_mov_b32 {R(vTag)}, 0')
    team_barrier(a, EXIT)
    both_modes(a, lambda: gen_A_loop(a, w, EXIT, stamp))

def gen_A_loop(a, w, EXIT, stamp):
    post = []
    M1 = vAcc + 10
    a(f's_mov_b32 {S(sStep)}, 0')
    if stamp: stamp(a, 0)
    L = a.newlabel('ALOOP')
    if w == 0 and BE_EARLY: a('s_barrier')
    a.label(L); a.reset_hist()
    slots(a, False)
    a(f'v_add_u32 {R(vTag)}, 1, {R(vTag)}')
    a(f's_mov_b32 {S(sSpin)}, 0')
    pre_poll = None
    if w == 0:
        accs = [vBig, vBig + 4, vBig + 8, vBig + 12, vBig + 44, vBig + 48, vBig + 52]
        pz = accs + [vAcc]
        a(f'buffer_store_dword {R(M1)}, {R(vA4)}, {S(sWS,4)}, {S(sPrv)} offen {ST}')
    else:
        accs = [44 + 4 * i for i in range(7)]
        pz = accs + ([SXR, SXR + 4] if w == 3 else [SXR + 4 * (w - 1)])
        if w == 3:
            a(f'v_mov_b64 {R(vT2,2)}, -1')
            a(f'buffer_store_dwordx2 {R(vT2,2)}, {R(vA4)}, {S(sWS,4)}, {S(sPrv)} offen {ST}')
        if STRM_MASK is None and not KFIX: a(f's_add_u32 {S(sStr)}, {S(sStr)}, {K_S}')
        ensure_rdy(a, EXIT, 2)
    if A_PF == 3 and w:
        a(f's_min_u32 {S(sT2)}, {S(sRole)}, 13')
        a(f's_mul_i32 {S(sT2)}, {S(sT2)}, {2*V_J}')
        a(f's_add_u32 {S(sT1)}, {S(sStep)}, {PFD}')
        a(f's_mul_i32 {S(sT1)}, {S(sT1)}, {V_S}')
        a(f's_add_u32 {S(sT2)}, {S(sT2)}, {S(sT1)}')
        a(f's_add_u32 {S(sT2)}, {S(sT2)}, {VIMG + 8192}')
    if A_PF == 2 and w in (1, 2):
        a(f's_min_u32 {S(sT2)}, {S(sRole)}, 13')
        a(f's_mul_i32 {S(sT2)}, {S(sT2)}, {2*V_J}')
        a(f's_add_u32 {S(sT1)}, {S(sStep)}, {PFD-1}')
        a(f's_mul_i32 {S(sT1)}, {S(sT1)}, {V_S}')
        a(f's_add_u32 {S(sT2)}, {S(sT2)}, {S(sT1)}')
        a(f's_add_u32 {S(sT2)}, {S(sT2)}, {VIMG + 8192 + (w-1)*V_J}')
        a(f'v_lshlrev_b32 {R(vT2)}, 7, {R(vLane)}')
        pre_poll = [f'buffer_load_dword {R(vT3)}, {R(vT2)}, {S(sWS,4)}, {S(sT2)} offen sc1']
    for x in pz:
        for z in zero4(x): a(z)
    poll_mem(a, CH[w], EXIT, pre_poll, w)
    gp = Gaps()
    XTW = lambda t: f'ds_write_b64 {R(vA0)}, {R(vT0,2)} offset:{A_XT + t*2048}'
    ne = NE + 2 if w == 0 else (NE - 2 if w == 3 else NE)
    G1, rest = early_part(gp, accs, CH[w], ne, [6] if w == 3 else None)
    if w == 0:
        def trr(c):
            b = vBig + BR[c]
            return [f'ds_read_b64_tr_b16 {R(b,2)}, {R(vA1)} offset:{A_XT + c*2048}',
                    f'ds_read_b64_tr_b16 {R(b+2,2)}, {R(vA2)} offset:{A_XT + c*2048}',
                    f'ds_read_b64_tr_b16 {R(b+4,2)}, {R(vA1)} offset:{A_XT + c*2048 + 1024}',
                    f'ds_read_b64_tr_b16 {R(b+6,2)}, {R(vA2)} offset:{A_XT + c*2048 + 1024}']
        def smm(c): return f'{SM} {R(vAcc,4)}, {R(vMem+4*c,4)}, {R(vBig+BR[c],8)}, {R(vIdx)}'
        FR = [vPoll, vPoll + 4]; vOk = vA3; OK = [vAcc + 6, vAcc + 7, vAcc + 8, vAcc + 9]
        mx = vAcc + 4; lx = vAcc + 5
        def flr(c): return f'ds_read_b128 {R(FR[c%2],4)}, {R(vFlA)} offset:{A_FL + c*16}'
        def flc(c, dst):
            f = FR[c % 2]
            return f'v_min3_u32 {R(dst)}, {R(f+1)}, {R(f+2)}, {R(f+3)}'
        SA, SB = vLane, vAcc + 11
        sx0 = vBig + 32; sy0 = vBig + 16; q = vBig + 40
        s0, s1, s2, s3 = sx0, sx0 + 1, sx0 + 2, sx0 + 3
        def rd4(dst, base):
            return [f'ds_read2st64_b32 {R(dst+2*ab,2)}, {R(SB if ab else SA)} offset0:{base} offset1:{base+2}' for ab in range(2)]
        fB = f'ds_read_b128 {R(FR[1],4)}, {R(vFlA)} offset:{A_FL + 7*16}'
        sxr = [fB] + rd4(sy0, 0) + rd4(sx0, 4)
        k = gp.place(sxr, SXAT, cap=3)
        chk = [f'v_min3_u32 {R(vOk)}, {R(FR[1]+3)}, {R(FR[1]+1)}, {R(FR[1]+2)}', f'v_cmp_lt_u32 vcc, {R(vOk)}, {R(vTag)}']
        pre = [f'v_add_f32 {R(sx0+r)}, {R(sx0+r)}, {R(sy0+r)}' for r in range(4)]
        ops = [f'v_max3_f32 {R(mx)}, {R(s0)}, {R(s1)}, {R(s2)}', f'v_max_f32 {R(mx)}, {R(mx)}, {R(s3)}',
               f'v_max_f32_dpp {R(mx)}, {R(mx)}, {R(mx)} quad_perm:[1,0,3,2] {DP}',
               f'v_max_f32_dpp {R(mx)}, {R(mx)}, {R(mx)} quad_perm:[2,3,0,1] {DP}',
               f'v_max_f32_dpp {R(mx)}, {R(mx)}, {R(mx)} row_half_mirror {DP}']
        ops += [f'v_sub_f32 {R(x)}, {R(x)}, {R(mx)}' for x in (s0, s1, s2, s3)]
        ops += [f'v_exp_f32 {R(x)}, {R(x)}' for x in (s0, s1, s2, s3)]
        ops += [f'v_cvt_pk_bf16_f32 {R(q)}, {R(s0)}, {R(s1)}', f'v_cvt_pk_bf16_f32 {R(q+1)}, {R(s2)}, {R(s3)}',
                f'v_min_u32 {R(q)}, -2, {R(q)}', f'v_min_u32 {R(q+1)}, -2, {R(q+1)}',
                f'buffer_store_dwordx2 {R(q,2)}, {R(vA5)}, {S(sWS,4)}, {S(sCur)} offen {ST}'] + TSI(6)
        k0 = k + XS0
        Lsx = a.newlabel('SXS'); Lsb = a.newlabel('SXB')
        gp.fixed(k0 - 1, ['s_waitcnt lgkmcnt(@)'] + chk)
        gp.fixed(k0, [f's_cbranch_vccnz {Lsx}', Lsb + ':'])
        k = gp.place(pre + ops[:2], k0, cap=XCAP)
        k = gp.place(ops[2:5], k + 1, cap=XCAP, step=1)
        k = gp.place(ops[5:], k, cap=XCAP)
        print('E store at', k)
        G2, wr = late_part(gp, accs, rest, ne, flags=False, flex=True)
        print('wave0 writes', wr)
        gp.m[k0 - 1].remove('s_waitcnt lgkmcnt(@)')
        gp.m[k0 - 1].insert(0, f's_waitcnt lgkmcnt({gp.nds_after(sxr[-1], k0 - 2)})')
        ops2 = [f'v_add_f32 {R(s0)}, {R(s0)}, {R(s2)}', f'v_add_f32 {R(lx)}, {R(s1)}, {R(s3)}', f'v_add_f32 {R(lx)}, {R(lx)}, {R(s0)}',
                f'v_add_f32_dpp {R(lx)}, {R(lx)}, {R(lx)} quad_perm:[1,0,3,2] {DP}',
                f'v_add_f32_dpp {R(lx)}, {R(lx)}, {R(lx)} quad_perm:[2,3,0,1] {DP}',
                f'v_add_f32_dpp {R(lx)}, {R(lx)}, {R(lx)} row_half_mirror {DP}']
        def slowx():
            a.label(Lsx); a.reset_hist()
            for x in sxr: a(x)
            spin_guard(a, EXIT)
            if INSTR: a(f's_add_u32 {S(sSpin)}, {S(sSpin)}, 1000')
            a('s_waitcnt lgkmcnt(0)')
            for x in chk: a(x)
            a(f's_cbranch_vccnz {Lsx}')
            a(f's_branch {Lsb}')
        post.append(slowx)
        assert SPEC[0] > k0
        for c in range(NSH):
            assert SPEC[c] >= wr[c] and (c > 0 or SPEC[c] >= wr[1]), (c, wr)
            k = gp.place([flr(c)] + trr(c), SPEC[c], cap=SCAP, step=1)
            kk = k + 1
            gp.fixed(kk, [f's_waitcnt lgkmcnt({gp.nds_after(flr(c), kk)})'])
            gp.place([flc(c, OK[c])], kk, cap=3)
        gp.place(ops2, 40, cap=2, step=1)
        G = G1 + ['s_waitcnt lgkmcnt(0)'] + G2
        for i in gp.weave(G, 48): a(i)
        TS(a, 4)
        a(f'v_min3_u32 {R(vOk)}, {R(OK[0])}, {R(OK[1])}, {R(OK[2])}')
        if NSH == 4: a(f'v_min_u32 {R(vOk)}, {R(vOk)}, {R(OK[3])}')
        a(f'v_cmp_lt_u32 vcc, {R(vOk)}, {R(vTag)}')
        Lsl = a.newlabel('SSL'); Lbk = a.newlabel('SBK')
        a(f's_cbranch_vccnz {Lsl}')
        TS(a, 7)
        a('s_waitcnt lgkmcnt(1)')
        a('s_barrier')
        a.label(Lbk)
        TS(a, 8)
        rr = [x for c in range(NSH, 7) for x in trr(c)]
        per = -(-len(rr) // NSH)
        for c in range(NSH):
            for x in rr[c*per:(c+1)*per]: a(x)
            a(smm(c))
        for c in range(NSH, 7):
            a(f's_waitcnt lgkmcnt({4*(6-c)})')
            a(smm(c))
        def slow0():
            a.label(Lsl); a.reset_hist()
            if INSTR: a(f's_add_u32 {S(sSpin)}, {S(sSpin)}, 100')
            a('s_barrier')
            for c in range(NSH):
                for i in trr(c): a(i)
            a('s_waitcnt lgkmcnt(0)')
            a(f's_branch {Lbk}')
        post.append(slow0)
        TS(a, 9)
        if INSTR: a(f's_mov_b32 s54, {S(sSpin)}')
        D0 = vAcc
        z = vT0; t = vT1; sx = vT2; e = vT3; nlo = vAcc + 6; nhi = vAcc + 7; en = vAcc + 8
        a(f'v_permlane32_swap_b32 {R(D0)}, {R(D0+2)}')
        a(f'v_permlane32_swap_b32 {R(D0+1)}, {R(D0+3)}')
        a(f'v_add_f32 {R(D0)}, {R(D0)}, {R(D0+2)}')
        a(f'v_add_f32 {R(D0+1)}, {R(D0+1)}, {R(D0+3)}')
        a(f'v_add_f32_dpp {R(z)}, {R(D0)}, {R(D0)} row_ror:8 row_mask:0xf bank_mask:0x3')
        a(f'v_add_f32_dpp {R(z)}, {R(D0+1)}, {R(D0+1)} row_ror:8 row_mask:0xf bank_mask:0xc')
        a(f'v_max_f32 {R(t)}, {R(z)}, {R(mx)}')
        a(f'v_max_f32_dpp {R(t)}, {R(t)}, {R(t)} quad_perm:[1,0,3,2] {DP}')
        a(f'v_max_f32_dpp {R(t)}, {R(t)}, {R(t)} quad_perm:[2,3,0,1] {DP}')
        a(f'v_max_f32_dpp {R(t)}, {R(t)}, {R(t)} row_half_mirror {DP}')
        a(f'v_sub_f32 {R(e)}, {R(z)}, {R(t)}')
        a(f'v_sub_f32 {R(sx)}, {R(mx)}, {R(t)}')
        a(f'v_exp_f32 {R(e)}, {R(e)}')
        a(f'v_exp_f32 {R(sx)}, {R(sx)}')
        a(f'v_mov_b32_dpp {R(en)}, {R(e)} quad_perm:[1,0,3,2] {DP}')
        a(f'v_cndmask_b32 {R(nlo)}, 0, {R(sx)}, s[38:39]')
        a(f'v_add_f32 {R(t)}, {R(e)}, {R(en)}')
        a(f'v_cndmask_b32 {R(nhi)}, 0, {R(sx)}, s[42:43]')
        a(f'v_cndmask_b32 {R(nlo)}, {R(nlo)}, {R(e)}, s[36:37]')
        a(f'v_add_f32_dpp {R(t)}, {R(t)}, {R(t)} quad_perm:[2,3,0,1] {DP}')
        a(f'v_cndmask_b32 {R(nhi)}, {R(nhi)}, {R(en)}, s[36:37]')
        a(f'v_add_f32_dpp {R(t)}, {R(t)}, {R(t)} row_half_mirror {DP}')
        a(f'v_fma_f32 {R(t)}, {R(lx)}, {R(sx)}, {R(t)}')
        a(f'v_rcp_f32 {R(t)}, {R(t)}')
        a(f'v_mul_f32 {R(nlo)}, {R(nlo)}, {R(t)}')
        a(f'v_mul_f32 {R(nhi)}, {R(nhi)}, {R(t)}')
        a(f'v_cvt_pk_bf16_f32 {R(nlo)}, {R(nlo)}, {R(nhi)}')
        a(f'v_min_u32 {R(nlo)}, -2, {R(nlo)}')
        a(f'buffer_store_dword {R(nlo)}, {R(vA4)}, {S(sWS,4)}, {S(sCur)} offen {ST}')
        TS(a, 13)
        if BE_EARLY: a('s_barrier')
    else:
        if w == 3:
            G0 = [sxm(3, i) for i in range(4)] + G1
            gp.place(sxout(0, 1024) + sxout(1, 1024) + [flagw(7)], 6)
            nw = gp.nds_after(f'ds_read_b128 {R(vMem+20,4)}', len(G0) - 1)
            nb = len(G0)
            G0 = G0 + [f's_waitcnt lgkmcnt({nw})']
        else:
            G0 = [sxm(w, 0), sxm(w, 1)] + G1 + ['s_waitcnt lgkmcnt(0)'] + [sxm(w, i) for i in (2, 3, 4)]
            nb = ne + 5
            k = gp.place(sxout(w - 1, 0) + [flagw(7)], nb + 2, cap=SXCAP)
            if w == 1: print('sx flag at', k)
        G2, wr = late_part(gp, accs, rest, nb)
        if w != 2: print('tile flags at', wr)
        late = []
        if not NOSTREAM:
            lds = [x for i in range(len(KSET[w])) for x in kld(w, i)]
            if A_PF == 3:
                dummy = {1: SXR + 4, 2: SXR, 3: 112}[w]
                t0, t1 = {1: (0, 5), 2: (5, 10), 3: (10, 16)}[w]
                for i in range(t0, min(t1, NTOUCH)):
                    lds += [f's_add_u32 {S(sT0)}, {S(sT2)}, {(i//8)*V_J + (i%8)*1024}',
                            f'buffer_load_dwordx4 {R(dummy,4)}, {R(vL16)}, {S(sWS,4)}, {S(sT0)} offen sc1']
            nin = (nb + len(G2) - 2 - KLD0 - (w - 1) * 2) // KLDE + 1
            cut = [i for i, x in enumerate(lds) if x.startswith('buffer_')]
            if A_PF == 3 and nin < len(cut):
                late = lds[cut[nin - 1] + 1:]; lds = lds[:cut[nin - 1] + 1]
            gp.place(lds, KLD0 + (w - 1) * 2, step=KLDE)
        for i in gp.weave(G0 + G2, nb + len(G2) - 1): a(i)
        a('s_waitcnt lgkmcnt(0)')
        TS(a, 7)
        a('s_barrier')
        for x in late:
            if x.startswith('buffer_'): a(f's_sleep {PACE}')
            a(x)
        if SPARE_PF and w == 3:
            Ls = a.newlabel('NPG')
            a(f's_cmp_lg_u32 {S(sRole)}, 0')
            a(f's_cbranch_scc1 {Ls}')
            a(f'v_mov_b32 {R(vT0)}, {S(sStep)}')
            a(f's_mov_b32 {S(sT0)}, {PROG}')
            a(f'buffer_store_dword {R(vT0)}, off, {S(sWS,4)}, {S(sT0)} {ST}')
            a.label(Ls)
        if A_PF == 1 and not NOSTREAM and w < 3:
            a(f's_min_u32 {S(sT0)}, {S(sRole)}, 13')
            a(f's_mul_i32 {S(sT0)}, {S(sT0)}, {2*V_J}')
            a(f's_add_u32 {S(sT1)}, {S(sStep)}, {PFD}')
            a(f's_mul_i32 {S(sT1)}, {S(sT1)}, {V_S}')
            a(f's_add_u32 {S(sT0)}, {S(sT0)}, {S(sT1)}')
            a(f's_add_u32 {S(sT0)}, {S(sT0)}, {VIMG + 8192 + (w-1)*V_J}')
            a(f'v_lshlrev_b32 {R(vT2)}, 7, {R(vLane)}')
            a(f'buffer_load_dword {R(vT3)}, {R(vT2)}, {S(sWS,4)}, {S(sT0)} offen sc1')
    step_end(a, L)
    if stamp: stamp(a, 1)
    a(f's_branch {EXIT}')
    for f in post: f()
BR = [0, 16, 24, 8, 32, 40, 48]
SPEC = [29, 34, 39, 44]; SCAP = 2; SXCAP = 4; SXAT = 21; FLEXCAP = 2

HL = [0, 2, 1, 3, 4, 6, 5, 7]
def cvdma():
    out = []
    for q in range(2):
        out += [f's_add_u32 {S(sT0)}, {S(sStr)}, {q*4096}', f's_add_u32 m0, {S(sVX)}, {q*4096}']
        out += [f'buffer_load_dwordx4 {R(vL16)}, {S(sWS,4)}, {S(sT0)} offen offset:{k*1024} sc1 lds' for k in range(4)]
    return out

def gen_C(a, EXIT, stamp=None):
    common_lane_setup(a)
    n, g = vT0, vT1
    a(f's_and_b32 {S(sT0)}, {S(sWave)}, 1')
    a(f's_lshl_b32 {S(sJ)}, {S(sRole)}, 1')
    a(f's_add_u32 {S(sJ)}, {S(sJ)}, {S(sT0)}')
    a(f'v_and_b32 {R(n)}, 15, {R(vLane)}')
    a(f'v_lshrrev_b32 {R(g)}, 4, {R(vLane)}')
    a(f'v_and_b32 {R(vT2)}, 1, {R(g)}')
    a(f'v_lshlrev_b32 {R(vT2)}, 2, {R(vT2)}')
    a(f'v_and_b32 {R(vT3)}, 2, {R(g)}')
    a(f'v_add_u32 {R(vT2)}, {R(vT2)}, {R(vT3)}')
    a(f'v_and_b32 {R(vT3)}, 1, {R(n)}')
    a(f'v_cmp_eq_u32 s[36:37], 0, {R(vT3)}')
    a(f'v_add_u32 {R(vT2)}, {R(vT2)}, {R(vT3)}')
    a(f'v_bfe_u32 {R(vT3)}, {R(n)}, 1, 1')
    a(f'v_lshl_add_u32 {R(vA0)}, {R(vT3)}, 3, {R(vT2)}')
    a(f'v_lshlrev_b32 {R(vA0)}, 4, {R(vA0)}')
    a(f'v_and_b32 {R(vT3)}, 12, {R(n)}')
    a(f'v_add_u32 {R(vA0)}, {R(vA0)}, {R(vT3)}')
    a(f's_lshl_b32 {S(sT0)}, {S(sJ)}, 8')
    a(f'v_add_u32 {R(vA0)}, {S(sT0)}, {R(vA0)}')
    a(f'v_mul_u32_u24 {R(vA1)}, 896, {R(vT2)}')
    a(f'v_and_b32 {R(vT3)}, 14, {R(n)}')
    a(f'v_lshl_add_u32 {R(vA1)}, {R(vT3)}, 1, {R(vA1)}')
    a(f's_lshl_b32 {S(sT0)}, {S(sJ)}, 5')
    a(f'v_add_u32 {R(vA1)}, {S(sT0)}, {R(vA1)}')
    a(f's_lshr_b32 {S(sT0)}, {S(sWave)}, 1')
    a(f's_lshl_b32 {S(sT0)}, {S(sT0)}, 12')
    a(f's_add_u32 {S(sT0)}, {S(sT0)}, {EB}')
    a(f'v_add_u32 {R(vA2)}, {S(sT0)}, {R(vL16)}')
    a(f'v_add_u32 {R(vA3)}, {PB}, {R(vL16)}')
    a(f's_mul_i32 {S(sT0)}, {S(sWave)}, 14336')
    a(f's_add_u32 {S(sT0)}, {S(sT0)}, {C_W}')
    a(f'v_add_u32 {R(vA5)}, {S(sT0)}, {R(vL16)}')
    a(f's_mov_b32 m0, {S(sT0)}')
    a(f's_and_b32 {S(sT0)}, {S(sWave)}, 1')
    a(f's_lshl_b32 {S(sT0)}, {S(sT0)}, 12')
    a(f's_add_u32 {S(sT0)}, {S(sT0)}, {C_X}')
    a(f'v_add_u32 {R(vA6)}, {S(sT0)}, {R(vL16)}')
    def toff(hl):
        a(f's_lshr_b32 {S(sT0)}, {S(sWave)}, 1')
        a(f's_lshl_b32 {S(sT0)}, {S(sT0)}, 3')
        a(f's_add_u32 {S(sT0)}, {S(sT0)}, {16 + hl}')
        a(f's_mul_i32 {S(sT0)}, {S(sT0)}, {MAT}')
        a(f's_mul_i32 {S(sT1)}, {S(sJ)}, 14336')
        a(f's_add_u32 {S(sT0)}, {S(sT0)}, {S(sT1)}')
    toff(HL[0])
    for q in range(4):
        for k in range(4):
            if 4 * q + k < 14:
                a(f'buffer_load_dwordx4 {R(vL16)}, {S(sWS,4)}, {S(sT0)} offen offset:{k*1024} sc1 lds')
        a(f's_add_u32 {S(sT0)}, {S(sT0)}, 4096')
        a(f's_add_u32 m0, m0, 4096')
    load_weights(a, lambda t: toff(HL[t + 1]))
    a(f's_mul_i32 {S(sStr)}, {S(sJ)}, {V_J}')
    a(f's_lshr_b32 {S(sT0)}, {S(sWave)}, 1')
    a(f's_lshl_b32 {S(sT0)}, {S(sT0)}, 13')
    a(f's_add_u32 {S(sStr)}, {S(sStr)}, {S(sT0)}')
    a(f's_add_u32 {S(sStr)}, {S(sStr)}, {VIMG}')
    a(f's_lshl_b32 {S(sVX)}, {S(sWave)}, 13')
    a(f's_add_u32 {S(sVX)}, {S(sVX)}, {C_VX}')
    a(f's_mov_b32 {S(sSpin)}, 0')
    ensure_rdy(a, EXIT, 1, None)
    for i in cvdma(): a(i)
    Lhi = {2: a.newlabel('CHI'), 3: a.newlabel('CHI')}
    for x in (2, 3):
        a(f's_cmp_eq_u32 {S(sWave)}, {x}')
        a(f's_cbranch_scc1 {Lhi[x]}')
    for hiw in (0, 2, 3):
        if hiw:
            a.label(Lhi[hiw]); a.reset_hist()
        gen_C_wave(a, hiw, EXIT, stamp)

def gen_C_wave(a, hiw, EXIT, stamp):
    ACC = [vAcc, vAcc + 4, vAcc + 8, vT0]
    UB = vPoll
    EF = vBig; VF = [vBig + 16 + 4 * i for i in range(8)]
    WACC = [vBig + 48, vBig + 52, vMem, vMem + 4]
    WBK = vAcc
    if hiw == 0:
        a(f'buffer_load_dword {R(vT0)}, {R(vA1)}, s[32:35], 0 offen')
        a(f'v_and_b32 {R(vA1)}, 0x70, {R(vA0)}')
        a(f'v_bfe_u32 {R(vT1)}, {R(vLane)}, 3, 1')
        a(f'v_lshl_add_u32 {R(vA1)}, {R(vT1)}, 8, {R(vA1)}')
        a(f'v_bfe_u32 {R(vT1)}, {R(vLane)}, 1, 2')
        a(f'v_lshl_add_u32 {R(vA1)}, {R(vT1)}, 2, {R(vA1)}')
        a(f's_lshl_b32 {S(sT0)}, {S(sJ)}, 9')
        a(f'v_add_u32 {R(vA1)}, {S(sT0)}, {R(vA1)}')
        a('s_waitcnt vmcnt(0)')
        a(f'v_min_u32 {R(vT0)}, -2, {R(vT0)}')
        a(f's_mov_b32 {S(sT0)}, {TBOX}')
        a(f'buffer_store_dword {R(vT0)}, {R(vA0)}, {S(sWS,4)}, {S(sT0)} offen sc1')
        a(f's_mov_b32 {S(sT0)}, {MBOX}')
        a(f'buffer_store_dword {R(vT0)}, {R(vA1)}, {S(sWS,4)}, {S(sT0)} offen sc1')
    else:
        a(f'v_mov_b32 {R(vA1)}, -1')
        for sl in range(1, 4):
            a(f's_mov_b32 {S(sT0)}, {TBOX + sl*SLOT}')
            a(f'buffer_store_dword {R(vA1)}, {R(vA0)}, {S(sWS,4)}, {S(sT0)} offen sc1')
        a(f'v_mov_b32 {R(vT0)}, 0')
        a(f's_mov_b32 {S(sT0)}, {PROG}')
        a(f'buffer_store_dword {R(vT0)}, {R(vT0)}, {S(sWS,4)}, {S(sT0)} offen sc1')
    if not hiw:
        a(f'v_bfe_u32 {R(vT0)}, {R(vLane)}, 1, 2')
        for q in range(4): a(f'v_cmp_eq_u32 s[{84+2*q}:{85+2*q}], {q}, {R(vT0)}')
        a(f'v_lshlrev_b32 v0, 3, {R(vLane)}')
        a(f'v_add_u32 v0, {PB + 2048}, v0')
    team_barrier(a, EXIT)
    both_modes(a, lambda: gen_C_loop(a, hiw, EXIT, stamp))

def gen_C_loop(a, hiw, EXIT, stamp):
    ACC = [vAcc, vAcc + 4, vAcc + 8, vT0]
    UB = vPoll
    EF = vBig; VF = [vBig + 16 + 4 * i for i in range(8)]
    WACC = [vBig + 48, vBig + 52, vMem, vMem + 4]
    WBK = vAcc
    a(f's_mov_b32 {S(sStep)}, 0')
    if stamp: stamp(a, 0)
    L = a.newlabel('CLOOP')
    a.label(L); a.reset_hist()
    if not hiw: a('s_barrier')
    slots(a)
    a(f's_mov_b32 {S(sSpin)}, 0')
    a(f'v_add_u32 {R(vA7)}, {S(sVX)}, {R(vL16)}')
    a(f's_sub_u32 {S(sT0)}, {S(sVX)}, {C_VX}')
    a(f's_xor_b32 {S(sT0)}, {S(sT0)}, 32768')
    a(f's_add_u32 {S(sVX)}, {S(sT0)}, {C_VX}')
    if STRM_MASK is None and not VFIX: a(f's_add_u32 {S(sStr)}, {S(sStr)}, {V_S}')
    ensure_rdy(a, EXIT, 2)
    wpre = [f'ds_read_b128 {R(vBig+4*k,4)}, {R(vA5)} offset:{k*1024}' for k in range(14)]
    own = {0: [], 2: [0, 1, 2, 3], 3: [4, 5, 6]}[hiw]
    if hiw:
        a(f's_add_u32 {S(sT3)}, {S(sCur)}, {own[0]*1024}')
        a('s_waitcnt vmcnt(0)')
        for x in wpre: a(x)
        for z in zero4(ACC[0]) + zero4(ACC[1]) + zero4(ACC[2]): a(z)
        a(f'v_lshlrev_b32 {R(vT1)}, 7, {R(vLane)}')
        a(f's_add_u32 {S(sT1)}, {S(sStr)}, {(PFD-1)*V_S}')
        a('s_barrier')
        for k in range(C_PF):
            if k: a(f's_xor_b32 {S(sT1)}, {S(sT1)}, 8192')
            a(f'buffer_load_dword {R(vT2)}, {R(vT1)}, {S(sWS,4)}, {S(sT1)} offen sc1')
        if C_SLEEP: a(f's_sleep {C_SLEEP}')
        Lp = a.newlabel('CPM')
        TS(a, 0)
        n = len(own)
        def rnd():
            for k, c in enumerate(own):
                a(f'buffer_load_dwordx4 {R(vMem+4*c,4)}, {R(vL16)}, {S(sWS,4)}, {S(sT3)} offen offset:{k*1024} sc1')
        for d in range(CMDEPTH - 1):
            rnd()
            a(f's_sleep {CMSTAG}')
        a.label(Lp)
        rnd()
        spin_guard(a, EXIT)
        for k, c in enumerate(own):
            a(f's_waitcnt vmcnt({n*(CMDEPTH-1) + n - 1 - k})')
            for x in acc_max(vA4, range(vMem+4*c, vMem+4*c+4), k == 0): a(x)
        a(f'v_cmp_eq_u32 vcc, -1, {R(vA4)}')
        a(f's_cbranch_vccnz {Lp}')
        TS(a, 2)
        for c in own: a(f'ds_write_b128 {R(vL16)}, {R(vMem+4*c,4)} offset:{c*1024}')
    else:
        a(f's_waitcnt vmcnt({3 if INSTR else 2})')
        for x in wpre: a(x)
        for z in zero4(ACC[0]) + zero4(ACC[1]) + zero4(ACC[2]): a(z)
        TS(a, 2)
    for z in zero4(ACC[3]): a(z)
    a('s_waitcnt lgkmcnt(0)')
    a('s_barrier')
    TS(a, 3)
    cord = own + [c for c in range(7) if c not in own]
    for c in cord[len(own):]:
        a(f'ds_read_b128 {R(vMem+4*c,4)}, {R(vL16)} offset:{c*1024}')
    def comb(p):
        x, y = ACC[(2*p) % 4], ACC[(2*p+1) % 4]
        r0 = UB + 4 * (p // 2) + (p % 2)
        o = [f'v_permlane32_swap_b32 {R(x+r)}, {R(y+r)}' for r in range(4)]
        o += [f'v_add_f32 {R(x+r)}, {R(x+r)}, {R(y+r)}' for r in range(4)]
        o += [f'v_cvt_pk_bf16_f32 {R(r0)}, {R(x)}, {R(x+1)}', f'v_cvt_pk_bf16_f32 {R(r0+2)}, {R(x+2)}, {R(x+3)}']
        return o
    G = []
    for t in range(8):
        for c in cord:
            wr = WREG(t - 1, c) if t else vBig + 8 * c
            G.append(f'{SM} {R(ACC[t%4],4)}, {R(vMem+4*c,4)}, {R(wr,8)}, {R(vIdx)}')
    gp = Gaps()
    k = gp.place(comb(0), 16); gp.fixed(26, zero4(ACC[0])); gp.place(zero4(ACC[1]), 27)
    k = gp.place(comb(1), 30); gp.fixed(40, zero4(ACC[2])); gp.place(zero4(ACC[3]), 41)
    gp.place(comb(2), 44)
    def vread(i): return f'ds_read_b128 {R(VF[i],4)}, {R(vA7)} offset:{HL[i]*1024}'
    def eld(i): return f'buffer_load_dwordx4 {R(EF+4*i,4)}, {R(vA2)}, {S(sWS,4)}, {S(sCur)} offen offset:{i*1024} sc1'
    if not NOSTREAM: gp.place(cvdma(), 0, step=CVLDE)
    k = gp.place([vread(i) for i in range(8)], 7)
    sw = []
    for p in range(4):
        sw += [f'v_swap_b32 {R(VF[2*p]+1)}, {R(VF[2*p+1])}', f'v_swap_b32 {R(VF[2*p]+3)}, {R(VF[2*p+1]+2)}']
    k = gp.place([eld(i) for i in range(4)], EPOLL, step=ESTEP)
    k = gp.place([eld(i) for i in range(4)], EPOLL2, step=ESTEP); assert k <= 55
    gp.place(zero4(WACC[0]) + zero4(WACC[1]), 8)
    gp.fixed(22, ['s_waitcnt lgkmcnt(0)'])
    gp.place(sw, 22, cap=2, step=4)
    if hiw: gp.place([f'buffer_store_dword {R(vA1)}, {R(vA0)}, {S(sWS,4)}, {S(sPrv)} offen {ST}'], 1)
    for i in gp.weave(first_waits(G), 55): a(i)
    TS(a, 4)
    for z in zero4(WACC[2]) + zero4(WACC[3]): a(z)
    for x in comb(3): a(x)
    if hiw:
        a(f'ds_write_b128 {R(vA6)}, {R(UB,4)}')
        a(f'ds_write_b128 {R(vA6)}, {R(UB+4,4)} offset:1024')
    Le = a.newlabel('CPE'); Lg = a.newlabel('CEG')
    TS(a, 11)
    if INSTR: a(f's_mov_b32 {S(sSpin)}, 0')
    a('s_waitcnt vmcnt(4)')
    TS(a, 9)
    check_regs(a, EF, 16, vA4)
    a(f's_cbranch_vccz {Lg}')
    a.label(Le)
    for i in range(4): a(eld(i))
    spin_guard(a, EXIT)
    a('s_waitcnt vmcnt(4)')
    check_regs(a, EF, 16, vA4)
    a(f's_cbranch_vccnz {Le}')
    a.label(Lg)
    TS(a, 5)
    if INSTR: a(f's_mov_b32 s64, {S(sSpin)}')
    def wcv(p):
        r0 = WBK + 4 * (p // 2) + (p % 2)
        return [f'v_cvt_pk_bf16_f32 {R(r0)}, {R(WACC[p])}, {R(WACC[p]+1)}', f'v_cvt_pk_bf16_f32 {R(r0+2)}, {R(WACC[p]+2)}, {R(WACC[p]+3)}']
    for p in range(4):
        a(f'{SM} {R(WACC[p],4)}, {R(EF+4*p,4)}, {R(VF[2*p],8)}, {R(vIdx)}')
    for x in wcv(0) + wcv(1): a(x)
    if hiw: a(f'ds_write_b128 {R(vA6)}, {R(WBK,4)} offset:2048')
    for x in wcv(2) + wcv(3): a(x)
    if hiw:
        a(f'ds_write_b128 {R(vA6)}, {R(WBK+4,4)} offset:3072')
        a('s_waitcnt lgkmcnt(0)')
        a('s_barrier')
    else:
        UB2 = vBig; WB2 = vBig + 8; PF = vMem + 8; FR2 = vMem + 16; DG = vMem + 20; DD = vAcc + 8
        def pr():
            for k in range(2):
                a(f'buffer_load_dwordx4 {R(PF+4*k,4)}, {R(vA3)}, {S(sWS,4)}, {S(sCur)} offen offset:{k*1024} sc1')
            a(f'buffer_load_dwordx2 {R(FR2,2)}, v0, {S(sWS,4)}, {S(sCur)} offen sc1')
        for z in zero4(DD): a(z)
        pr()
        a('s_waitcnt vmcnt(3)')
        a('s_barrier')
        for k in range(4):
            a(f'ds_read_b128 {R(UB2+4*k,4)}, {R(vA6)} offset:{k*1024}')
        TS(a, 6)
        Lq = a.newlabel('CPP')
        for d in range(CDEPTH - 2):
            pr()
            if CSTAG: a(f's_sleep {CSTAG}')
        a('s_waitcnt lgkmcnt(0)')
        a.label(Lq)
        pr()
        spin_guard(a, EXIT)
        for k in range(3):
            a(f's_waitcnt vmcnt({3*(CDEPTH-1) + 2 - k})')
            for x in acc_max(vT0, range(PF+4*k, PF+4*k+(4 if k < 2 else 2)), k == 0): a(x)
        a(f'v_cmp_eq_u32 vcc, -1, {R(vT0)}')
        a(f's_cbranch_vccnz {Lq}')
        TS(a, 7)
        if INSTR: a(f's_mov_b32 s46, {S(sSpin)}')
        def dg(z): return [f'v_cndmask_b32 {R(DG+4*z+q)}, 0, {R(FR2+z)}, s[{84+2*q}:{85+2*q}]' for q in range(4)]
        a(f'{SM} {R(DD,4)}, {R(PF,4)}, {R(UB,8)}, {R(vIdx)}')
        for x in dg(0): a(x)
        a(f'{SM} {R(DD,4)}, {R(PF+4,4)}, {R(UB2,8)}, {R(vIdx)}')
        for x in dg(1)[:2]: a(x)
        a(f'{SM} {R(DD,4)}, {R(DG,4)}, {R(WBK,8)}, {R(vIdx)}')
        for x in dg(1)[2:]: a(x)
        a(f'{SM} {R(DD,4)}, {R(DG+4,4)}, {R(WB2,8)}, {R(vIdx)}')
        a(f'v_permlane32_swap_b32 {R(DD)}, {R(DD+2)}')
        a(f'v_permlane32_swap_b32 {R(DD+1)}, {R(DD+3)}')
        a(f'v_add_f32 {R(DD)}, {R(DD)}, {R(DD+2)}')
        a(f'v_add_f32 {R(DD+1)}, {R(DD+1)}, {R(DD+3)}')
        a(f'v_mov_b32_dpp {R(DD+2)}, {R(DD)} quad_perm:[1,0,3,2] {DP}')
        a(f'v_mov_b32_dpp {R(DD+3)}, {R(DD+1)} quad_perm:[1,0,3,2] {DP}')
        a(f'v_cvt_pk_bf16_f32 {R(DD)}, {R(DD)}, {R(DD+2)}')
        a(f'v_cvt_pk_bf16_f32 {R(DD+1)}, {R(DD+3)}, {R(DD+1)}')
        a(f'v_cndmask_b32 {R(DD)}, {R(DD+1)}, {R(DD)}, s[36:37]')
        a(f'v_min_u32 {R(DD)}, -2, {R(DD)}')
        TS(a, 8)
        a(f'buffer_store_dword {R(DD)}, {R(vA0)}, {S(sWS,4)}, {S(sNxt)} offen {ST}')
        a(f'buffer_store_dword {R(DD)}, {R(vA1)}, {S(sWS,4)}, {S(sMc)} offen {ST}')
    step_end(a, L)
    if stamp: stamp(a, 1)
    a(f's_branch {EXIT}')

def gen_PF(a, EXIT):
    a(f'v_and_b32 {R(vLane)}, 63, v0')
    a(f'v_lshlrev_b32 {R(vL16)}, 7, {R(vLane)}')
    a(f's_mov_b32 {S(sSpin)}, 0')
    team_barrier(a, EXIT, arrive=False)
    a(f's_lshl_b32 {S(sJ)}, {S(sRole)}, 2')
    a(f's_add_u32 {S(sJ)}, {S(sJ)}, {S(sWave)}')
    a(f's_mov_b32 {S(sStep)}, 1')
    a(f'v_mov_b32 {R(vT0)}, 0')
    a(f's_mov_b32 {S(sT3)}, {PROG}')
    L = a.newlabel('PFL'); Lw = a.newlabel('PFW'); Lgo = a.newlabel('PFG')
    a.label(L)
    a(f's_mov_b32 {S(sSpin)}, 0')
    a.label(Lw)
    a(f'buffer_load_dword {R(vT1)}, {R(vT0)}, {S(sWS,4)}, {S(sT3)} offen sc1')
    spin_guard(a, EXIT)
    a('s_waitcnt vmcnt(0)')
    a(f'v_readfirstlane_b32 {S(sT0)}, {R(vT1)}')
    a(f's_add_u32 {S(sT0)}, {S(sT0)}, {PFD}')
    a(f's_cmp_le_u32 {S(sStep)}, {S(sT0)}')
    a(f's_cbranch_scc1 {Lgo}')
    a('s_sleep 4')
    a(f's_branch {Lw}')
    a.label(Lgo)
    a(f's_mul_i32 {S(sT0)}, {S(sStep)}, {V_S}')
    a(f's_mul_i32 {S(sT1)}, {S(sJ)}, {V_J}')
    a(f's_add_u32 {S(sT0)}, {S(sT0)}, {S(sT1)}')
    a(f's_add_u32 {S(sT0)}, {S(sT0)}, {VIMG}')
    for i in range(4):
        if i == 3:
            Ls = a.newlabel('PFS')
            a(f's_cmp_ge_u32 {S(sJ)}, 4')
            a(f's_cbranch_scc1 {Ls}')
        a(f'buffer_load_dword {R(vT2)}, {R(vL16)}, {S(sWS,4)}, {S(sT0)} offen sc1')
        a(f's_add_u32 {S(sT0)}, {S(sT0)}, {8*V_J}')
    a.label(Ls)
    a(f's_add_u32 {S(sStep)}, {S(sStep)}, 1')
    a(f's_cmp_lt_u32 {S(sStep)}, 64')
    a(f's_cbranch_scc1 {L}')
    a(f's_branch {EXIT}')


def gen_spare(a, EXIT):
    a(f'v_and_b32 {R(vLane)}, 63, v0')
    a(f's_mov_b32 {S(sSpin)}, 0')
    Lpf = a.newlabel('SPF'); Lex = a.newlabel('SEX'); Lgk = a.newlabel('SGK'); Ltb = a.newlabel('STB')
    a(f's_lshl_b32 {S(sJ)}, {S(sRole)}, 2')
    a(f's_add_u32 {S(sJ)}, {S(sJ)}, {S(sWave)}')
    a(f's_cmp_eq_u32 {S(sJ)}, 1')
    a(f's_cbranch_scc1 {Lgk}')
    a(f's_cmp_eq_u32 {S(sJ)}, 5')
    a(f's_cbranch_scc1 {Lex}')
    Lw0 = a.newlabel('SW0')
    a(f's_mov_b32 {S(sT0)}, {F_TBAR}')
    a(f's_cmp_lg_u32 {S(sWave)}, 0')
    a(f's_cbranch_scc1 {Lw0}')
    a(f'v_mov_b32 {R(vT1)}, {S(sArr)}')
    a('s_mov_b64 exec, 1')
    a(f'buffer_atomic_add {R(vT1)}, off, {S(sWS,4)}, {S(sT0)} sc1')
    a('s_mov_b64 exec, -1')
    a.label(Lw0)
    a(f'buffer_load_dword {R(vT2)}, off, {S(sWS,4)}, {S(sT0)} sc1')
    spin_guard(a, EXIT)
    a('s_sleep 8')
    a('s_waitcnt vmcnt(0)')
    a(f'v_and_b32 {R(vT1)}, 0x3f, {R(vT2)}')
    a(f'v_cmp_gt_u32 vcc, 32, {R(vT1)}')
    a(f's_cbranch_vccnz {Lw0}')
    a(f's_cmp_gt_u32 {S(sJ)}, 5')
    a(f's_cselect_b32 {S(sT1)}, 2, 1')
    a(f's_cmp_eq_u32 {S(sJ)}, 0')
    a(f's_cselect_b32 {S(sT1)}, 0, {S(sT1)}')
    a(f's_sub_u32 {S(sJ)}, {S(sJ)}, {S(sT1)}')
    a(f'v_lshlrev_b32 {R(vL16)}, 7, {R(vLane)}')
    a(f's_mov_b32 {S(sStep)}, 1')
    a(f's_mov_b32 {S(sT3)}, {PROG}')
    L = a.newlabel('PFL'); Lw = a.newlabel('PFW'); Lgo = a.newlabel('PFG')
    a.label(L)
    a(f's_mov_b32 {S(sSpin)}, 0')
    ensure_rdy(a, EXIT, 1)
    a.label(Lw)
    a(f'buffer_load_dword {R(vT1)}, off, {S(sWS,4)}, {S(sT3)} sc1')
    spin_guard(a, EXIT)
    a('s_waitcnt vmcnt(0)')
    a(f'v_readfirstlane_b32 {S(sT0)}, {R(vT1)}')
    a(f's_add_u32 {S(sT0)}, {S(sT0)}, {PFD}')
    a(f's_cmp_le_u32 {S(sStep)}, {S(sT0)}')
    a(f's_cbranch_scc1 {Lgo}')
    a('s_sleep 4')
    a(f's_branch {Lw}')
    a.label(Lgo)
    a(f's_mul_i32 {S(sT0)}, {S(sStep)}, {V_S}')
    a(f's_mul_i32 {S(sT1)}, {S(sJ)}, {V_J}')
    a(f's_add_u32 {S(sT0)}, {S(sT0)}, {S(sT1)}')
    a(f's_add_u32 {S(sT0)}, {S(sT0)}, {VIMG}')
    for i in range(5):
        if i == 4:
            Ls = a.newlabel('PFS')
            a(f's_cmp_ge_u32 {S(sJ)}, 4')
            a(f's_cbranch_scc1 {Ls}')
        a(f'buffer_load_dword {R(vT2)}, {R(vL16)}, {S(sWS,4)}, {S(sT0)} offen sc1')
        a(f's_add_u32 {S(sT0)}, {S(sT0)}, {6*V_J}')
    a.label(Ls)
    a(f's_add_u32 {S(sStep)}, {S(sStep)}, 1')
    a(f's_cmp_lt_u32 {S(sStep)}, 64')
    a(f's_cbranch_scc1 {L}')
    a(f's_branch {EXIT}')
    a.label(Lgk); a.reset_hist()
    a(f'v_lshlrev_b32 {R(vL16)}, 3, {R(vLane)}')
    a(f's_mov_b32 {S(sStep)}, 0')
    a(f's_mov_b32 {S(sT3)}, {F_KV}')
    a(f's_mov_b32 {S(sT2)}, {F_RDY}')
    for ng in (7, 1):
        Lg = a.newlabel('GKL')
        a.label(Lg)
        for i in range(ng):
            a(f'buffer_load_dwordx2 {R(vMem+2*i,2)}, {R(vL16)}, {S(sWS,4)}, {S(sT3)} offen offset:{i*512} sc1')
        spin_guard(a, EXIT)
        a('s_sleep 2')
        a('s_waitcnt vmcnt(0)')
        a(f'v_min_u32 {R(vT0)}, {R(vMem)}, {R(vMem+1)}')
        for i in range(1, ng):
            a(f'v_min3_u32 {R(vT0)}, {R(vT0)}, {R(vMem+2*i)}, {R(vMem+2*i+1)}')
        a(f'v_cmp_eq_u32 vcc, 0, {R(vT0)}')
        a(f's_cbranch_vccnz {Lg}')
        a(f's_add_u32 {S(sStep)}, {S(sStep)}, {ng}')
        a(f'v_mov_b32 {R(vT2)}, {S(sStep)}')
        a('s_mov_b64 exec, 1')
        a(f'buffer_store_dword {R(vT2)}, off, {S(sWS,4)}, {S(sT2)} sc1')
        a('s_mov_b64 exec, -1')
        if ng == 7:
            a(f's_add_u32 {S(sT3)}, {S(sT3)}, {7*512}')
            a(f's_cmp_lt_u32 {S(sStep)}, 63')
            a(f's_cbranch_scc1 {Lg}')
    a(f's_branch {EXIT}')
    a.label(Lex); a.reset_hist()
    a(f'v_lshrrev_b32 {R(vT0)}, 3, {R(vLane)}')
    a(f'v_lshlrev_b32 {R(vT0)}, 8, {R(vT0)}')
    a(f'v_and_b32 {R(vT1)}, 7, {R(vLane)}')
    a(f'v_lshl_add_u32 {R(vA0)}, {R(vT1)}, 4, {R(vT0)}')
    for i in range(1, 4): a(f'v_add_u32 {R(vA0+i)}, {4096*i}, {R(vA0)}')
    a(f's_mov_b32 {S(sStep)}, 0')
    a(f's_mov_b32 {S(sT3)}, {MBOX}')
    Le = a.newlabel('EXL')
    a.label(Le)
    for c in range(7):
        a(f'buffer_load_dwordx4 {R(vMem+4*c,4)}, {R(vA0 + c//2)}, {S(sWS,4)}, {S(sT3)} offen offset:{(c%2)*2048} sc1')
    spin_guard(a, EXIT)
    a('s_waitcnt vmcnt(0)')
    check_regs(a, vMem, 28, vT0)
    a(f's_cbranch_vccnz {Le}')
    a(f's_add_u32 {S(sT2)}, {S(sT3)}, {MEMX - MBOX}')
    for c in range(7):
        a(f'buffer_store_dwordx4 {R(vMem+4*c,4)}, {R(vA0 + c//2)}, {S(sWS,4)}, {S(sT2)} offen offset:{(c%2)*2048} sc1')
    a(f's_mov_b32 {S(sSpin)}, 0')
    a(f's_bitcmp1_b32 {S(sStep)}, 0')
    a(f's_cselect_b32 {S(sT0)}, {14336 - 256}, 0')
    a(f's_add_u32 {S(sT3)}, {S(sT3)}, {S(sT0)}')
    a(f's_add_u32 {S(sT3)}, {S(sT3)}, 128')
    a(f's_add_u32 {S(sStep)}, {S(sStep)}, 1')
    a(f's_cmp_lt_u32 {S(sStep)}, 64')
    a(f's_cbranch_scc1 {Le}')
    a(f's_branch {EXIT}')


def gen_OBS(a, EXIT):
    a(f'v_and_b32 {R(vLane)}, 63, v0')
    a(f'v_lshlrev_b32 {R(vL16)}, 4, {R(vLane)}')
    a(f's_mov_b32 {S(sSpin)}, 0')
    team_barrier(a, EXIT, arrive=False)
    a(f's_cmp_eq_u32 {S(sWave)}, 3')
    a(f's_cbranch_scc1 {EXIT}')
    a(f'v_and_b32 {R(vT0)}, 15, {R(vLane)}')
    a(f'v_lshlrev_b32 {R(vA0)}, 7, {R(vT0)}')
    a(f'v_add_u32 {R(vA0)}, {PB}, {R(vA0)}')
    a(f'v_and_b32 {R(vT0)}, 7, {R(vLane)}')
    a(f'v_lshlrev_b32 {R(vA1)}, 10, {R(vT0)}')
    a(f'v_bfe_u32 {R(vT0)}, {R(vLane)}, 3, 1')
    a(f'v_lshl_add_u32 {R(vA1)}, {R(vT0)}, 7, {R(vA1)}')
    a(f'v_add_u32 {R(vA1)}, {EB}, {R(vA1)}')
    a(f'v_min_u32 {R(vA2)}, 27, {R(vLane)}')
    a(f'v_lshlrev_b32 {R(vA2)}, 8, {R(vA2)}')
    a(f's_cmp_eq_u32 {S(sWave)}, 1')
    a('s_cselect_b64 vcc, -1, 0')
    a(f'v_cndmask_b32 {R(vA0)}, {R(vA0)}, {R(vA1)}, vcc')
    a(f's_cmp_eq_u32 {S(sWave)}, 2')
    a('s_cselect_b64 vcc, -1, 0')
    a(f'v_cndmask_b32 {R(vA0)}, {R(vA0)}, {R(vA2)}, vcc')
    a('s_mov_b64 exec, 0xfffffff')
    a(f's_mov_b32 {S(sStep)}, 0')
    L = a.newlabel('OBL'); Lp = a.newlabel('OBP')
    a.label(L)
    slots(a)
    a(f's_cmp_eq_u32 {S(sWave)}, 2')
    a(f's_cselect_b32 {S(sCur)}, {S(sNxt)}, {S(sCur)}')
    a(f's_mov_b32 {S(sSpin)}, 0')
    a('s_waitcnt vmcnt(0)')
    for d in range(2):
        a(f'buffer_load_dword {R(vT2)}, {R(vA0)}, {S(sWS,4)}, {S(sCur)} offen sc1')
        a('s_sleep 1')
    a.label(Lp)
    a(f'buffer_load_dword {R(vT2)}, {R(vA0)}, {S(sWS,4)}, {S(sCur)} offen sc1')
    spin_guard(a, EXIT)
    a('s_waitcnt vmcnt(2)')
    a(f'v_cmp_eq_u32 vcc, -1, {R(vT2)}')
    a(f's_cbranch_vccnz {Lp}')
    a('s_mov_b64 exec, -1')
    step_end(a, L + 'X')
    a(f's_branch {EXIT}')
    a.label(L + 'X')
    a('s_mov_b64 exec, 0xfffffff')
    a(f's_branch {L}')
```

```python
from asmlib import *
from layout import *
from prep import f2u, LOG2E, srd
import phase0
MF = 'v_mfma_f32_16x16x32_bf16'
MF16 = 'v_mfma_f32_16x16x16_bf16'
WST = ''
WLD = ''
sWS = 8; sRole = 12; sWave = 13
def WREG(t, c):
    i = t * 7 + c
    return 120 + 8 * i if i < 17 else 256 + 8 * (i - 17)
def W(t, ks): return WREG(t, ks // 2) + 4 * (ks % 2)
X_RING = 0; S_RED = 4 * 28672
def acc(qt, t): return 64 + 4 * (7 * qt + t)

WINSTR = False
def WT(a, k):
    if WINSTR: a(f's_memtime s[{60+2*k}:{61+2*k}]')
def wdump(a, cond_reg, val):
    if not WINSTR: return
    L = a.newlabel('WD')
    a(f's_cmp_lg_u32 {cond_reg}, {val}')
    a(f's_cbranch_scc1 {L}')
    a('s_waitcnt lgkmcnt(0)')
    a('s_lshl_b32 s82, s83, 8')
    a('s_lshl_b32 s81, s13, 6')
    a('s_add_u32 s82, s82, s81')
    a(f's_add_u32 s82, s82, {DBG + 131072}')
    for k in range(10):
        a(f'v_mov_b32 v15, s{60+2*k}')
        a(f'buffer_store_dword v15, off, s[8:11], s82 offset:{4*k}')
    a('s_waitcnt vmcnt(0)')
    a.label(L)

class Hooks:
    def wait(self, a, what): pass
    def signal(self, a, what): pass

def lane_setup(a):
    a('v_and_b32 v1, 63, v0')
    a('v_lshlrev_b32 v2, 4, v1')
    a('v_and_b32 v3, 15, v1')
    a('v_lshrrev_b32 v4, 4, v1')

def kv_setup(a):
    lane_setup(a)
    a('s_mul_i32 s14, s12, 9363')
    a('s_lshr_b32 s14, s14, 16')
    a('s_mul_i32 s15, s14, 7')
    a('s_sub_u32 s15, s12, s15')
    a('s_and_b32 s16, s14, 15')

def kv_weights(a):
    a('s_and_b32 s17, s13, 1')
    a('s_mul_i32 s18, s13, 7')
    a('s_add_u32 s19, s18, s17')
    a('s_xor_b32 s20, s17, 1')
    a('s_mul_i32 s20, s20, 6')
    a('s_add_u32 s20, s20, s18')
    a(f's_mul_i32 s21, s14, {MAT}')
    for t in range(7):
        if t < 6: a(f's_add_u32 s22, s19, {t}')
        else: a('s_mov_b32 s22, s20')
        a('s_mul_i32 s22, s22, 14336')
        a('s_add_u32 s22, s22, s21')
        for q in range(4):
            if q: a('s_add_u32 s22, s22, 4096')
            for k in range(4):
                ks = 4 * q + k
                if ks < 14:
                    a(f'buffer_load_dwordx4 {R(W(t,ks),4)}, v2, s[8:11], s22 offen offset:{k*1024} {WLD}')
    a('s_lshr_b32 s23, s19, 1')
    a('s_lshl_b32 s23, s23, 10')
    a('s_lshr_b32 s24, s20, 1')
    a('s_lshl_b32 s24, s24, 10')
    a('s_lshl_b32 s25, s17, 3')
    a('s_add_u32 s24, s24, s25')

def xdma(a, seg_s, slot_s):
    a(f's_mul_i32 s26, {seg_s}, 28672')
    a('s_mul_i32 s27, s13, 7168')
    a('s_add_u32 s26, s26, s27')
    a(f's_add_u32 s26, s26, {XIMG}')
    a(f's_add_u32 m0, {slot_s}, s27')
    for k in range(7):
        if k == 4:
            a('s_add_u32 s26, s26, 4096')
            a('s_add_u32 m0, m0, 4096')
        a(f'buffer_load_dwordx4 v2, s[8:11], s26 offen offset:{(k%4)*1024} {WLD} lds')

KFR = 36
def k_cvt(a, kt, accq):
    for p in range(3):
        for b in range(2):
            for q in range(2):
                a(f'v_cvt_pk_bf16_f32 {R(KFR+14*kt+4*p+2*b+q)}, {R(acc(accq,2*p+b)+2*q)}, {R(acc(accq,2*p+b)+2*q+1)}')
    for q in range(2):
        a(f'v_cvt_pk_bf16_f32 {R(KFR+14*kt+12+q)}, {R(acc(accq,6)+2*q)}, {R(acc(accq,6)+2*q+1)}')

def xq_reads(a, dst, off):
    for p in range(3):
        a(f'ds_read_b128 {R(dst+4*p,4)}, v5 offset:{off + p*1024}')
    a(f'ds_read_b64 {R(dst+12,2)}, v6 offset:{off}')

def s_tiles(a, lst):
    for p in range(3):
        for d, kf, xq in lst:
            a(f'{MF} {R(d,4)}, {R(kf+4*p,4)}, {R(xq+4*p,4)}, {"0" if p == 0 else R(d,4)}')
    for d, kf, xq in lst:
        a(f'{MF16} {R(d,4)}, {R(kf+12,2)}, {R(xq+12,2)}, {R(d,4)}')

def gen_kv(a, hooks, isK):
    a('s_mov_b32 s28, s15')
    a(f's_mov_b32 s29, {X_RING}')
    xdma(a, 's28', 's29')
    a('s_mov_b32 s34, 0')
    a('s_waitcnt vmcnt(0)')
    L = a.newlabel('KVL'); Ln = a.newlabel('KVN'); Ld = a.newlabel('KVD')
    a.label(L); a.reset_hist()
    a('s_barrier')
    a('s_add_u32 s30, s28, 7')
    a('s_sub_u32 s31, 28672, s29')
    a('s_cmp_ge_u32 s30, 64')
    a(f's_cbranch_scc1 {Ln}')
    xdma(a, 's30', 's31')
    a.label(Ln)
    a('v_add_u32 v7, s29, v2')
    def xr(ks):
        b = 16 + 8 * (ks % 2)
        a(f'ds_read_b128 {R(b,4)}, v7 offset:{ks*1024}')
        a(f'ds_read_b128 {R(b+4,4)}, v7 offset:{14336 + ks*1024}')
    xr(0); xr(1)
    for ks in range(14):
        a(f's_waitcnt lgkmcnt({2 if ks < 13 else 0})')
        b = 16 + 8 * (ks % 2)
        for qt in range(2):
            for t in range(7):
                c = '0' if ks == 0 else R(acc(qt, t), 4)
                x = R(b + 4 * qt, 4); w = R(W(t, ks), 4)
                a(f'{MF} {R(acc(qt,t),4)}, {w if isK else x}, {x if isK else w}, {c}')
        if ks + 2 < 14: xr(ks + 2)
        if ks == 6: hooks.signal(a, ('kvmid',))
    if isK:
        a('s_lshl_b32 s26, s28, 4')
        a('s_add_u32 s26, s26, s16')
        a('s_mul_i32 s27, s26, 3072')
        a(f's_add_u32 s27, s27, {SXX}')
        a(f's_mul_i32 s26, s16, {K_H}')
        a(f's_mul_i32 s32, s28, {K_S}')
        a('s_add_u32 s26, s26, s32')
        a(f's_add_u32 s26, s26, {KIMG}')
        a('v_add_u32 v5, s23, v7')
        a('v_add_u32 v6, s24, v7')
        for kt in range(2):
            k_cvt(a, kt, kt)
            xq_reads(a, 64 + 28 * kt, kt * 14336)
            a(f's_add_u32 s32, s26, s23')
            a(f's_add_u32 s33, s26, s24')
            for p in range(3):
                a(f'buffer_store_dwordx4 {R(KFR+14*kt+4*p,4)}, v2, s[8:11], s32 offen offset:{p*1024} {WST}')
            a(f'buffer_store_dwordx2 {R(KFR+14*kt+12,2)}, v2, s[8:11], s33 offen {WST}')
            if kt == 0: a('s_add_u32 s26, s26, 14336')
        a('s_waitcnt lgkmcnt(0)')
        SD = 16
        s_tiles(a, [(SD, KFR, 64), (SD + 4, KFR, 92), (SD + 8, KFR + 14, 92)])
        a('s_mul_i32 s32, s13, 3072')
        a(f's_add_u32 s32, s32, {S_RED}')
        a('v_add_u32 v5, s32, v2')
        for i in range(3):
            a(f'ds_write_b128 v5, {R(SD+4*i,4)} offset:{i*1024}')
        a('s_waitcnt lgkmcnt(0)')
        a('s_barrier')
        Ls = a.newlabel('KVS')
        a('s_min_u32 s32, s13, 2')
        a('s_lshl_b32 s32, s32, 10')
        a('v_add_u32 v5, s32, v2')
        a(f'v_add_u32 v6, {S_RED}, v5')
        for i in range(4):
            a(f'ds_read_b128 {R(64+4*i,4)}, v6 offset:{i*3072}')
        a('s_waitcnt lgkmcnt(0)')
        for r in range(4):
            a(f'v_add_f32 {R(64+r)}, {R(64+r)}, {R(68+r)}')
            a(f'v_add_f32 {R(72+r)}, {R(72+r)}, {R(76+r)}')
        for r in range(4):
            a(f'v_add_f32 {R(32+r)}, {R(64+r)}, {R(72+r)}')
        a(f'buffer_store_dwordx4 v[32:35], v5, s[8:11], s27 offen {WST}')
        nst = 9
    else:
        a('s_lshl_b32 s32, s16, 10')
        a(f's_mul_i32 s26, s28, {V_S}')
        a('s_add_u32 s32, s32, s26')
        a(f's_add_u32 s32, s32, {VIMG}')
        a(f's_mul_i32 s26, s19, {V_J}')
        a(f's_mul_i32 s27, s20, {V_J}')
        a('s_add_u32 s26, s26, s32')
        a('s_add_u32 s27, s27, s32')
        for t in range(7):
            o = KFR + 4 * t
            for r in range(4):
                a(f'v_cvt_pk_bf16_f32 {R(o+r)}, {R(acc(0,t)+r)}, {R(acc(1,t)+r)}')
            a(f'buffer_store_dwordx4 {R(o,4)}, v2, s[8:11], {"s26" if t < 6 else "s27"} offen {WST}')
            if t < 5: a(f's_add_u32 s26, s26, {V_J}')
        nst = 7
    hooks.signal(a, ('kv', nst))
    a(f's_waitcnt vmcnt({nst})')
    a('s_mov_b32 s28, s30')
    a('s_mov_b32 s29, s31')
    a('s_cmp_lt_u32 s28, 64')
    a(f's_cbranch_scc1 {L}')
    hooks.signal(a, ('kvmid',))

MFR = [16 + 4 * i for i in range(12)] + [92, 96]
def gen_mirror(a, hooks, isK, z0, zstep, src):
    for i in range(1, 4): a(f'v_add_u32 v{11+i}, {4096*i}, v2')
    a(f's_mov_b32 s28, {z0}')
    if isK:
        a('v_add_u32 v5, s23, v2')
        a('v_add_u32 v6, s24, v2')
        a('v_and_b32 v9, 1, v4')
        a('v_lshlrev_b32 v9, 4, v9')
        a('v_lshl_add_u32 v9, v3, 5, v9')
        a('v_lshrrev_b32 v10, 1, v4')
        a('s_lshr_b32 s26, s13, 1')
        a('v_cmp_eq_u32 vcc, s26, v10')
        a('v_mov_b32 v10, 0x80000000')
        a('v_cndmask_b32 v9, v10, v9, vcc')
    else:
        a('v_lshrrev_b32 v9, 1, v4')
        a(f'v_mul_u32_u24 v9, {16*7168}, v9')
        a('v_and_b32 v10, 31, v1')
        a('v_lshl_add_u32 v9, v10, 4, v9')
        a('v_cmp_gt_u32 vcc, 16, v10')
        a('v_mov_b32 v10, 0x80000000')
        a('v_cndmask_b32 v10, v10, v9, vcc')
    def xpair(zs):
        a(f's_lshl_b32 s30, {zs}, 1')
        a(f's_and_b32 s31, {zs}, 1')
        a('s_mul_i32 s31, s31, 57344')
        xdma(a, 's30', 's31')
        a('s_add_u32 s30, s30, 1')
        a('s_add_u32 s31, s31, 28672')
        xdma(a, 's30', 's31')
    if isK:
        a('s_barrier')
        xpair('s28')
    a('s_mov_b32 s34, 0')
    L = a.newlabel('MIR')
    a.label(L); a.reset_hist()
    WT(a, 0)
    a('s_mul_i32 s26, s28, 14336')
    a(f's_add_u32 s26, s26, {src}')
    Lr = a.newlabel('MIRP'); Lq = a.newlabel('MIRQ')
    a('s_mov_b32 s35, 0')
    a(f's_branch {Lr}')
    a.label(Lq)
    hooks.wait(a, ('mem0', MFR[13]))
    a.label(Lr)
    for ks in range(14):
        a(f'buffer_load_dwordx4 {R(MFR[ks],4)}, {"v2" if ks < 4 else "v%d" % (11 + ks//4)}, s[8:11], s26 offen offset:{(ks%4)*1024} {WLD}')
    WT(a, 1)
    hooks.signal(a, ('pend', 14))
    WT(a, 2)
    hooks.wait(a, ('mem1', Lq))
    WT(a, 3)
    if isK:
        a('s_and_b32 s31, s28, 1')
        a('s_mul_i32 s31, s31, 57344')
        a('s_add_u32 s30, s31, s23')
        a('v_add_u32 v5, s30, v2')
        a('s_add_u32 s30, s31, s24')
        a('v_add_u32 v6, s30, v2')
    fill = []
    if isK:
        a(f's_add_u32 s29, s28, {zstep}')
        a('s_min_u32 s30, s29, 31')
        a('s_lshl_b32 s30, s30, 1')
        a('s_and_b32 s31, s29, 1')
        a('s_mul_i32 s31, s31, 57344')
        rec = fill.append
        xdma(rec, 's30', 's31')
        rec('s_add_u32 s30, s30, 1'); rec('s_add_u32 s31, s31, 28672')
        xdma(rec, 's30', 's31')
    for ks in range(14):
        for t in range(7):
            c = '0' if ks == 0 else R(acc(0, t), 4)
            x = R(MFR[ks], 4); w = R(W(t, ks), 4)
            a(f'{MF} {R(acc(0,t),4)}, {w if isK else x}, {x if isK else w}, {c}')
            if t == 0:
                while fill:
                    i = fill.pop(0); a(i)
                    if i.startswith('buffer_'): break
    if isK:
        WT(a, 4)
        a('s_barrier')
        WT(a, 5)
        k_cvt(a, 0, 0)
        XQ = [64, 78, 92, 106]
        for i in range(4): xq_reads(a, XQ[i], i * 14336)
        a('s_waitcnt lgkmcnt(0)')
        SD = 16
        WT(a, 6)
        s_tiles(a, [(SD + 4 * i, KFR, XQ[i]) for i in range(4)])
        a('s_lshl_b32 s32, s13, 12')
        a(f's_add_u32 s32, s32, {S_RED}')
        a('v_add_u32 v7, s32, v2')
        for i in range(4):
            a(f'ds_write_b128 v7, {R(SD+4*i,4)} offset:{i*1024}')
        a('s_waitcnt lgkmcnt(0)')
        a('s_barrier')
        WT(a, 7)
        a('s_lshl_b32 s32, s13, 10')
        a(f's_add_u32 s32, s32, {S_RED}')
        a('v_add_u32 v7, s32, v2')
        for i in range(4):
            a(f'ds_read_b128 {R(64+4*i,4)}, v7 offset:{i*4096}')
        a('s_lshr_b32 s26, s13, 1')
        a('s_lshl_b32 s27, s28, 1')
        a('s_add_u32 s26, s26, s27')
        a('s_lshl_b32 s26, s26, 4')
        a('s_add_u32 s26, s26, s16')
        a('s_lshl_b32 s26, s26, 1')
        a('s_add_u32 s26, s26, s17')
        a('s_lshl_b32 s26, s26, 9')
        a(f's_add_u32 s26, s26, {SXM}')
        a('s_waitcnt lgkmcnt(0)')
        for r in range(4):
            a(f'v_add_f32 {R(64+r)}, {R(64+r)}, {R(68+r)}')
            a(f'v_add_f32 {R(72+r)}, {R(72+r)}, {R(76+r)}')
        for r in range(4):
            a(f'v_add_f32 {R(100+r)}, {R(64+r)}, {R(72+r)}')
        a(f'buffer_store_dwordx4 v[100:103], v9, s[8:11], s26 offen {WST}')
    else:
        a('s_lshl_b32 s26, s28, 5')
        a('s_add_u32 s26, s26, s16')
        a('s_mul_i32 s26, s26, 28')
        a('s_add_u32 s27, s26, s20')
        a('s_add_u32 s26, s26, s19')
        a('s_lshl_b32 s26, s26, 8')
        a('s_lshl_b32 s27, s27, 8')
        a(f's_add_u32 s26, s26, {UIMG}')
        a(f's_add_u32 s27, s27, {UIMG}')
        for p in range(4):
            o = 100 + 4 * p
            for b in range(2):
                t = min(2 * p + b, 6)
                for q in range(2):
                    a(f'v_cvt_pk_bf16_f32 {R(o+2*b+q)}, {R(acc(0,t)+2*q)}, {R(acc(0,t)+2*q+1)}')
            a(f'v_permlane16_swap_b32 {R(o)}, {R(o+2)}')
            a(f'v_permlane16_swap_b32 {R(o+1)}, {R(o+3)}')
            if p < 3: a(f'buffer_store_dwordx4 {R(o,4)}, v9, s[8:11], s26 offen offset:{p*512} {WST}')
            else: a(f'buffer_store_dwordx4 {R(o,4)}, v10, s[8:11], s27 offen {WST}')
    WT(a, 8)
    wdump(a, 's28', 12)
    hooks.signal(a, ('mir', 's28'))
    a(f's_add_u32 s28, s28, {zstep}')
    a('s_cmp_lt_u32 s28, 32')
    a(f's_cbranch_scc1 {L}')
    hooks.signal(a, ('pend', 0))

def gen_H(a, hooks, item='s12'):
    lane_setup(a)
    a(f's_mul_i32 s14, {item}, 2341')
    a('s_lshr_b32 s14, s14, 16')
    a('s_mul_i32 s15, s14, 28')
    a(f's_sub_u32 s15, {item}, s15')
    a('s_and_b32 s17, s13, 1')
    a('s_lshl_b32 s16, s15, 1')
    a('s_add_u32 s16, s16, s17')
    def HW(m, b, ks): return 256 + 4 * ((2 * m + b) * 14 + ks)
    srd(a, 44, 64, 448 * 3584)
    srd(a, 48, 72, 448 * 3584)
    phase0.raw_lane(a, 'v6', 'v7', 3584)
    a(f's_mul_i32 s18, s13, {14*8*3584}')
    a('s_lshl_b32 s19, s15, 7')
    a('s_add_u32 s18, s18, s19')
    a('s_mul_i32 s25, s13, 14336')
    a('s_waitcnt lgkmcnt(0)')
    a('s_barrier')
    for m in range(2):
        for i in range(14):
            a(f's_add_u32 m0, s25, {m*57344 + i*1024}')
            a(f's_add_u32 s19, s18, {i*8*3584}')
            a(f'buffer_load_dwordx4 v6, {S(44+4*m,4)}, s19 offen lds')
    a('v_lshrrev_b32 v7, 2, v3')
    a('v_and_b32 v8, 3, v3')
    a('v_lshlrev_b32 v8, 4, v8')
    a('v_lshl_add_u32 v8, v7, 7, v8')
    a('v_lshl_add_u32 v8, v4, 10, v8')
    a('v_bfe_u32 v7, v3, 3, 1')
    a('v_xor_b32 v7, s17, v7')
    a('v_lshl_add_u32 v8, v7, 6, v8')
    a('s_lshr_b32 s20, s13, 1')
    a('s_lshl_b32 s20, s20, 3')
    a('s_lshl_b32 s21, s14, 4')
    a('s_add_u32 s20, s20, s21')
    a('s_mul_i32 s21, s20, 14336')
    a(f's_add_u32 s21, s21, {XIMG}')
    a('s_mul_i32 s22, s20, 57344')
    a('s_lshl_b32 s23, s16, 10')
    a('s_add_u32 s22, s22, s23')
    a(f's_add_u32 s22, s22, {HIMG}')
    a('s_lshl_b32 s23, s20, 6')
    a(f's_add_u32 s23, s23, {GVEC}')
    a('v_lshlrev_b32 v5, 2, v3')
    a(f's_mov_b32 s24, {f2u(-LOG2E)}')
    XB = [16, 76, 136]; GB = [72, 132, 192]
    def xl(i):
        b = XB[i % 3]
        for ks in range(14):
            if ks % 4 == 0: a(f's_add_u32 s19, s21, {i*14336 + ks*1024}')
            a(f'buffer_load_dwordx4 {R(b+4*ks,4)}, v2, s[8:11], s19 offen offset:{(ks%4)*1024} {WLD}')
        a(f'buffer_load_dword {R(GB[i%3])}, v5, s[8:11], s23 offen offset:{i*64} {WLD}')
    xl(0); xl(1)
    a('s_waitcnt vmcnt(30)')
    a('s_barrier')
    for m in range(2):
        if m:
            a('v_add_u32 v8, 57344, v8')
        for ks in range(14):
            for b in range(2):
                for hf in range(2):
                    a(f'ds_read_b64_tr_b16 {R(HW(m,b,ks)+2*hf,2)}, v8 offset:{ks*4096 + hf*512 + 8*b}')
    a('s_waitcnt lgkmcnt(0)')
    AC = 200; T = 216; O = 232
    for i in range(8):
        if i + 2 < 8: xl(i + 2)
        n = 15 * (min(i + 2, 7) - i) + min(i, 2)
        a(f's_waitcnt vmcnt({n})')
        b = XB[i % 3]
        for ks in range(14):
            for m in range(2):
                for bb in range(2):
                    d = AC + 4 * (2 * m + bb)
                    a(f'{MF} {R(d,4)}, {R(HW(m,bb,ks),4)}, {R(b+4*ks,4)}, {"0" if ks == 0 else R(d,4)}')
        g = GB[i % 3]
        a(f'v_sub_f32 {R(g)}, 1.0, {R(g)}')
        for r in range(8): a(f'v_mul_f32 {R(T+r)}, s24, {R(AC+r)}')
        for r in range(8): a(f'v_exp_f32 {R(T+r)}, {R(T+r)}')
        for r in range(8): a(f'v_mul_f32 {R(T+8+r)}, {R(AC+r)}, {R(AC+8+r)}')
        for r in range(8): a(f'v_add_f32 {R(T+r)}, 1.0, {R(T+r)}')
        for r in range(8): a(f'v_rcp_f32 {R(T+r)}, {R(T+r)}')
        for r in range(8): a(f'v_mul_f32 {R(T+8+r)}, {R(T+8+r)}, {R(g)}')
        for r in range(8): a(f'v_mul_f32 {R(T+r)}, {R(T+r)}, {R(T+8+r)}')
        o = O + 4 * (i % 2)
        for q in range(4): a(f'v_cvt_pk_bf16_f32 {R(o+q)}, {R(T+2*q)}, {R(T+2*q+1)}')
        a(f'buffer_store_dwordx4 {R(o,4)}, v2, s[8:11], s22 offen {WST}')
        a('s_add_u32 s22, s22, 57344')
    hooks.signal(a, ('h', 's14'))

def red_g(a, x, t, op):
    for sw in ('v_permlane16_swap_b32', 'v_permlane32_swap_b32'):
        a(f'v_mov_b32 {R(t)}, {R(x)}')
        a(f'{sw} {R(x)}, {R(t)}')
        a(f'{op} {R(x)}, {R(x)}, {R(t)}')

def gen_token(a, hooks, nitems=2, seg0='s14', segstep=32):
    lane_setup(a)
    def WD(t, ks): return 256 + 4 * (14 * t + ks)
    srd(a, 44, 80, 1792 * 896)
    phase0.raw_lane(a, 'v6', 'v7', 896)
    a(f's_mul_i32 s18, s13, {448*896}')
    a('s_lshl_b32 s20, s15, 7')
    a('s_add_u32 s18, s18, s20')
    a('s_mul_i32 s19, s13, 14336')
    a('s_lshl_b32 s21, s19, 1')
    phase0.tr_lane(a, 'v10', 'v9')
    a('v_add_u32 v10, s21, v10')
    a('v_xor_b32 v11, 64, v10')
    a('s_waitcnt lgkmcnt(0)')
    for rd in range(2):
        for i in range(28):
            a(f's_add_u32 m0, s21, {i*1024}')
            a(f's_add_u32 s20, s18, {(224*rd + 8*i)*896}')
            a('buffer_load_dwordx4 v6, s[44:47], s20 offen lds')
        a('s_waitcnt vmcnt(0)')
        for k in range(7):
            for t in range(4):
                for hf in range(2):
                    a(f'ds_read_b64_tr_b16 {R(WD(t,7*rd+k)+2*hf,2)}, v{10 + t//2} offset:{k*4096 + hf*512 + (t%2)*32}')
        a('s_waitcnt lgkmcnt(0)')
    a('s_barrier')
    a('v_lshlrev_b32 v5, 2, v4')
    for r in range(4):
        a(f'v_add_u32 v6, {r}, v5')
        a(f'v_cmp_le_u32 s[{48+2*r}:{49+2*r}], v6, v3')
    for hl in range(4):
        a(f'v_cmp_eq_u32 s[{60+2*hl}:{61+2*hl}], {hl}, v4')
    a('v_lshlrev_b32 v7, 10, v4')
    a('v_lshl_add_u32 v7, v3, 5, v7')
    a('v_mul_u32_u24 v15, 7168, v4')
    a('v_lshl_add_u32 v15, v3, 4, v15')
    a('v_lshlrev_b32 v8, 2, v3')
    a('v_lshrrev_b32 v9, 3, v0')
    a('v_and_b32 v10, 7, v0')
    a('v_mul_u32_u24 v11, 896, v9')
    a('v_lshl_add_u32 v11, v10, 4, v11')
    a('v_lshrrev_b32 v12, 4, v9')
    a('v_lshlrev_b32 v12, 12, v12')
    a('v_lshl_add_u32 v12, v10, 9, v12')
    a('v_and_b32 v9, 15, v9')
    a('v_lshl_add_u32 v12, v9, 4, v12')
    a('s_lshl_b32 s20, s13, 13')
    a('v_add_u32 v13, s20, v2')
    a(f'v_mov_b32 v14, {f2u(-1e30)}')
    a(f's_mov_b32 s28, {seg0}')
    a(f's_mov_b32 s29, {nitems}')
    HF = 16; VF = 128; UF = 192; XX = 208; AC = 256 + 224
    L = a.newlabel('TOK')
    a.label(L); a.reset_hist()
    hooks.wait(a, ('h', 's28'))
    hooks.wait(a, ('kv', 's28'))
    a(f's_mul_i32 s20, s28, {2*57344}')
    a('s_add_u32 s20, s20, s19')
    a(f's_add_u32 s20, s20, {HIMG}')
    for qt in range(2):
        for ks in range(14):
            if ks % 4 == 0: a(f's_add_u32 s21, s20, {qt*57344 + ks*1024}')
            a(f'buffer_load_dwordx4 {R(HF+4*(14*qt+ks),4)}, v2, s[8:11], s21 offen offset:{(ks%4)*1024} {WLD}')
    a(f's_mul_i32 s20, s28, {V_S}')
    a(f's_mul_i32 s21, s15, {4*V_J}')
    a('s_add_u32 s20, s20, s21')
    a('s_lshl_b32 s21, s13, 12')
    a('s_add_u32 s20, s20, s21')
    a(f's_add_u32 s20, s20, {VIMG}')
    for t in range(4):
        for hl in range(4):
            a(f'buffer_load_dwordx4 {R(VF+4*(4*t+hl),4)}, v2, s[8:11], s20 offen offset:{hl*1024} {WLD}')
        a(f's_add_u32 s20, s20, {V_J}')
    a('s_lshl_b32 s23, s28, 4')
    a('s_lshl_b32 s21, s13, 2')
    a('s_add_u32 s23, s23, s21')
    a('s_mul_i32 s20, s23, 3072')
    a(f's_add_u32 s20, s20, {SXX}')
    for i in range(12):
        if i and i % 4 == 0: a('s_add_u32 s20, s20, 4096')
        a(f'buffer_load_dwordx4 {R(XX+4*i,4)}, v2, s[8:11], s20 offen offset:{(i%4)*1024} {WLD}')
    a('s_lshl_b32 s20, s28, 7')
    a(f's_add_u32 s20, s20, {GVEC}')
    a(f'buffer_load_dword v5, v8, s[8:11], s20 offen {WLD}')
    a(f'buffer_load_dword v6, v8, s[8:11], s20 offen offset:64 {WLD}')
    a('s_waitcnt vmcnt(30)')
    for ks in range(14):
        for qt in range(2):
            for t in range(4):
                d = AC + 4 * (4 * qt + t)
                a(f'{MF} {R(d,4)}, {R(WD(t,ks),4)}, {R(HF+4*(14*qt+ks),4)}, {"0" if ks == 0 else R(d,4)}')
    XM = 16; PX = 48; PMF = 96; m = 104; l = 105; t0 = 106; t1 = 107; MX = 80; LX = 82; FF = 84
    a('s_waitcnt vmcnt(0)')
    def xsl(hl, qt): return [XX + 12 * hl + r for r in range(4)] if qt == 0 else [XX + 12 * hl + 4 + r for r in range(8)]
    def maxall(dst, al):
        a(f'v_max3_f32 {R(dst)}, {R(al[0])}, {R(al[1])}, {R(al[2])}')
        i = 3
        while i < len(al):
            if i + 1 < len(al):
                a(f'v_max3_f32 {R(dst)}, {R(dst)}, {R(al[i])}, {R(al[i+1])}'); i += 2
            else:
                a(f'v_max_f32 {R(dst)}, {R(dst)}, {R(al[i])}'); i += 1
    for hl in range(4):
        for qt in range(2):
            xs = xsl(hl, qt); diag = xs[-4:]
            for r in range(4):
                a(f'v_cndmask_b32 {R(diag[r])}, v14, {R(diag[r])}, s[{48+2*r}:{49+2*r}]')
            maxall(m, xs)
            red_g(a, m, t0, 'v_max_f32')
            for x in xs: a(f'v_sub_f32 {R(x)}, {R(x)}, {R(m)}')
            for x in xs: a(f'v_exp_f32 {R(x)}, {R(x)}')
            a(f'v_add_f32 {R(l)}, {R(xs[0])}, {R(xs[1])}')
            for x in xs[2:]: a(f'v_add_f32 {R(l)}, {R(l)}, {R(x)}')
            red_g(a, l, t0, 'v_add_f32')
            a(f'v_cndmask_b32 {R(MX+qt)}, {R(MX+qt)}, {R(m)}, s[{60+2*hl}:{61+2*hl}]')
            a(f'v_cndmask_b32 {R(LX+qt)}, {R(LX+qt)}, {R(l)}, s[{60+2*hl}:{61+2*hl}]')
    a('s_lshl_b32 s20, s23, 10')
    a(f's_add_u32 s20, s20, {SXM}')
    a('s_mul_i32 s21, s23, 7168')
    a('s_lshl_b32 s22, s15, 10')
    a('s_add_u32 s21, s21, s22')
    a(f's_add_u32 s21, s21, {UIMG}')
    hooks.wait(a, ('mir', 's28'))
    for i in range(4):
        a(f'buffer_load_dwordx4 {R(XM+4*i,4)}, v7, s[8:11], s20 offen offset:{(i//2)*512 + (i%2)*16} {WLD}')
    for t in range(4):
        a(f'buffer_load_dwordx4 {R(UF+4*t,4)}, v15, s[8:11], s21 offen offset:{t*256} {WLD}')
    for qt in range(2):
        a(f's_waitcnt vmcnt({6 - 2*qt})')
        ms = [XM + 8 * qt + r for r in range(8)]
        maxall(m, ms + [MX + qt])
        for x in ms + [MX + qt]: a(f'v_sub_f32 {R(x)}, {R(x)}, {R(m)}')
        for x in ms + [MX + qt]: a(f'v_exp_f32 {R(x)}, {R(x)}')
        a(f'v_add_f32 {R(l)}, {R(ms[0])}, {R(ms[1])}')
        a(f'v_add_f32 {R(t1)}, {R(ms[2])}, {R(ms[3])}')
        for i in (4, 6):
            a(f'v_add_f32 {R(l)}, {R(l)}, {R(ms[i])}')
            a(f'v_add_f32 {R(t1)}, {R(t1)}, {R(ms[i+1])}')
        a(f'v_fma_f32 {R(l)}, {R(LX+qt)}, {R(MX+qt)}, {R(l)}')
        a(f'v_add_f32 {R(l)}, {R(l)}, {R(t1)}')
        a(f'v_rcp_f32 {R(l)}, {R(l)}')
        a(f'v_mul_f32 {R(l)}, {R(l)}, {R(5+qt)}')
        a(f'v_mul_f32 {R(MX+qt)}, {R(MX+qt)}, {R(l)}')
        f = FF + 4 * qt
        a(f'v_mov_b32 {R(f)}, {R(MX+qt)}')
        a(f'v_mov_b32 {R(f+1)}, {R(MX+qt)}')
        for x in ms[:4]: a(f'v_mul_f32 {R(x)}, {R(x)}, {R(l)}')
        a(f'v_permlane16_swap_b32 {R(f)}, {R(f+1)}')
        a(f'v_mov_b32 {R(f+2)}, {R(f)}')
        a(f'v_mov_b32 {R(f+3)}, {R(f+1)}')
        for x in ms[4:]: a(f'v_mul_f32 {R(x)}, {R(x)}, {R(l)}')
        a(f'v_permlane32_swap_b32 {R(f)}, {R(f+2)}')
        a(f'v_permlane32_swap_b32 {R(f+1)}, {R(f+3)}')
        for q in range(4):
            a(f'v_cvt_pk_bf16_f32 {R(PMF+4*qt+q)}, {R(ms[2*q])}, {R(ms[2*q+1])}')
        for hl in range(4):
            xs = xsl(hl, qt)
            for x in xs: a(f'v_mul_f32 {R(x)}, {R(x)}, {R(f+hl)}')
            p = PX + 4 * (2 * hl + qt)
            for r in range(4):
                a(f'v_cvt_pk_bf16_f32 {R(p+r)}, {R(xs[r])}, {R(xs[4+r]) if qt else 0}')
            for t in range(4):
                d = AC + 4 * (4 * qt + t)
                a(f'{MF} {R(d,4)}, {R(VF+4*(4*t+hl),4)}, {R(p,4)}, {R(d,4)}')
    a('s_waitcnt vmcnt(0)')
    for qt in range(2):
        for t in range(4):
            d = AC + 4 * (4 * qt + t)
            a(f'{MF} {R(d,4)}, {R(UF+4*t,4)}, {R(PMF+4*qt,4)}, {R(d,4)}')
    for i in range(8):
        a(f'ds_write_b128 v13, {R(AC+4*i,4)} offset:{i*1024}')
    a('s_waitcnt lgkmcnt(0)')
    a('s_barrier')
    for w in range(4):
        for hf in range(2):
            a(f'ds_read_b128 {R(16+8*w+4*hf,4)}, v12 offset:{w*8192 + hf*256}')
    a(f's_mul_i32 s20, s28, {32*896}')
    a('s_lshl_b32 s21, s15, 7')
    a('s_add_u32 s20, s20, s21')
    a('s_waitcnt lgkmcnt(0)')
    a('s_barrier')
    for r in range(8):
        a(f'v_add_f32 {R(16+r)}, {R(16+r)}, {R(24+r)}')
        a(f'v_add_f32 {R(32+r)}, {R(32+r)}, {R(40+r)}')
    for r in range(8): a(f'v_add_f32 {R(16+r)}, {R(16+r)}, {R(32+r)}')
    for q in range(4): a(f'v_cvt_pk_bf16_f32 {R(108+q)}, {R(16+2*q)}, {R(16+2*q+1)}')
    a('buffer_store_dwordx4 v[108:111], v11, s[36:39], s20 offen')
    a(f's_add_u32 s28, s28, {segstep}')
    a('s_cmp_lt_u32 s28, 64')
    a(f's_cbranch_scc1 {L}')
```

```python
import sys, os
from asmlib import *
from layout import *
import prep, workers, team2
from prep import srd
from team2 import F_KV, F_MIR, F_H, F_W, F_X
import phase0
team2.MEGA = True; team2.SPARE_PF = 1
for k_, v_ in dict(A_SLEEP=6, CDEPTH=3, PDEPTH=2, PSTAG=2, C_SLEEP=3, C_PF=0, SXAT=22, SPEC=[30,35,40,44], KLD0=2, KLDE=5, A_PF=2).items(): setattr(team2, k_, v_)
OPT = dict(FORCE_SLOW=0, TIMING=0, STATIC=0, TOUCH=1)
for kv in sys.argv[1:]:
    if '=' in kv:
        k_, v_ = kv.split('=')
        if k_ in OPT: OPT[k_] = eval(v_)
        else: setattr(team2, k_, eval(v_))
workers.WINSTR = bool(OPT['TIMING'])
if OPT['TIMING'] == 2: phase0.WT = workers.WT
phase0.TOUCH = OPT['TOUCH']
workers.WST = 'sc1'; workers.WLD = 'sc1'
REF = open('gated_mix__memory_aug_recurrent_mem_tr__swiglu_ffn__prompt.s.ref').read()
head_comments = ''.join(l + '\n' for l in REF.split('\n') if l.startswith(';') and '@launch' not in l and 'Override launch' not in l and 'grid=ceil' not in l)
def kbegin(name): return f".globl {name}\n.p2align 8\n.type {name},@function\n{name}:\n"
def kdesc(name, vg=512, acc=256, sg=96):
    return f""".amdhsa_kernel {name}
  .amdhsa_next_free_vgpr {vg}
  .amdhsa_next_free_sgpr {sg}
  .amdhsa_accum_offset {acc}
  .amdhsa_group_segment_fixed_size 0
  .amdhsa_kernarg_size 120
  .amdhsa_user_sgpr_count 2
  .amdhsa_user_sgpr_kernarg_segment_ptr 1
  .amdhsa_system_sgpr_workgroup_id_x 1
.end_amdhsa_kernel
"""
EXIT = 'MEGA_EXIT'
SPINW = 4000000
def tmark(a, k):
    if not OPT['TIMING']: return
    a('s_memrealtime s[80:81]')
    a('s_waitcnt lgkmcnt(0)')
    a('s_lshl_b32 s82, s83, 6')
    a(f's_add_u32 s82, s82, {DBG + 4*k}')
    a('v_mov_b32 v15, s80')
    a('buffer_store_dword v15, off, s[8:11], s82')
class H(workers.Hooks):
    def guard(self, a):
        a('s_add_u32 s35, s35, 1')
        a(f's_cmp_gt_u32 s35, {SPINW}')
        a(f's_cbranch_scc1 {EXIT}')
    def flag(self, a, soff):
        a('v_mov_b32 v15, 1')
        a('s_mov_b64 exec, 1')
        a(f'buffer_store_dword v15, off, s[8:11], {soff} sc1')
        a('s_mov_b64 exec, -1')
    def poll(self, a, t, wide, addr, sleep):
        L = a.newlabel('WF')
        a('s_mov_b32 s35, 0')
        for x in addr: a(x)
        Lf = a.newlabel('WF0')
        a(f's_branch {Lf}')
        a.label(L)
        a(f's_sleep {sleep}')
        a.label(Lf)
        if wide: a(f'buffer_load_dwordx2 {R(t+2,2)}, {R(t)}, s[8:11], s30 offen sc1')
        else: a(f'buffer_load_dword {R(t+2)}, {R(t)}, s[8:11], s30 offen sc1')
        self.guard(a)
        a('s_waitcnt vmcnt(0)')
        if wide: a(f'v_min_u32 {R(t+2)}, {R(t+2)}, {R(t+3)}')
        a(f'v_cmp_eq_u32 vcc, 0, {R(t+2)}')
        a(f's_cbranch_vccnz {L}')
    def wait(self, a, what):
        k = what[0]
        if k == 'h':
            self.poll(a, 16, False, [f's_lshr_b32 s30, {what[1]}, 2', 's_lshl_b32 s30, s30, 8', f's_add_u32 s30, s30, {F_H}',
                                     'v_min_u32 v16, 55, v1', 'v_lshlrev_b32 v16, 2, v16'], 16)
        elif k == 'kv':
            self.poll(a, 16, True, [f's_lshl_b32 s30, {what[1]}, 9', f's_add_u32 s30, s30, {F_KV}', 'v_lshlrev_b32 v16, 3, v1'], 16)
        elif k == 'mir':
            self.poll(a, 112, True, [f's_lshr_b32 s30, {what[1]}, 1', 's_lshl_b32 s30, s30, 9', f's_add_u32 s30, s30, {F_MIR}',
                                     'v_lshlrev_b32 v112, 3, v1'], 4)
        elif k == 'mem0':
            L = a.newlabel('WM'); Lf = a.newlabel('WM0')
            r = what[1]
            a(f's_branch {Lf}')
            a.label(L)
            a('s_sleep 2')
            a.label(Lf)
            a(f'buffer_load_dwordx4 {R(r,4)}, v14, s[8:11], s26 offen offset:1024 sc1')
            self.guard(a)
            a('s_waitcnt vmcnt(0)')
            a(f'v_cmp_eq_u32 vcc, -1, {R(r+3)}')
            a(f's_cbranch_vccnz {L}')
        elif k == 'mem1':
            self.guard(a)
            first = True
            for ks in range(14):
                a(f's_waitcnt vmcnt({14-ks})')
                for x in team2.acc_max(15, range(workers.MFR[ks], workers.MFR[ks] + 4), first): a(x)
                first = False
            a('v_cmp_eq_u32 vcc, -1, v15')
            a(f's_cbranch_vccnz {what[1]}')
    def signal(self, a, what):
        k = what[0]
        if k == 'kv':
            a('s_lshl_b32 s34, s28, 9')
            a('s_lshl_b32 s33, s14, 4')
            a('s_add_u32 s34, s34, s33')
            a('s_lshl_b32 s33, s13, 2')
            a('s_add_u32 s34, s34, s33')
            a(f's_add_u32 s34, s34, {F_KV}')
        elif k == 'kvmid':
            L = a.newlabel('NF')
            a('s_cmp_eq_u32 s34, 0')
            a(f's_cbranch_scc1 {L}')
            a('s_waitcnt vmcnt(0)')
            self.flag(a, 's34')
            a.label(L)
        elif k == 'mir':
            a('s_lshl_b32 s34, s28, 9')
            a('s_lshl_b32 s33, s14, 4')
            a('s_add_u32 s34, s34, s33')
            a('s_lshl_b32 s33, s13, 2')
            a('s_add_u32 s34, s34, s33')
            a(f's_add_u32 s34, s34, {F_MIR}')
        elif k == 'pend':
            L = a.newlabel('NF')
            a('s_cmp_eq_u32 s34, 0')
            a(f's_cbranch_scc1 {L}')
            a(f's_waitcnt vmcnt({what[1]})')
            self.flag(a, 's34')
            a('s_mov_b32 s34, 0')
            if what[1]:
                L2 = a.newlabel('NF2')
                a(f's_branch {L2}')
                a.label(L)
                a('buffer_load_dword v11, off, s[8:11], s26 sc1')
                a.label(L2)
            else:
                a.label(L)
        elif k == 'h':
            a('s_lshl_b32 s34, s14, 1')
            a('s_lshr_b32 s33, s13, 1')
            a('s_add_u32 s34, s34, s33')
            a('s_lshl_b32 s34, s34, 8')
            a('s_lshl_b32 s33, s16, 2')
            a('s_add_u32 s34, s34, s33')
            a(f's_add_u32 s34, s34, {F_H}')
            a('s_waitcnt vmcnt(0)')
            self.flag(a, 's34')
hooks = H()
a = Asm()
NAME = 'gated_mix__memory_aug_recurrent_mem_tr__swiglu_ffn__prompt_kernel'
def wait_init(a):
    L = a.newlabel('WI')
    a('s_mov_b32 s35, 0')
    a('v_mov_b32 v16, 0')
    a.label(L)
    a('global_load_dword v17, v16, s[4:5] sc1')
    hooks.guard(a)
    a('s_waitcnt vmcnt(0)')
    a('v_cmp_eq_u32 vcc, 0, v17')
    a(f's_cbranch_vccnz {L}')
def wait_x(a):
    hooks.poll(a, 16, True, [f's_mov_b32 s30, {F_X}', 'v_lshlrev_b32 v16, 3, v1'], 2)
def wait_unit(a, us):
    hooks.poll(a, 16, False, [f's_lshl_b32 s30, {us}, 7', f's_add_u32 s30, s30, {F_W}', 'v_min_u32 v16, 27, v1', 'v_lshlrev_b32 v16, 2, v16'], 2)
a.raw(kbegin(NAME)); a.reset_hist()
a('s_cmp_ge_u32 s2, 256')
a(f's_cbranch_scc1 {EXIT}')
srd(a, 8, 112, WS_BYTES)
a('s_load_dwordx2 s[4:5], s[0:1], 104')
a('v_readfirstlane_b32 s13, v0')
a('s_lshr_b32 s13, s13, 6')
if OPT['FORCE_SLOW']:
    a('s_mov_b32 s12, s2')
else:
    a('s_and_b32 s12, s2, 7')
    a('s_lshl_b32 s12, s12, 5')
    a('s_lshr_b32 s3, s2, 3')
    a('s_add_u32 s12, s12, s3')
a('s_mov_b32 s83, s12')
a('s_waitcnt lgkmcnt(0)')
tmark(a, 0)
a('s_cmp_ge_u32 s12, 32')
a('s_cbranch_scc1 WORKER')
a('s_cmp_lg_u32 s12, 30')
a('s_cbranch_scc1 NOINIT')
a('v_lshlrev_b32 v2, 4, v0')
for r in range(4): a(f'v_mov_b32 v{8+r}, 0')
for k in range(16):
    a(f's_mov_b32 s18, {FLAGS + k*4096}')
    a('buffer_store_dwordx4 v[8:11], v2, s[8:11], s18 offen sc1')
a('s_waitcnt vmcnt(0)')
a('s_barrier')
a('v_mov_b32 v12, 1')
a('s_mov_b64 exec, 1')
a('global_store_dword v8, v12, s[4:5] sc1')
a('s_mov_b64 exec, -1')
a.label('NOINIT')
phase0.gen_misc(a)
wait_init(a)
a('s_lshl_b32 s34, s20, 2')
a(f's_add_u32 s34, s34, {F_X}')
hooks.flag(a, 's34')
a('s_getreg_b32 s3, hwreg(HW_REG_XCC_ID)')
a('s_and_b32 s3, s3, 15')
a('s_mul_i32 s41, s3, s3')
a('s_lshl_b32 s41, s41, 16')
a('s_lshl_b32 s3, s3, 6')
a('s_add_u32 s41, s41, s3')
a('s_add_u32 s41, s41, 1')
a('s_cmp_lt_u32 s12, 16')
a('s_cbranch_scc1 ROLE_A')
wait_x(a)
a('s_mov_b32 s26, 0')
a('s_cmp_ge_u32 s12, 30')
a('s_cbranch_scc1 ROLE_P')
hooks.poll(a, 16, False, ['s_sub_u32 s30, s12, 16', 's_lshr_b32 s30, s30, 1', 's_lshl_b32 s30, s30, 4', f's_add_u32 s30, s30, {F_W + 16*128}',
                          'v_lshrrev_b32 v16, 2, v1', 'v_lshlrev_b32 v16, 7, v16', 'v_and_b32 v17, 3, v1', 'v_lshl_add_u32 v16, v17, 2, v16'], 2)
srd(a, 32, 8, 7168)
a('s_waitcnt lgkmcnt(0)')
tmark(a, 3)
a('s_branch ROLE_C')
a.label('ROLE_A'); a.reset_hist()
wait_unit(a, 's12')
a('s_mov_b32 s26, 0')
tmark(a, 3)
stamp = (lambda a, k: tmark(a, 1 + k)) if OPT['TIMING'] else None
team2.gen_A(a, EXIT, stamp)
a.label('ROLE_C'); a.reset_hist()
a('s_sub_u32 s12, s12, 16')
team2.gen_C(a, EXIT, stamp)
a.label('ROLE_P'); a.reset_hist()
a('s_sub_u32 s12, s12, 30')
team2.gen_spare(a, EXIT)
a.label('WORKER'); a.reset_hist()
a('s_sub_u32 s12, s12, 32')
workers.kv_setup(a)
a('s_cmp_ge_u32 s14, 16')
a('s_cbranch_scc1 W_P0V')
phase0.gen_phase0(a, True)
a('s_branch W_P0D')
a.label('W_P0V'); a.reset_hist()
phase0.gen_phase0(a, False)
a.label('W_P0D'); a.reset_hist()
a('s_nop 1')
wait_init(a)
if OPT['TIMING'] == 2:
    workers.WT(a, 8); workers.wdump(a, 's13', 's13'); workers.WINSTR = False
a('s_lshl_b32 s34, s14, 7')
a('s_lshl_b32 s33, s15, 4')
a('s_add_u32 s34, s34, s33')
a('s_lshl_b32 s33, s13, 2')
a('s_add_u32 s34, s34, s33')
a(f's_add_u32 s34, s34, {F_W}')
hooks.flag(a, 's34')
tmark(a, 4)
wait_x(a)
wait_unit(a, 's14')
tmark(a, 5)
workers.kv_weights(a)
a('s_barrier')
a('s_cmp_ge_u32 s14, 16')
a('s_cbranch_scc1 W_V')
workers.gen_kv(a, hooks, True)
tmark(a, 1)
a('s_cmp_lg_u32 s15, 6')
a('s_cbranch_scc1 W_H')
workers.gen_mirror(a, hooks, True, 0, 1, MEMX)
tmark(a, 2)
a(f's_branch {EXIT}')
a.label('W_V'); a.reset_hist()
workers.gen_kv(a, hooks, False)
tmark(a, 1)
a('s_cmp_lg_u32 s15, 6')
a('s_cbranch_scc1 W_H')
workers.gen_mirror(a, hooks, False, 0, 1, MEMX)
tmark(a, 2)
a(f's_branch {EXIT}')
a.label('W_H'); a.reset_hist(); a.flush()
a('s_mul_i32 s12, s14, 6')
a('s_add_u32 s12, s12, s15')
a('s_mov_b32 s58, s12')
a.label('W_HL'); a.reset_hist()
workers.gen_H(a, hooks, 's58')
a('s_add_u32 s58, s58, 32')
a('s_cmp_lt_u32 s58, 192')
a('s_cbranch_scc1 W_T')
a('s_cmp_lt_u32 s58, 224')
a('s_cbranch_scc1 W_HL')
a.label('W_T'); a.reset_hist()
tmark(a, 2)
a('s_cmp_ge_u32 s12, 189')
a(f's_cbranch_scc1 {EXIT}')
srd(a, 36, 96, 2048 * 896)
a('s_mul_i32 s14, s12, 9363')
a('s_lshr_b32 s14, s14, 16')
a('s_mul_i32 s15, s14, 7')
a('s_sub_u32 s15, s12, s15')
a('s_waitcnt lgkmcnt(0)')
a('s_barrier')
workers.gen_token(a, hooks, 0, 's14', 27)
tmark(a, 3)
a.label(EXIT); a('s_endpgm')

out = head_comments + f'; @launch grid=(256,1,1) block=(256,1,1) lds={phase0.P0_LDS}\n'
out += '.amdgcn_target "amdgcn-amd-amdhsa--gfx950"\n.text\n' + a.text() + '.section .rodata,"a"\n.p2align 6\n' + kdesc(NAME)
open(os.environ.get('OUT', 'mega.s'), 'w').write(out)
print('lines', len(a.lines), 'nops', a.nops_added, 'bytes', len(out))
```

```python
import sys, os
from asmlib import *
from layout import *
import prep, workers, team2
from prep import srd
from team2 import F_KV, F_MIR, F_H, F_W, F_X
import phase0
team2.MEGA = True; team2.SPARE_PF = 1
for k_, v_ in dict(A_SLEEP=6, CDEPTH=3, PDEPTH=2, PSTAG=2, C_SLEEP=3, C_PF=0, SXAT=22, SPEC=[30,35,40,44], KLD0=2, KLDE=5, A_PF=2).items(): setattr(team2, k_, v_)
OPT = dict(FORCE_SLOW=0, TIMING=0, STATIC=0, TOUCH=1)
for kv in sys.argv[1:]:
    if '=' in kv:
        k_, v_ = kv.split('=')
        if k_ in OPT: OPT[k_] = eval(v_)
        else: setattr(team2, k_, eval(v_))
workers.WINSTR = OPT['TIMING'] in (1, 2)
if OPT['TIMING'] == 2: phase0.WT = workers.WT
phase0.TOUCH = OPT['TOUCH']
workers.WST = 'sc1'; workers.WLD = 'sc1'
REF = open('gated_mix__memory_aug_recurrent_mem_tr__swiglu_ffn__prompt.s.ref').read()
head_comments = ''.join(l + '\n' for l in REF.split('\n') if l.startswith(';') and '@launch' not in l and 'Override launch' not in l and 'grid=ceil' not in l)
def kbegin(name): return f".globl {name}\n.p2align 8\n.type {name},@function\n{name}:\n"
def kdesc(name, vg=512, acc=256, sg=96):
    return f""".amdhsa_kernel {name}
  .amdhsa_next_free_vgpr {vg}
  .amdhsa_next_free_sgpr {sg}
  .amdhsa_accum_offset {acc}
  .amdhsa_group_segment_fixed_size 0
  .amdhsa_kernarg_size 120
  .amdhsa_user_sgpr_count 2
  .amdhsa_user_sgpr_kernarg_segment_ptr 1
  .amdhsa_system_sgpr_workgroup_id_x 1
.end_amdhsa_kernel
"""
EXIT = 'MEGA_EXIT'
SPINW = 4000000
def tmark(a, k):
    if not OPT['TIMING']: return
    if OPT['TIMING'] == 3:
        L = a.newlabel('TM')
        a('s_cmp_eq_u32 s83, 0')
        a(f's_cselect_b32 s82, {4 + 4*k}, 0')
        a('s_cmp_eq_u32 s83, 106')
        a(f's_cselect_b32 s82, {32 + 4*k}, s82')
        a('s_cmp_eq_u32 s82, 0')
        a(f's_cbranch_scc1 {L}')
        a('s_memrealtime s[80:81]')
        a('s_waitcnt lgkmcnt(0)')
        a('s_and_b32 s80, s80, 0xfffff')
        a('v_mov_b32 v15, s80')
        a('v_mov_b32 v14, s82')
        a('global_store_dword v14, v15, s[4:5]')
        a.label(L)
        return
    a('s_memrealtime s[80:81]')
    a('s_waitcnt lgkmcnt(0)')
    a('s_lshl_b32 s82, s83, 6')
    a(f's_add_u32 s82, s82, {DBG + 4*k}')
    a('v_mov_b32 v15, s80')
    a('buffer_store_dword v15, off, s[8:11], s82')
class H(workers.Hooks):
    def guard(self, a):
        a('s_add_u32 s35, s35, 1')
        a(f's_cmp_gt_u32 s35, {SPINW}')
        a(f's_cbranch_scc1 {EXIT}')
    def flag(self, a, soff):
        a('v_mov_b32 v15, 1')
        a('s_mov_b64 exec, 1')
        a(f'buffer_store_dword v15, off, s[8:11], {soff} sc1')
        a('s_mov_b64 exec, -1')
    def poll(self, a, t, wide, addr, sleep):
        L = a.newlabel('WF')
        a('s_mov_b32 s35, 0')
        for x in addr: a(x)
        Lf = a.newlabel('WF0')
        a(f's_branch {Lf}')
        a.label(L)
        a(f's_sleep {sleep}')
        a.label(Lf)
        if wide: a(f'buffer_load_dwordx2 {R(t+2,2)}, {R(t)}, s[8:11], s30 offen sc1')
        else: a(f'buffer_load_dword {R(t+2)}, {R(t)}, s[8:11], s30 offen sc1')
        self.guard(a)
        a('s_waitcnt vmcnt(0)')
        if wide: a(f'v_min_u32 {R(t+2)}, {R(t+2)}, {R(t+3)}')
        a(f'v_cmp_eq_u32 vcc, 0, {R(t+2)}')
        a(f's_cbranch_vccnz {L}')
    def wait(self, a, what):
        k = what[0]
        if k == 'h':
            self.poll(a, 16, False, [f's_lshr_b32 s30, {what[1]}, 2', 's_lshl_b32 s30, s30, 8', f's_add_u32 s30, s30, {F_H}',
                                     'v_min_u32 v16, 55, v1', 'v_lshlrev_b32 v16, 2, v16'], 16)
        elif k == 'kv':
            self.poll(a, 16, True, [f's_lshl_b32 s30, {what[1]}, 9', f's_add_u32 s30, s30, {F_KV}', 'v_lshlrev_b32 v16, 3, v1'], 16)
        elif k == 'mir':
            self.poll(a, 112, True, [f's_lshr_b32 s30, {what[1]}, 1', 's_lshl_b32 s30, s30, 9', f's_add_u32 s30, s30, {F_MIR}',
                                     'v_lshlrev_b32 v112, 3, v1'], 4)
        elif k == 'mem0':
            L = a.newlabel('WM'); Lf = a.newlabel('WM0')
            r = what[1]
            a(f's_branch {Lf}')
            a.label(L)
            a('s_sleep 2')
            a.label(Lf)
            a(f'buffer_load_dwordx4 {R(r,4)}, v14, s[8:11], s26 offen offset:1024 sc1')
            self.guard(a)
            a('s_waitcnt vmcnt(0)')
            a(f'v_cmp_eq_u32 vcc, -1, {R(r+3)}')
            a(f's_cbranch_vccnz {L}')
        elif k == 'mem1':
            self.guard(a)
            first = True
            for ks in range(14):
                a(f's_waitcnt vmcnt({14-ks})')
                for x in team2.acc_max(15, range(workers.MFR[ks], workers.MFR[ks] + 4), first): a(x)
                first = False
            a('v_cmp_eq_u32 vcc, -1, v15')
            a(f's_cbranch_vccnz {what[1]}')
    def signal(self, a, what):
        k = what[0]
        if k == 'kv':
            a('s_lshl_b32 s34, s28, 9')
            a('s_lshl_b32 s33, s14, 4')
            a('s_add_u32 s34, s34, s33')
            a('s_lshl_b32 s33, s13, 2')
            a('s_add_u32 s34, s34, s33')
            a(f's_add_u32 s34, s34, {F_KV}')
        elif k == 'kvmid':
            L = a.newlabel('NF')
            a('s_cmp_eq_u32 s34, 0')
            a(f's_cbranch_scc1 {L}')
            a('s_waitcnt vmcnt(0)')
            self.flag(a, 's34')
            a.label(L)
        elif k == 'mir':
            a('s_lshl_b32 s34, s28, 9')
            a('s_lshl_b32 s33, s14, 4')
            a('s_add_u32 s34, s34, s33')
            a('s_lshl_b32 s33, s13, 2')
            a('s_add_u32 s34, s34, s33')
            a(f's_add_u32 s34, s34, {F_MIR}')
        elif k == 'pend':
            L = a.newlabel('NF')
            a('s_cmp_eq_u32 s34, 0')
            a(f's_cbranch_scc1 {L}')
            a(f's_waitcnt vmcnt({what[1]})')
            self.flag(a, 's34')
            a('s_mov_b32 s34, 0')
            if what[1]:
                L2 = a.newlabel('NF2')
                a(f's_branch {L2}')
                a.label(L)
                a('buffer_load_dword v11, off, s[8:11], s26 sc1')
                a.label(L2)
            else:
                a.label(L)
        elif k == 'h':
            a('s_lshl_b32 s34, s14, 1')
            a('s_lshr_b32 s33, s13, 1')
            a('s_add_u32 s34, s34, s33')
            a('s_lshl_b32 s34, s34, 8')
            a('s_lshl_b32 s33, s16, 2')
            a('s_add_u32 s34, s34, s33')
            a(f's_add_u32 s34, s34, {F_H}')
            a('s_waitcnt vmcnt(0)')
            self.flag(a, 's34')
hooks = H()
a = Asm()
NAME = 'gated_mix__memory_aug_recurrent_mem_tr__swiglu_ffn__prompt_kernel'
def wait_init(a):
    L = a.newlabel('WI')
    a('s_mov_b32 s35, 0')
    a('v_mov_b32 v16, 0')
    a.label(L)
    a('global_load_dword v17, v16, s[4:5] sc1')
    hooks.guard(a)
    a('s_waitcnt vmcnt(0)')
    a('v_cmp_eq_u32 vcc, 0, v17')
    a(f's_cbranch_vccnz {L}')
def wait_x(a):
    hooks.poll(a, 16, True, [f's_mov_b32 s30, {F_X}', 'v_lshlrev_b32 v16, 3, v1'], 2)
def wait_unit(a, us):
    hooks.poll(a, 16, False, [f's_lshl_b32 s30, {us}, 7', f's_add_u32 s30, s30, {F_W}', 'v_min_u32 v16, 27, v1', 'v_lshlrev_b32 v16, 2, v16'], 2)
a.raw(kbegin(NAME)); a.reset_hist()
a('s_cmp_ge_u32 s2, 256')
a(f's_cbranch_scc1 {EXIT}')
srd(a, 8, 112, WS_BYTES)
a('s_load_dwordx2 s[4:5], s[0:1], 104')
a('v_readfirstlane_b32 s13, v0')
a('s_lshr_b32 s13, s13, 6')
if OPT['FORCE_SLOW']:
    a('s_mov_b32 s12, s2')
else:
    a('s_and_b32 s12, s2, 7')
    a('s_lshl_b32 s12, s12, 5')
    a('s_lshr_b32 s3, s2, 3')
    a('s_add_u32 s12, s12, s3')
a('s_mov_b32 s83, s12')
a('s_waitcnt lgkmcnt(0)')
tmark(a, 0)
a('s_cmp_ge_u32 s12, 32')
a('s_cbranch_scc1 WORKER')
a('s_cmp_lg_u32 s12, 30')
a('s_cbranch_scc1 NOINIT')
a('v_lshlrev_b32 v2, 4, v0')
for r in range(4): a(f'v_mov_b32 v{8+r}, 0')
for k in range(16):
    a(f's_mov_b32 s18, {FLAGS + k*4096}')
    a('buffer_store_dwordx4 v[8:11], v2, s[8:11], s18 offen sc1')
a('s_waitcnt vmcnt(0)')
a('s_barrier')
a('v_mov_b32 v12, 1')
a('s_mov_b64 exec, 1')
a('global_store_dword v8, v12, s[4:5] sc1')
a('s_mov_b64 exec, -1')
a.label('NOINIT')
phase0.gen_misc(a)
wait_init(a)
a('s_lshl_b32 s34, s20, 2')
a(f's_add_u32 s34, s34, {F_X}')
hooks.flag(a, 's34')
a('s_getreg_b32 s3, hwreg(HW_REG_XCC_ID)')
a('s_and_b32 s3, s3, 15')
a('s_mul_i32 s41, s3, s3')
a('s_lshl_b32 s41, s41, 16')
a('s_lshl_b32 s3, s3, 6')
a('s_add_u32 s41, s41, s3')
a('s_add_u32 s41, s41, 1')
a('s_cmp_lt_u32 s12, 16')
a('s_cbranch_scc1 ROLE_A')
wait_x(a)
a('s_mov_b32 s26, 0')
a('s_cmp_ge_u32 s12, 30')
a('s_cbranch_scc1 ROLE_P')
hooks.poll(a, 16, False, ['s_sub_u32 s30, s12, 16', 's_lshr_b32 s30, s30, 1', 's_lshl_b32 s30, s30, 4', f's_add_u32 s30, s30, {F_W + 16*128}',
                          'v_lshrrev_b32 v16, 2, v1', 'v_lshlrev_b32 v16, 7, v16', 'v_and_b32 v17, 3, v1', 'v_lshl_add_u32 v16, v17, 2, v16'], 2)
srd(a, 32, 8, 7168)
a('s_waitcnt lgkmcnt(0)')
tmark(a, 3)
a('s_branch ROLE_C')
a.label('ROLE_A'); a.reset_hist()
wait_unit(a, 's12')
a('s_mov_b32 s26, 0')
tmark(a, 3)
stamp = (lambda a, k: tmark(a, 1 + k)) if OPT['TIMING'] else None
team2.gen_A(a, EXIT, stamp)
a.label('ROLE_C'); a.reset_hist()
a('s_sub_u32 s12, s12, 16')
team2.gen_C(a, EXIT, stamp)
a.label('ROLE_P'); a.reset_hist()
a('s_sub_u32 s12, s12, 30')
team2.gen_spare(a, EXIT)
a.label('WORKER'); a.reset_hist()
a('s_sub_u32 s12, s12, 32')
workers.kv_setup(a)
a('s_cmp_ge_u32 s14, 16')
a('s_cbranch_scc1 W_P0V')
phase0.gen_phase0(a, True)
a('s_branch W_P0D')
a.label('W_P0V'); a.reset_hist()
phase0.gen_phase0(a, False)
a.label('W_P0D'); a.reset_hist()
a('s_nop 1')
wait_init(a)
if OPT['TIMING'] == 2:
    workers.WT(a, 8); workers.wdump(a, 's13', 's13'); workers.WINSTR = False
a('s_lshl_b32 s34, s14, 7')
a('s_lshl_b32 s33, s15, 4')
a('s_add_u32 s34, s34, s33')
a('s_lshl_b32 s33, s13, 2')
a('s_add_u32 s34, s34, s33')
a(f's_add_u32 s34, s34, {F_W}')
hooks.flag(a, 's34')
tmark(a, 4)
wait_x(a)
wait_unit(a, 's14')
tmark(a, 5)
workers.kv_weights(a)
a('s_barrier')
a('s_cmp_ge_u32 s14, 16')
a('s_cbranch_scc1 W_V')
workers.gen_kv(a, hooks, True)
tmark(a, 1)
a('s_cmp_lg_u32 s15, 6')
a('s_cbranch_scc1 W_H')
workers.gen_mirror(a, hooks, True, 0, 1, MEMX)
tmark(a, 2)
a(f's_branch {EXIT}')
a.label('W_V'); a.reset_hist()
workers.gen_kv(a, hooks, False)
tmark(a, 1)
a('s_cmp_lg_u32 s15, 6')
a('s_cbranch_scc1 W_H')
workers.gen_mirror(a, hooks, False, 0, 1, MEMX)
tmark(a, 2)
a(f's_branch {EXIT}')
a.label('W_H'); a.reset_hist(); a.flush()
a('s_mul_i32 s12, s14, 6')
a('s_add_u32 s12, s12, s15')
a('s_mov_b32 s58, s12')
a.label('W_HL'); a.reset_hist()
workers.gen_H(a, hooks, 's58')
a('s_add_u32 s58, s58, 32')
a('s_cmp_lt_u32 s58, 192')
a('s_cbranch_scc1 W_T')
a('s_cmp_lt_u32 s58, 224')
a('s_cbranch_scc1 W_HL')
a.label('W_T'); a.reset_hist()
tmark(a, 2)
a('s_cmp_ge_u32 s12, 189')
a(f's_cbranch_scc1 {EXIT}')
srd(a, 36, 96, 2048 * 896)
a('s_mul_i32 s14, s12, 9363')
a('s_lshr_b32 s14, s14, 16')
a('s_mul_i32 s15, s14, 7')
a('s_sub_u32 s15, s12, s15')
a('s_waitcnt lgkmcnt(0)')
a('s_barrier')
workers.gen_token(a, hooks, 0, 's14', 27)
tmark(a, 3)
a.label(EXIT); a('s_endpgm')

out = head_comments + f'; @launch grid=(256,1,1) block=(256,1,1) lds={phase0.P0_LDS}\n'
out += '.amdgcn_target "amdgcn-amd-amdhsa--gfx950"\n.text\n' + a.text() + '.section .rodata,"a"\n.p2align 6\n' + kdesc(NAME)
open(os.environ.get('OUT', 'mega.s'), 'w').write(out)
print('lines', len(a.lines), 'nops', a.nops_added, 'bytes', len(out))
```

```python
from asmlib import *
from layout import *
from prep import f2u, LOG2E, srd
MF = 'v_mfma_f32_16x16x32_bf16'
WSZ = 448 * 4096 * 2
P0_LDS = 163840
B_OFF = 131072
TOUCH = 1
ROT = 1
WT = lambda a, k: None
def gen_phase0(a, isK):
    WT(a, 0)
    srd(a, 44, 24 if isK else 32, WSZ)
    srd(a, 48, 16 if isK else 40, WSZ)
    a('s_lshl_b32 s23, s13, 2')
    a('s_min_u32 s23, s23, 10')
    a('v_lshrrev_b32 v5, 5, v1')
    a('v_and_b32 v6, 31, v1')
    a('v_lshlrev_b32 v6, 4, v6')
    a('v_lshlrev_b32 v7, 6, v5')
    a('v_xor_b32 v6, v6, v7')
    a('v_lshl_add_u32 v6, v5, 13, v6')
    a('v_xor_b32 v7, 128, v6')
    if not isK: raw_lane(a, 'v8', 'v9', 896)
    a('s_lshl_b32 s17, s16, 9')
    a('s_lshl_b32 s18, s23, 18')
    a('s_add_u32 s18, s18, s17')
    if isK:
        a('s_lshl_b32 s19, s15, 19')
        a('s_lshl_b32 s20, s13, 17')
        a('s_add_u32 s19, s19, s20')
        a('s_add_u32 s19, s19, s17')
    else:
        a(f's_mul_i32 s19, s16, {256*896}')
        a(f's_mul_i32 s20, s13, {64*896}')
        a('s_add_u32 s19, s19, s20')
        a('s_lshl_b32 s20, s15, 7')
        a('s_add_u32 s19, s19, s20')
    a('s_lshl_b32 s21, s13, 15')
    a('s_lshl_b32 s22, s13, 13')
    a(f's_add_u32 s22, s22, {B_OFF}')
    a('v_lshrrev_b32 v9, 2, v1')
    a('v_lshlrev_b32 v9, 13, v9')
    a('v_and_b32 v10, 3, v1')
    a('v_lshl_add_u32 v9, v10, 7, v9')
    a('s_lshl_b32 s24, s15, 19')
    a('s_lshl_b32 s25, s13, 17')
    a('s_add_u32 s24, s24, s25')
    a('s_add_u32 s24, s24, s17')
    if TOUCH == 3:
        a('s_lshr_b32 s30, s15, 1')
        a('s_lshl_b32 s30, s30, 2')
        a('s_min_u32 s30, s30, 10')
        a('s_add_u32 s30, s30, s13')
        a('s_lshl_b32 s30, s30, 1')
        a('s_and_b32 s25, s15, 1')
        a('s_add_u32 s30, s30, s25')
        a('s_lshl_b32 s30, s30, 17')
        a('s_add_u32 s30, s30, s17')
    a('s_waitcnt lgkmcnt(0)')
    if TOUCH == 3:
        L0 = a.newlabel('P0T')
        a('s_cmp_lg_u32 s13, 0')
        a(f's_cbranch_scc1 {L0}')
        a('buffer_load_dword v11, v9, s[44:47], s30 offen')
        a.label(L0)
    if TOUCH == 9:
        WT(a, 1)
        a('buffer_load_dword v11, off, s[44:47], s24')
        a('s_waitcnt vmcnt(0)')
        WT(a, 2)
        a('buffer_load_dword v11, v9, s[44:47], s24 offen')
        a('s_waitcnt vmcnt(0)')
        WT(a, 3)
        a('buffer_load_dword v11, off, s[48:51], s19')
        a('s_waitcnt vmcnt(0)')
        WT(a, 4)
    if TOUCH in (1, 2, 9): a('buffer_load_dword v11, v9, s[44:47], s24 offen')
    for i in range(8):
        a(f's_add_u32 m0, s22, {i*1024}')
        if isK:
            a(f's_add_u32 s24, s19, {i*2*8192}')
            a(f'buffer_load_dwordx4 v{6 + i%2}, s[48:51], s24 offen lds')
        else:
            a(f's_add_u32 s24, s19, {8*i*896}')
            a('buffer_load_dwordx4 v8, s[48:51], s24 offen lds')
    def prot(p, dst, sh):
        if not ROT: return [f's_mov_b32 {dst}, {p << sh}']
        return [f's_add_u32 {dst}, s15, {p}', f's_and_b32 {dst}, {dst}, 3', f's_lshl_b32 {dst}, {dst}, {sh}']
    def dma(p):
        out = prot(p, 's28', 18) + ['s_add_u32 s28, s28, s18']
        for i in range(16):
            out += [f's_add_u32 m0, s21, {(p%2)*16384 + i*1024}', f's_add_u32 s24, s28, {i*2*8192}',
                    f'buffer_load_dwordx4 v{6 + i%2}, s[44:47], s24 offen lds']
        return out
    if TOUCH == 2: a('s_waitcnt vmcnt(8)')
    if TOUCH == 9:
        a('s_waitcnt vmcnt(0)'); WT(a, 5)
    if TOUCH == 3: a('buffer_load_dword v11, v9, s[44:47], s30 offen')
    for x in dma(0): a(x)
    WT(a, 6 if TOUCH == 9 else 1)
    a('v_lshrrev_b32 v9, 2, v3')
    a('v_lshlrev_b32 v9, 12, v9')
    a('v_and_b32 v10, 3, v3')
    a('v_lshl_add_u32 v9, v10, 9, v9')
    a('v_lshl_add_u32 v9, v10, 6, v9')
    a('v_lshl_add_u32 v9, v4, 4, v9')
    BF = 256; AF = 16; ACC = 80; OUT = 144
    a(f's_waitcnt vmcnt({17 if TOUCH == 3 else 16})')
    a('s_barrier')
    d1 = dma(1)
    def nxt():
        while d1:
            x = d1.pop(0); a(x)
            if not x.startswith('s_'): break
    if isK:
        for k in range(4):
            a(f'v_xor_b32 v{12+k}, {64*k}, v9')
            a(f'v_add_u32 v{12+k}, {B_OFF}, v{12+k}')
        for es in range(8):
            for t in range(4):
                a(f'ds_read_b128 {R(BF+16*es+4*t,4)}, v{12 + es%4} offset:{(t//2)*16384 + (t%2)*2048 + (es//4)*256}')
                if t % 2: nxt()
    else:
        tr_lane(a, 'v12', 'v10')
        a(f'v_add_u32 v12, {B_OFF}, v12')
        a('v_xor_b32 v13, 64, v12')
        for es in range(8):
            for t in range(4):
                for hf in range(2):
                    a(f'ds_read_b64_tr_b16 {R(BF+16*es+4*t+2*hf,2)}, v{12 + t//2} offset:{es*4096 + hf*512 + (t%2)*32}')
                if t % 2: nxt()
    assert not d1
    for k in range(4):
        a(f'v_xor_b32 v{12+k}, {64*k}, v9')
        a(f'v_add_u32 v{12+k}, s21, v{12+k}')
    a(f's_mul_i32 s29, s14, {MAT}')
    a(f's_mul_i32 s25, s15, {4*14336}')
    a('s_add_u32 s29, s29, s25')
    a('s_lshl_b32 s25, s23, 10')
    a('s_add_u32 s29, s29, s25')
    if isK:
        a(f's_mov_b32 s26, {f2u(LOG2E/16)}')
    def acc(p, b, t): return ACC + 32 * (p % 2) + 4 * (4 * b + t)
    def epi(p):
        out = prot(p, 's27', 10) + ['s_add_u32 s27, s27, s29']
        for t in range(4):
            o = OUT + 4 * t
            for b in range(2):
                r = acc(p, b, t)
                if isK: out += [f'v_mul_f32 {R(r+q)}, s26, {R(r+q)}' for q in range(4)]
                out += [f'v_cvt_pk_bf16_f32 {R(o+2*b+q)}, {R(r+2*q)}, {R(r+2*q+1)}' for q in range(2)]
            out.append(f'buffer_store_dwordx4 {R(o,4)}, v2, s[8:11], s27 offen sc1')
            if t < 3: out.append('s_add_u32 s27, s27, 14336')
        return out
    NV = [16, 16, 20, 4]
    for p in range(4):
        a(f's_waitcnt vmcnt({NV[p]})')
        if TOUCH != 9: WT(a, 2 + p)
        for es in range(8):
            for b in range(2):
                a(f'ds_read_b128 {R(AF+8*es+4*b,4)}, v{12 + es%4} offset:{(p%2)*16384 + b*2048 + (es//4)*256}')
        fe = epi(p - 1) if p else []
        fd = dma(p + 2) if p + 2 < 4 else []
        k = 0
        for es in range(8):
            a(f's_waitcnt lgkmcnt({max(0, 12 - 4*es)})' if es < 4 else 's_nop 0')
            for b in range(2):
                for t in range(4):
                    c = '0' if es == 0 else R(acc(p, b, t), 4)
                    a(f'{MF} {R(acc(p,b,t),4)}, {R(AF+8*es+4*b,4)}, {R(BF+16*es+4*t,4)}, {c}')
                    k += 1
                    if es < 4:
                        for _ in range(2):
                            while fe:
                                x = fe.pop(0); a(x)
                                if not x.startswith('s_'): break
                    elif k % 2 == 0:
                        while fd:
                            x = fd.pop(0); a(x)
                            if not x.startswith('s_'): break
        assert not fe and not fd
    if TOUCH != 9: WT(a, 6)
    for x in epi(3): a(x)
    WT(a, 7)

M_LDS = 65536
def gen_misc1(a):
    a('v_and_b32 v1, 63, v0')
    a('v_lshlrev_b32 v240, 4, v1')
    a('s_lshl_b32 s52, s12, 2')
    a('s_add_u32 s52, s52, s13')
    srd(a, 44, 0, 2048 * 896)
    srd(a, 48, 88, 896)
    raw_lane(a, 'v241', 'v242', 896)
    a('v_lshrrev_b32 v242, 4, v1')
    a('v_lshlrev_b32 v242, 4, v242')
    a(f's_mul_i32 s53, s52, {16*896}')
    a('s_mul_i32 s54, s13, 14336')
    a(f's_add_u32 s54, s54, {M_LDS}')
    a('s_waitcnt lgkmcnt(0)')
    for i in range(2):
        for c in range(7):
            a(f's_add_u32 m0, s54, {(i*7 + c)*1024}')
            a(f's_add_u32 s55, s53, {i*8*896 + c*128}')
            a('buffer_load_dwordx4 v241, s[44:47], s55 offen lds')
    for ks in range(14):
        a(f'buffer_load_dwordx4 {R(176+4*ks,4)}, v242, s[48:51], 0 offen offset:{ks*64}')
    for r in range(4): a(f'v_mov_b32 v{232+r}, -1')
    a('s_mul_i32 s55, s52, 3584')
    for base in (MEMNAT, MEMX):
        a(f's_add_u32 s56, s55, {base}')
        for k in range(4):
            a(f'buffer_store_dwordx4 v[232:235], v240, s[8:11], s56 offen offset:{min(k*1024, 2560)} sc1')
    a('v_mov_b64 v[236:237], 0')
    a('v_lshlrev_b32 v243, 3, v1')
    a('s_lshl_b32 s56, s52, 9')
    a(f's_add_u32 s56, s56, {FLAGS}')
    a('buffer_store_dwordx2 v[236:237], v243, s[8:11], s56 offen sc1')
    a('v_bfe_u32 v243, v1, 3, 1')
    a('v_mul_u32_u24 v244, 7168, v243')
    a('v_and_b32 v243, 7, v1')
    a('v_lshl_add_u32 v244, v243, 7, v244')
    a('v_add_u32 v244, v244, v242')
    a('v_bfe_u32 v243, v1, 1, 1')
    a('v_lshl_add_u32 v244, v243, 6, v244')
    a('v_add_u32 v244, s54, v244')
    a('v_xor_b32 v245, 64, v244')
    a('v_and_b32 v246, 15, v1')
    a('v_lshlrev_b32 v246, 2, v246')

def gen_misc2(a, younger):
    XF = 120; GF = 176
    a(f's_waitcnt vmcnt({younger})')
    for ks in range(14):
        a(f'ds_read_b128 {R(XF+4*ks,4)}, v{244 + ks%2} offset:{(ks//2)*1024}')
    a(f's_add_u32 s55, s53, {XIMG}')
    for ks in range(14):
        if ks and ks % 4 == 0: a('s_add_u32 s55, s55, 4096')
        a(f's_waitcnt lgkmcnt({13-ks})')
        a(f'buffer_store_dwordx4 {R(XF+4*ks,4)}, v240, s[8:11], s55 offen offset:{(ks%4)*1024} sc1')
        a(f'{MF} v[248:251], {R(GF+4*ks,4)}, {R(XF+4*ks,4)}, {"0" if ks == 0 else "v[248:251]"}')
    a(f's_mov_b32 s56, {f2u(-LOG2E)}')
    a('v_mul_f32 v252, s56, v248')
    a('v_exp_f32 v252, v252')
    a('v_add_f32 v252, 1.0, v252')
    a('v_rcp_f32 v252, v252')
    a('s_lshl_b32 s55, s52, 6')
    a(f's_add_u32 s55, s55, {GVEC}')
    a('s_mov_b64 exec, 0xffff')
    a('buffer_store_dword v252, v246, s[8:11], s55 offen sc1')
    a('s_mov_b64 exec, -1')

def raw_lane(a, vdst, vt, stride):
    a(f'v_lshrrev_b32 {vt}, 3, v1')
    a(f'v_mul_u32_u24 {vdst}, {stride}, {vt}')
    a(f'v_bfe_u32 {vt}, v1, 4, 1')
    a(f'v_lshlrev_b32 {vt}, 2, {vt}')
    a(f'v_xor_b32 {vt}, {vt}, v1')
    a(f'v_and_b32 {vt}, 7, {vt}')
    a(f'v_lshl_add_u32 {vdst}, {vt}, 4, {vdst}')

def tr_lane(a, vdst, vt):
    a(f'v_lshrrev_b32 {vt}, 2, v3')
    a(f'v_lshlrev_b32 {vdst}, 7, {vt}')
    a(f'v_lshl_add_u32 {vdst}, v4, 10, {vdst}')
    a(f'v_bfe_u32 {vt}, v3, 3, 1')
    a(f'v_lshl_add_u32 {vdst}, {vt}, 6, {vdst}')
    a(f'v_and_b32 {vt}, 3, v3')
    a(f'v_lshl_add_u32 {vdst}, {vt}, 3, {vdst}')
```

```python
from asmlib import *
from layout import *

NSTEP = 63
SM = 'v_smfmac_f32_16x16x64_bf16'
MF = 'v_mfma_f32_16x16x32_bf16'
DP = 'row_mask:0xf bank_mask:0xf'
sWS = 8; sRole = 12; sWave = 13; sStep = 14; sCur = 15; sNxt = 16; sPrv = 17
sT0 = 18; sT1 = 19; sT2 = 20; sT3 = 21; sSpin = 22; sStr = 23; sVX = 24; sJ = 25
SPIN_MAX = 2000000
MBOX = MEMNAT
sMc = 31
EB = WB
PROG = TBOX + 4 * SLOT - 256
F_CLAIM = FLAGS
F_TBAR = FLAGS + 8 * 256
F_RDY = FLAGS + 9 * 256
F_KV = FLAGS + 4096
F_MIR = F_KV + 64 * 512
F_H = F_MIR + 32 * 512
F_W = F_H + 16 * 256
F_X = F_W + 4096
FLAGS_BYTES = 65536
MEGA = False
sMode = 40; sArr = 41; sRdy = 26; sNeed = 27
L_MODE = 7200
INSTR = False; XST = {0: 10, 12: 11, 14: 12, 41: 13}
NTOUCH = 16; PACE = 2; BE_EARLY = 1; KFIX = 0; VFIX = 0; STRM_MASK = None; NOSTREAM = 0; NONAT = 0
A_BE = 1; PDEPTH = 3; PSTAG = 1; A_SLEEP = 2
CDEPTH = 3; CSTAG = 1; CMDEPTH = 2; CMSTAG = 2; C_SLEEP = 1; CW_SLEEP = 0; C_PF = 0; PFD = 3; SPARE_PF = 0
B2AT = 20; B2A3 = 2; B3A = 43; B3B = 53; NSH = 4; NSH2 = 5; NE = 9; KLD0 = 8; KLDE = 3; A_PF = 1; XS0 = 4; XCAP = 3; EPOLL = 40; ESTEP = 2; EPOLL2 = 48; CVLD0 = 8; CVLDE = 4
ST = ''

def WREG(t, c):
    i = t * 7 + c
    return 120 + 8 * i if i < 17 else 256 + 8 * (i - 17)

A_MEM = 0; A_XT = 8192; A_SX = 28672; A_Z = 24576; A_FL = 24576; A_ST = 25600; A_KX = 28672
C_MEM = 0; C_X = 8192; C_W = 16384; C_VX = C_W + 4 * 14336
LDS_TEAM = C_VX + 65536

vLane = 1; vL16 = 2; vIdx = 3
vA0 = 4; vA1 = 5; vA2 = 6; vA3 = 7; vA4 = 8; vA5 = 9; vA6 = 10; vA7 = 11
vT0 = 12; vT1 = 13; vT2 = 14; vT3 = 15
vMem = 16; vAcc = 44; vPoll = 56; vBig = 64

def TSI(k): return [f's_memtime s[{44+2*k}:{45+2*k}]'] if INSTR else []
def TS(a, k):
    for i in TSI(k): a(i)
def ts_dump(a):
    if not INSTR: return
    a('s_waitcnt lgkmcnt(0)')
    for k in range(16):
        a(f'v_writelane_b32 {R(vT1)}, s{44+2*k}, {k}')
    a('s_lshr_b32 s18, s2, 3')
    a('s_lshl_b32 s18, s18, 2')
    a('s_add_u32 s18, s18, s13')
    a('s_lshl_b32 s18, s18, 6')
    a(f's_add_u32 s18, s18, {S(sStep)}')
    a('s_lshl_b32 s18, s18, 6')
    a(f's_add_u32 s18, s18, {DBG + 4096}')
    a(f'v_lshrrev_b32 {R(vT0)}, 2, {R(vL16)}')
    a('s_mov_b64 exec, 0xffff')
    a(f'buffer_store_dword {R(vT1)}, {R(vT0)}, s[8:11], s18 offen')
    a('s_mov_b64 exec, -1')

def slots(a, nxt=True):
    a(f's_and_b32 {S(sT0)}, {S(sStep)}, 3')
    a(f's_lshl_b32 {S(sT0)}, {S(sT0)}, 17')
    a(f's_add_u32 {S(sCur)}, {S(sT0)}, {TBOX}')
    a(f's_xor_b32 {S(sPrv)}, {S(sCur)}, {2*SLOT}')
    if nxt:
        a(f's_add_u32 {S(sT0)}, {S(sStep)}, 1')
        a(f's_lshr_b32 {S(sMc)}, {S(sT0)}, 1')
        a(f's_mul_i32 {S(sMc)}, {S(sMc)}, 14336')
        a(f's_and_b32 {S(sT1)}, {S(sT0)}, 1')
        a(f's_lshl_b32 {S(sT1)}, {S(sT1)}, 7')
        a(f's_add_u32 {S(sMc)}, {S(sMc)}, {S(sT1)}')
        a(f's_add_u32 {S(sMc)}, {S(sMc)}, {MBOX}')
        a(f's_and_b32 {S(sT0)}, {S(sT0)}, 3')
        a(f's_lshl_b32 {S(sT0)}, {S(sT0)}, 17')
        a(f's_add_u32 {S(sNxt)}, {S(sT0)}, {TBOX}')

def acc_max(tmp, regs, first):
    regs = list(regs); o = []
    if first:
        o.append(f'v_max3_u32 {R(tmp)}, {R(regs[0])}, {R(regs[1])}, {R(regs[2])}'); regs = regs[3:]
    while regs:
        if len(regs) >= 2:
            o.append(f'v_max3_u32 {R(tmp)}, {R(tmp)}, {R(regs[0])}, {R(regs[1])}'); regs = regs[2:]
        else:
            o.append(f'v_max_u32 {R(tmp)}, {R(tmp)}, {R(regs[0])}'); regs = regs[1:]
    return o

def check_regs(a, base, n, tmp):
    for x in acc_max(tmp, range(base, base + n), True): a(x)
    a(f'v_cmp_eq_u32 vcc, -1, {R(tmp)}')

def spin_guard(a, exit_label):
    a(f's_add_u32 {S(sSpin)}, {S(sSpin)}, 1')
    a(f's_cmp_gt_u32 {S(sSpin)}, {SPIN_MAX}')
    a(f's_cbranch_scc1 {exit_label}')

def zero4(r): return [f'v_mov_b64 {R(r,2)}, 0', f'v_mov_b64 {R(r+2,2)}, 0']

WAITW = None
PREBAR = None
def load_weights(a, tile_off):
    for t in range(7):
        if t == 5 and MEGA:
            a(f's_mov_b32 {S(sT0)}, {F_RDY}')
            a(f'buffer_load_dword {R(vT0)}, off, {S(sWS,4)}, {S(sT0)} sc1')
        tile_off(t)
        for q in range(4):
            if q: a(f's_add_u32 {S(sT0)}, {S(sT0)}, 4096')
            for k in range(4):
                ks = 4 * q + k
                if ks >= 14: break
                reg = WREG(t, ks // 2) + 4 * (ks % 2)
                a(f'buffer_load_dwordx4 {R(reg,4)}, {R(vL16)}, {S(sWS,4)}, {S(sT0)} offen offset:{k*1024} sc1')

def early_rdy(a):
    if not MEGA: return
    a('s_waitcnt vmcnt(28)')
    a(f'v_readfirstlane_b32 {S(sRdy)}, {R(vT0)}')

def dispatch(a, keys, fn, join=None):
    L = {k: a.newlabel('DSP') for k in keys}
    for k in keys[1:]:
        a(f's_cmp_eq_u32 {S(sWave)}, {k}')
        a(f's_cbranch_scc1 {L[k]}')
    for k in keys:
        a.label(L[k]); a.reset_hist()
        fn(k)
        if join: a(f's_branch {join}')
    if join:
        a.label(join); a.reset_hist()

def common_lane_setup(a):
    a(f'v_and_b32 {R(vLane)}, 63, v0')
    a(f'v_lshlrev_b32 {R(vL16)}, 4, {R(vLane)}')
    a(f'v_and_b32 {R(vT0)}, 8, {R(vLane)}')
    a(f'v_cmp_eq_u32 vcc, 0, {R(vT0)}')
    a(f'v_mov_b32 {R(vT1)}, 0xeeee')
    a(f'v_mov_b32 {R(vT2)}, 0x4444')
    a(f'v_cndmask_b32 {R(vIdx)}, {R(vT1)}, {R(vT2)}, vcc')

def team_barrier_old(a, exit_label, n=30, arrive=True):
    a('s_waitcnt vmcnt(0) lgkmcnt(0)')
    a('s_barrier')
    Lw = a.newlabel('TBW'); Ls = a.newlabel('TBS')
    a(f's_cmp_lg_u32 {S(sWave)}, 0')
    a(f's_cbranch_scc1 {Ls}')
    a(f'v_mov_b32 {R(vT0)}, 0')
    a(f'v_mov_b32 {R(vT1)}, 1')
    a('s_mov_b64 exec, 1')
    if arrive: a(f'global_atomic_add {R(vT0)}, {R(vT1)}, s[4:5] offset:128 sc1')
    a.label(Lw)
    a(f'global_load_dword {R(vT2)}, {R(vT0)}, s[4:5] offset:128 sc1')
    spin_guard(a, exit_label)
    a('s_waitcnt vmcnt(0)')
    a(f'v_cmp_gt_u32 vcc, {n}, {R(vT2)}')
    a(f's_cbranch_vccnz {Lw}')
    a('s_mov_b64 exec, -1')
    a.label(Ls)
    a('s_barrier')

def team_barrier(a, exit_label, n=30, arrive=True):
    if not MEGA: return team_barrier_old(a, exit_label, n, arrive)
    if PREBAR: PREBAR(a)
    a('s_waitcnt vmcnt(0) lgkmcnt(0)')
    a('s_barrier')
    Lw = a.newlabel('TBW'); Ls = a.newlabel('TBS')
    a(f'v_mov_b32 {R(vT0)}, {L_MODE}')
    a(f's_cmp_lg_u32 {S(sWave)}, 0')
    a(f's_cbranch_scc1 {Ls}')
    a(f'v_mov_b32 {R(vT1)}, {S(sArr)}')
    a(f'v_mov_b32 {R(vT3)}, 0')
    a('s_mov_b64 exec, 1')
    a(f'global_atomic_add {R(vT3)}, {R(vT1)}, s[4:5] sc1')
    a.label(Lw)
    a(f'global_load_dword {R(vT2)}, {R(vT3)}, s[4:5] sc1')
    spin_guard(a, exit_label)
    a('s_waitcnt vmcnt(0)')
    a(f'v_and_b32 {R(vT1)}, 0x3f, {R(vT2)}')
    a(f'v_cmp_gt_u32 vcc, 32, {R(vT1)}')
    a(f's_cbranch_vccnz {Lw}')
    a(f'v_bfe_u32 {R(vT1)}, {R(vT2)}, 6, 10')
    a(f'v_mul_u32_u24 {R(vT1)}, {R(vT1)}, {R(vT1)}')
    a(f'v_lshrrev_b32 {R(vT2)}, 16, {R(vT2)}')
    a(f'v_lshlrev_b32 {R(vT2)}, 5, {R(vT2)}')
    a(f'v_sub_u32 {R(vT2)}, {R(vT2)}, {R(vT1)}')
    a(f'ds_write_b32 {R(vT0)}, {R(vT2)}')
    a('s_waitcnt lgkmcnt(0)')
    a('s_mov_b64 exec, -1')
    a.label(Ls)
    a('s_barrier')
    a(f'ds_read_b32 {R(vT1)}, {R(vT0)}')
    a('s_waitcnt lgkmcnt(0)')
    a(f'v_readfirstlane_b32 {S(sMode)}, {R(vT1)}')

def ensure_rdy(a, exit_label, ahead, base=sStep):
    if not MEGA: return
    Lok = a.newlabel('RDO'); Lp = a.newlabel('RDP')
    if base is None: a(f's_mov_b32 {S(sNeed)}, {ahead}')
    else:
        a(f's_add_u32 {S(sNeed)}, {S(base)}, {ahead}')
        a(f's_min_u32 {S(sNeed)}, {S(sNeed)}, 64')
    a(f's_cmp_ge_u32 {S(sRdy)}, {S(sNeed)}')
    a(f's_cbranch_scc1 {Lok}')
    a(f's_mov_b32 {S(sT0)}, {F_RDY}')
    a.label(Lp)
    a(f'buffer_load_dword {R(vT0)}, off, {S(sWS,4)}, {S(sT0)} sc1')
    spin_guard(a, exit_label)
    a('s_waitcnt vmcnt(0)')
    a(f'v_readfirstlane_b32 {S(sRdy)}, {R(vT0)}')
    a(f's_cmp_lt_u32 {S(sRdy)}, {S(sNeed)}')
    a(f's_cbranch_scc1 {Lp}')
    a.label(Lok)

def both_modes(a, body):
    global ST
    if not MEGA:
        body(); return
    Lslow = a.newlabel('SLOW')
    a(f's_cmp_lg_u32 {S(sMode)}, 0')
    a(f's_cbranch_scc1 {Lslow}')
    ST = ''; body()
    a.label(Lslow); a.reset_hist()
    ST = 'sc1'; body(); ST = ''

class Gaps:
    def __init__(self): self.m = {}; self.v = {}
    def nm(self, k): return sum(1 for x in self.m.get(k, []) if not x.startswith('s_') and not x.endswith(':'))
    def fixed(self, k, lst):
        for x in lst:
            (self.v if x.startswith('v_') else self.m).setdefault(k, []).append(x)
    def place(self, lst, start, step=0, cap=1):
        k = start; pend = []; last = start; prevv = False
        for x in lst:
            pend.append(x)
            if x.startswith('s_'): continue
            isv = x.startswith('v_')
            if prevv and k == last and (not isv or len(pend) > 1): k += 1
            while (len(self.v.get(k, [])) if isv else self.nm(k)) >= cap: k += 1
            self.fixed(k, pend); pend = []; last = k; k += step; prevv = isv
        if pend: self.fixed(last + (1 if prevv else 0), pend)
        return last
    def nvm(self, upto):
        return sum(1 for k, v in self.m.items() if k <= upto for x in v if x.startswith('buffer_'))
    def nds_after(self, pat, upto):
        seq = [x for k in sorted(self.m) if k <= upto for x in self.m[k] if x.startswith('ds_')]
        idx = max(i for i, x in enumerate(seq) if pat in x)
        return len(seq) - 1 - idx
    def weave(self, stream, last):
        items = {}
        for kk in sorted(set(self.m) | set(self.v)):
            items.setdefault(min(kk, last), []).extend(self.m.get(kk, []) + self.v.get(kk, []))
        out = []; k = -1; i = 0
        while i < len(stream):
            ins = stream[i]; out.append(ins); i += 1
            if ins.startswith('v_smfmac') or ins.startswith('v_mfma'):
                k += 1
                if k in XST: out.extend(TSI(XST[k]))
                it = items.get(k, [])
                tail = []
                while i < len(stream) and stream[i].startswith('s_'):
                    tail.append(stream[i]); i += 1
                nv = [x for x in it if not x.startswith('v_')] if k < last else it
                vv = [x for x in it if x.startswith('v_')] if k < last else []
                out.extend(nv + tail + vv)
        return out

def first_waits(stream):
    out = []; k = 0
    for ins in stream:
        if ins.startswith(SM) and k < 7:
            out.append(f's_waitcnt lgkmcnt({6-k})'); k += 1
        out.append(ins)
    return out

def mem_frag_reads(a):
    for c in range(7):
        a(f'ds_read_b128 {R(vMem+4*c,4)}, {R(vL16)} offset:{c*1024}')

def step_end(a, Lloop):
    TS(a, 15)
    if INSTR: a('s_memrealtime s[72:73]')
    ts_dump(a)
    a(f's_add_u32 {S(sStep)}, {S(sStep)}, 1')
    a(f's_cmp_lt_u32 {S(sStep)}, {NSTEP}')
    a(f's_cbranch_scc1 {Lloop}')

CH = [[0, 1], [2, 3], [4, 5], [6, 0]]
def poll_mem(a, chunks, exit_label, pre=None, w=1):
    L = a.newlabel('PM')
    n = len(chunks)
    def rnd():
        for i, c in enumerate(chunks):
            if c < 4:
                a(f'buffer_load_dwordx4 {R(vMem+4*c,4)}, {R(vL16)}, {S(sWS,4)}, {S(sCur)} offen offset:{c*1024} sc1')
            else:
                a(f'buffer_load_dwordx4 {R(vMem+4*c,4)}, {R(vA7)}, {S(sWS,4)}, {S(sCur)} offen offset:{(c-4)*1024} sc1')
    if w or not BE_EARLY: a('s_barrier')
    for x in (pre or []): a(x)
    if A_SLEEP: a(f's_sleep {A_SLEEP}')
    TS(a, 0)
    for d in range(PDEPTH - 1):
        rnd()
        if PSTAG: a(f's_sleep {PSTAG}')
    a('s_waitcnt lgkmcnt(0)')
    a.label(L)
    rnd()
    spin_guard(a, exit_label)
    for i, c in enumerate(chunks):
        a(f's_waitcnt vmcnt({n*(PDEPTH-1) + n-1-i})')
        for x in acc_max(vT0, range(vMem+4*c, vMem+4*c+4), i == 0): a(x)
    a(f'v_cmp_eq_u32 vcc, -1, {R(vT0)}')
    a(f's_cbranch_vccnz {L}')
    TS(a, 2)
    if INSTR: a(f's_mov_b32 s46, {S(sSpin)}')

def kdma(kt):
    out = []
    for q in range(4):
        out += [f's_add_u32 {S(sT0)}, {S(sStr)}, {kt*14336 + q*4096}', f's_mov_b32 m0, {A_KX + kt*14336 + q*4096}']
        for k in range(4):
            if 4 * q + k < 14:
                out.append(f'buffer_load_dwordx4 {R(vL16)}, {S(sWS,4)}, {S(sT0)} offen offset:{k*1024} sc1 lds')
    return out

KSET = {1: [(2, 0), (3, 0), (1, 0), (4, 0), (5, 0)], 2: [(4, 1), (5, 1), (1, 1), (2, 1), (3, 1)], 3: [(6, 0), (6, 1), (0, 0), (0, 1)]}
KR = 80; SXR = 72
def kld(w, i):
    c, kt = KSET[w][i]
    return [f's_add_u32 {S(sT0)}, {S(sStr)}, {kt*14336 + c*2048}'] + \
           [f'buffer_load_dwordx4 {R(KR+8*i+4*hh,4)}, {R(vL16)}, {S(sWS,4)}, {S(sT0)} offen offset:{hh*1024} sc1' for hh in range(2)]
def sxm(w, i):
    c, kt = KSET[w][i]
    return f'{SM} {R(SXR+4*kt,4)}, {R(vMem+4*c,4)}, {R(KR+8*i,8)}, {R(vIdx)}'
def sxadd(kt):
    return [f'ds_add_f32 {R(vA2)}, {R(SXR+4*kt+r)} offset:{A_SX + r*128 + kt*8}' for r in range(4)]

def sxout(kt, off):
    r = SXR + 4 * kt
    return [f'v_permlane32_swap_b32 {R(r)}, {R(r+2)}', f'v_permlane32_swap_b32 {R(r+1)}, {R(r+3)}',
            f'v_add_f32 {R(r)}, {R(r)}, {R(r+2)}', f'v_add_f32 {R(r+1)}, {R(r+1)}, {R(r+3)}',
            f'ds_write_b64 {R(vA1)}, {R(r,2)} offset:{A_SX + off + kt*512}']

def tprime_write(acc, t):
    return [f'v_cvt_pk_bf16_f32 {R(vT0)}, {R(acc)}, {R(acc+1)}',
            f'v_cvt_pk_bf16_f32 {R(vT1)}, {R(acc+2)}, {R(acc+3)}',
            f'ds_write_b64 {R(vA0)}, {R(vT0,2)} offset:{A_XT + t*2048}']
def tpm(accs, t, c):
    return f'{SM} {R(accs[t],4)}, {R(vMem+4*c,4)}, {R(WREG(t,c),8)}, {R(vIdx)}'
def early_part(gp, accs, own, ne, wr_own=None):
    first = [(t, c) for c in own for t in range(7)][:ne]
    G = [tpm(accs, t, c) for t, c in first]
    for i, c in enumerate(wr_own or own):
        gp.fixed(i, [f'ds_write_b128 {R(vL16)}, {R(vMem+4*c,4)} offset:{c*1024}'])
    oth = [c for c in range(7) if c not in own]
    gp.fixed(B1AT, ['s_waitcnt lgkmcnt(0)', 's_barrier'] + TSI(3))
    gp.place([f'ds_read_b128 {R(vMem+4*c,4)}, {R(vL16)} offset:{c*1024}' for c in oth], B1AT, cap=2)
    rest = [[c for c in own + oth if (t, c) not in first] for t in range(7)]
    return G, rest
vTag = 0; vFlA = vA6
def flagw(t): return f'ds_write_b32 {R(vFlA)}, {R(vTag)} offset:{A_FL + t*16}'
def late_part(gp, accs, rest, base, flags=True, flex=False):
    G = []; wr = []
    for t in range(7):
        G += [tpm(accs, t, c) for c in rest[t]]
        e = base + len(G) - 1
        p = tprime_write(accs[t], t) + ([flagw(t)] if flags and t < NSH else [])
        if flex:
            wr.append(gp.place(p, max(e + 3, wr[-1] if wr else 0), cap=FLEXCAP, step=1))
        else:
            for i, x in enumerate(p): gp.fixed(e + 3 + i, [x])
            wr.append(e + 3 + len(p) - 1)
    return G, wr
B1AT = 4

def row_map(a, row, key, tmp):
    a(f'v_bfe_u32 {R(row)}, {R(vLane)}, 4, 1')
    a(f'v_lshlrev_b32 {R(row)}, 2, {R(row)}')
    a(f'v_bfe_u32 {R(tmp)}, {R(vLane)}, 5, 1')
    a(f'v_lshl_add_u32 {R(row)}, {R(tmp)}, 1, {R(row)}')
    a(f'v_bfe_u32 {R(tmp)}, {R(vLane)}, 3, 1')
    a(f'v_add_u32 {R(row)}, {R(row)}, {R(tmp)}')
    a(f'v_and_b32 {R(key)}, 7, {R(vLane)}')

def e_addr(a, dst, row, key):
    a(f's_lshr_b32 {S(sT0)}, {S(sRole)}, 2')
    a(f's_lshl_b32 {S(sT0)}, {S(sT0)}, 11')
    a(f's_and_b32 {S(sT1)}, {S(sRole)}, 1')
    a(f's_lshl_b32 {S(sT1)}, {S(sT1)}, 10')
    a(f's_add_u32 {S(sT0)}, {S(sT0)}, {S(sT1)}')
    a(f's_and_b32 {S(sT1)}, {S(sRole)}, 2')
    a(f's_lshl_b32 {S(sT1)}, {S(sT1)}, 6')
    a(f's_add_u32 {S(sT0)}, {S(sT0)}, {S(sT1)}')
    a(f's_add_u32 {S(sT0)}, {S(sT0)}, {EB}')
    a(f'v_lshrrev_b32 {R(vT0)}, 1, {R(key)}')
    a(f'v_lshl_add_u32 {R(dst)}, {R(vT0)}, 8, {S(sT0)}')
    a(f'v_lshl_add_u32 {R(dst)}, {R(row)}, 4, {R(dst)}')
    a(f'v_and_b32 {R(vT0)}, 1, {R(key)}')
    a(f'v_lshl_add_u32 {R(dst)}, {R(vT0)}, 3, {R(dst)}')

def gen_A(a, EXIT, stamp=None):
    common_lane_setup(a)
    a(f'v_add_u32 {R(vA7)}, 4096, {R(vL16)}')
    n, g = vT0, vT1
    a(f'v_and_b32 {R(n)}, 15, {R(vLane)}')
    a(f'v_lshrrev_b32 {R(g)}, 4, {R(vLane)}')
    a(f'v_lshrrev_b32 {R(vT2)}, 2, {R(n)}')
    a(f'v_xor_b32 {R(vT3)}, {R(g)}, {R(vT2)}')
    a(f'v_and_b32 {R(vA0)}, 3, {R(n)}')
    a(f'v_lshl_add_u32 {R(vA0)}, {R(vA0)}, 2, {R(vT3)}')
    a(f'v_and_b32 {R(vT3)}, 1, {R(vT2)}')
    a(f's_and_b32 {S(sT0)}, {S(sWave)}, 1')
    a(f'v_xor_b32 {R(vT3)}, {S(sT0)}, {R(vT3)}')
    a(f'v_lshl_add_u32 {R(vA0)}, {R(vT3)}, 4, {R(vA0)}')
    a(f'v_lshlrev_b32 {R(vA0)}, 3, {R(vA0)}')
    a(f'v_lshl_add_u32 {R(vA0)}, {R(vT2)}, 8, {R(vA0)}')
    a(f's_lshr_b32 {S(sT0)}, {S(sWave)}, 1')
    a(f's_lshl_b32 {S(sT0)}, {S(sT0)}, 10')
    a(f'v_add_u32 {R(vA0)}, {S(sT0)}, {R(vA0)}')
    a(f'v_and_b32 {R(vT2)}, 3, {R(n)}')
    a(f'v_xor_b32 {R(vT2)}, {R(vT2)}, {R(g)}')
    a(f'v_and_b32 {R(vT3)}, 12, {R(n)}')
    a(f'v_add_u32 {R(vT2)}, {R(vT2)}, {R(vT3)}')
    a(f'v_and_b32 {R(vT3)}, 1, {R(g)}')
    a(f'v_lshl_add_u32 {R(vT2)}, {R(vT3)}, 4, {R(vT2)}')
    a(f'v_lshlrev_b32 {R(vT2)}, 3, {R(vT2)}')
    a(f'v_lshl_add_u32 {R(vA1)}, {R(g)}, 8, {R(vT2)}')
    a(f'v_xor_b32 {R(vA2)}, 128, {R(vA1)}')
    for z in zero4(vAcc): a(z)
    a(f'ds_write_b128 {R(vL16)}, {R(vAcc,4)} offset:{A_Z}')
    a(f'ds_write_b128 {R(vL16)}, {R(vAcc,4)} offset:{A_SX}')
    def toff(t):
        a(f's_mul_i32 {S(sT0)}, {S(sRole)}, {MAT}')
        a(f's_mul_i32 {S(sT1)}, {S(sWave)}, 14336')
        a(f's_add_u32 {S(sT0)}, {S(sT0)}, {S(sT1)}')
        a(f's_add_u32 {S(sT0)}, {S(sT0)}, {WIMG + t*4*14336}')
    a(f's_mov_b32 {S(sSpin)}, 0')
    dispatch(a, [0, 1, 2, 3], lambda w: gen_A_wave(a, w, EXIT, stamp), a.newlabel('AJ'))
    team_barrier(a, EXIT)
    if WAITW: WAITW(a, 'A')
    load_weights(a, toff)
    early_rdy(a)
    a(f's_mul_i32 {S(sT0)}, {S(sRole)}, {K_H}')
    a(f's_add_u32 {S(sStr)}, {S(sT0)}, {KIMG}')
    def p2(w):
        if w:
            ensure_rdy(a, EXIT, 1, None)
            for i in range(len(KSET[w])):
                for x in kld(w, i): a(x)
        both_modes(a, lambda: gen_A_loop(a, w, EXIT, stamp))
    dispatch(a, [0, 1, 2, 3], p2)

def gen_A_wave(a, w, EXIT, stamp):
    post = []
    row, key = vT2, vT3
    M1 = vAcc + 10
    if w == 0:
        row_map(a, row, key, vT0)
        a(f'v_and_b32 {R(vT0)}, 1, {R(key)}')
        a(f'v_cmp_eq_u32 s[36:37], 0, {R(vT0)}')
        a(f's_lshl_b32 {S(sT0)}, {S(sRole)}, 7')
        a(f's_add_u32 {S(sT0)}, {S(sT0)}, {PB}')
        a(f'v_lshl_add_u32 {R(vA4)}, {R(row)}, 4, {S(sT0)}')
        a(f'v_lshl_add_u32 {R(vA4)}, {R(key)}, 1, {R(vA4)}')
        a(f's_and_b32 {S(sT0)}, {S(sRole)}, 7')
        a(f's_lshl_b32 {S(sT0)}, {S(sT0)}, 6')
        a(f's_lshr_b32 {S(sT1)}, {S(sRole)}, 3')
        a(f's_lshl_b32 {S(sT1)}, {S(sT1)}, 2')
        a(f's_add_u32 {S(sT0)}, {S(sT0)}, {S(sT1)}')
        a(f's_add_u32 {S(sT0)}, {S(sT0)}, {PB + 2048}')
        a(f'v_lshl_add_u32 {R(vT1)}, {R(row)}, 3, {S(sT0)}')
        a(f'v_cndmask_b32 {R(vA4)}, {R(vT1)}, {R(vA4)}, s[36:37]')
        a(f'v_and_b32 {R(vT0)}, 1, {R(row)}')
        a(f'v_cmp_eq_u32 s[38:39], 0, {R(vT0)}')
        a(f'v_cmp_eq_u32 s[42:43], 1, {R(vT0)}')
        a(f'v_mov_b32 {R(M1)}, -1')
        for sl in range(4):
            a(f's_mov_b32 {S(sT0)}, {TBOX + sl*SLOT}')
            a(f'buffer_store_dword {R(M1)}, {R(vA4)}, {S(sWS,4)}, {S(sT0)} offen sc1')
        e_addr(a, vA5, row, key)
        SA, SB = vLane, vAcc + 11
        a(f'v_lshrrev_b32 {R(SB)}, 4, {R(vLane)}')
        a(f'v_lshlrev_b32 {R(SB)}, 7, {R(SB)}')
        a(f'v_and_b32 {R(vT0)}, 3, {R(key)}')
        a(f'v_lshl_add_u32 {R(SB)}, {R(vT0)}, 5, {R(SB)}')
        a(f'v_lshrrev_b32 {R(vT0)}, 2, {R(key)}')
        a(f'v_lshl_add_u32 {R(SB)}, {R(vT0)}, 3, {R(SB)}')
        a(f'v_and_b32 {R(vT0)}, 1, {R(row)}')
        a(f'v_lshl_add_u32 {R(SB)}, {R(vT0)}, 2, {R(SB)}')
        a(f'v_add_u32 {R(SA)}, {A_SX}, {R(SB)}')
        a(f'v_add_u32 {R(SB)}, {A_SX + 16}, {R(SB)}')
    elif w == 3:
        a(f'v_lshrrev_b32 {R(row)}, 3, {R(vLane)}')
        a(f'v_and_b32 {R(key)}, 7, {R(vLane)}')
        e_addr(a, vA4, row, key)
        a(f'v_mov_b32 {R(M1)}, -1')
        a(f'v_mov_b32 {R(M1+1)}, -1')
        for sl in range(4):
            a(f's_mov_b32 {S(sT0)}, {TBOX + sl*SLOT}')
            a(f'buffer_store_dwordx2 {R(M1,2)}, {R(vA4)}, {S(sWS,4)}, {S(sT0)} offen sc1')
    if w:
        a(f'v_lshlrev_b32 {R(vA1)}, 3, {R(vLane)}')
    a(f'v_mov_b32 {R(vFlA)}, {4*w}')
    a(f'v_mov_b32 {R(vTag)}, 0')

def gen_A_loop(a, w, EXIT, stamp):
    post = []
    M1 = vAcc + 10
    a(f's_mov_b32 {S(sStep)}, 0')
    if stamp: stamp(a, 0)
    L = a.newlabel('ALOOP')
    if w == 0 and BE_EARLY: a('s_barrier')
    a.label(L); a.reset_hist()
    slots(a, False)
    a(f'v_add_u32 {R(vTag)}, 1, {R(vTag)}')
    a(f's_mov_b32 {S(sSpin)}, 0')
    pre_poll = None
    if w == 0:
        accs = [vBig, vBig + 4, vBig + 8, vBig + 12, vBig + 44, vBig + 48, vBig + 52]
        pz = accs + [vAcc]
        a(f'buffer_store_dword {R(M1)}, {R(vA4)}, {S(sWS,4)}, {S(sPrv)} offen {ST}')
    else:
        accs = [44 + 4 * i for i in range(7)]
        pz = accs + ([SXR, SXR + 4] if w == 3 else [SXR + 4 * (w - 1)])
        if w == 3:
            a(f'v_mov_b64 {R(vT2,2)}, -1')
            a(f'buffer_store_dwordx2 {R(vT2,2)}, {R(vA4)}, {S(sWS,4)}, {S(sPrv)} offen {ST}')
        if STRM_MASK is None and not KFIX: a(f's_add_u32 {S(sStr)}, {S(sStr)}, {K_S}')
        ensure_rdy(a, EXIT, 2)
    if A_PF == 3 and w:
        a(f's_min_u32 {S(sT2)}, {S(sRole)}, 13')
        a(f's_mul_i32 {S(sT2)}, {S(sT2)}, {2*V_J}')
        a(f's_add_u32 {S(sT1)}, {S(sStep)}, {PFD}')
        a(f's_mul_i32 {S(sT1)}, {S(sT1)}, {V_S}')
        a(f's_add_u32 {S(sT2)}, {S(sT2)}, {S(sT1)}')
        a(f's_add_u32 {S(sT2)}, {S(sT2)}, {VIMG + 8192}')
    if A_PF == 2 and w in (1, 2):
        a(f's_min_u32 {S(sT2)}, {S(sRole)}, 13')
        a(f's_mul_i32 {S(sT2)}, {S(sT2)}, {2*V_J}')
        a(f's_add_u32 {S(sT1)}, {S(sStep)}, {PFD-1}')
        a(f's_mul_i32 {S(sT1)}, {S(sT1)}, {V_S}')
        a(f's_add_u32 {S(sT2)}, {S(sT2)}, {S(sT1)}')
        a(f's_add_u32 {S(sT2)}, {S(sT2)}, {VIMG + 8192 + (w-1)*V_J}')
        a(f'v_lshlrev_b32 {R(vT2)}, 7, {R(vLane)}')
        pre_poll = [f'buffer_load_dword {R(vT3)}, {R(vT2)}, {S(sWS,4)}, {S(sT2)} offen sc1']
    for x in pz:
        for z in zero4(x): a(z)
    poll_mem(a, CH[w], EXIT, pre_poll, w)
    gp = Gaps()
    XTW = lambda t: f'ds_write_b64 {R(vA0)}, {R(vT0,2)} offset:{A_XT + t*2048}'
    ne = NE + 2 if w == 0 else (NE - 2 if w == 3 else NE)
    G1, rest = early_part(gp, accs, CH[w], ne, [6] if w == 3 else None)
    if w == 0:
        def trr(c):
            b = vBig + BR[c]
            return [f'ds_read_b64_tr_b16 {R(b,2)}, {R(vA1)} offset:{A_XT + c*2048}',
                    f'ds_read_b64_tr_b16 {R(b+2,2)}, {R(vA2)} offset:{A_XT + c*2048}',
                    f'ds_read_b64_tr_b16 {R(b+4,2)}, {R(vA1)} offset:{A_XT + c*2048 + 1024}',
                    f'ds_read_b64_tr_b16 {R(b+6,2)}, {R(vA2)} offset:{A_XT + c*2048 + 1024}']
        def smm(c): return f'{SM} {R(vAcc,4)}, {R(vMem+4*c,4)}, {R(vBig+BR[c],8)}, {R(vIdx)}'
        FR = [vPoll, vPoll + 4]; vOk = vA3; OK = [vAcc + 6, vAcc + 7, vAcc + 8, vAcc + 9]
        mx = vAcc + 4; lx = vAcc + 5
        def flr(c): return f'ds_read_b128 {R(FR[c%2],4)}, {R(vFlA)} offset:{A_FL + c*16}'
        def flc(c, dst):
            f = FR[c % 2]
            return f'v_min3_u32 {R(dst)}, {R(f+1)}, {R(f+2)}, {R(f+3)}'
        SA, SB = vLane, vAcc + 11
        sx0 = vBig + 32; sy0 = vBig + 16; q = vBig + 40
        s0, s1, s2, s3 = sx0, sx0 + 1, sx0 + 2, sx0 + 3
        def rd4(dst, base):
            return [f'ds_read2st64_b32 {R(dst+2*ab,2)}, {R(SB if ab else SA)} offset0:{base} offset1:{base+2}' for ab in range(2)]
        fB = f'ds_read_b128 {R(FR[1],4)}, {R(vFlA)} offset:{A_FL + 7*16}'
        sxr = [fB] + rd4(sy0, 0) + rd4(sx0, 4)
        k = gp.place(sxr, SXAT, cap=3)
        chk = [f'v_min3_u32 {R(vOk)}, {R(FR[1]+3)}, {R(FR[1]+1)}, {R(FR[1]+2)}', f'v_cmp_lt_u32 vcc, {R(vOk)}, {R(vTag)}']
        pre = [f'v_add_f32 {R(sx0+r)}, {R(sx0+r)}, {R(sy0+r)}' for r in range(4)]
        ops = [f'v_max3_f32 {R(mx)}, {R(s0)}, {R(s1)}, {R(s2)}', f'v_max_f32 {R(mx)}, {R(mx)}, {R(s3)}',
               f'v_max_f32_dpp {R(mx)}, {R(mx)}, {R(mx)} quad_perm:[1,0,3,2] {DP}',
               f'v_max_f32_dpp {R(mx)}, {R(mx)}, {R(mx)} quad_perm:[2,3,0,1] {DP}',
               f'v_max_f32_dpp {R(mx)}, {R(mx)}, {R(mx)} row_half_mirror {DP}']
        ops += [f'v_sub_f32 {R(x)}, {R(x)}, {R(mx)}' for x in (s0, s1, s2, s3)]
        ops += [f'v_exp_f32 {R(x)}, {R(x)}' for x in (s0, s1, s2, s3)]
        ops += [f'v_cvt_pk_bf16_f32 {R(q)}, {R(s0)}, {R(s1)}', f'v_cvt_pk_bf16_f32 {R(q+1)}, {R(s2)}, {R(s3)}',
                f'v_min_u32 {R(q)}, -2, {R(q)}', f'v_min_u32 {R(q+1)}, -2, {R(q+1)}',
                f'buffer_store_dwordx2 {R(q,2)}, {R(vA5)}, {S(sWS,4)}, {S(sCur)} offen {ST}'] + TSI(6)
        k0 = k + XS0
        Lsx = a.newlabel('SXS'); Lsb = a.newlabel('SXB')
        gp.fixed(k0 - 1, ['s_waitcnt lgkmcnt(@)'] + chk)
        gp.fixed(k0, [f's_cbranch_vccnz {Lsx}', Lsb + ':'])
        k = gp.place(pre + ops[:2], k0, cap=XCAP)
        k = gp.place(ops[2:5], k + 1, cap=XCAP, step=1)
        k = gp.place(ops[5:], k, cap=XCAP)
        print('E store at', k)
        G2, wr = late_part(gp, accs, rest, ne, flags=False, flex=True)
        print('wave0 writes', wr)
        gp.m[k0 - 1].remove('s_waitcnt lgkmcnt(@)')
        gp.m[k0 - 1].insert(0, f's_waitcnt lgkmcnt({gp.nds_after(sxr[-1], k0 - 2)})')
        ops2 = [f'v_add_f32 {R(s0)}, {R(s0)}, {R(s2)}', f'v_add_f32 {R(lx)}, {R(s1)}, {R(s3)}', f'v_add_f32 {R(lx)}, {R(lx)}, {R(s0)}',
                f'v_add_f32_dpp {R(lx)}, {R(lx)}, {R(lx)} quad_perm:[1,0,3,2] {DP}',
                f'v_add_f32_dpp {R(lx)}, {R(lx)}, {R(lx)} quad_perm:[2,3,0,1] {DP}',
                f'v_add_f32_dpp {R(lx)}, {R(lx)}, {R(lx)} row_half_mirror {DP}']
        def slowx():
            a.label(Lsx); a.reset_hist()
            for x in sxr: a(x)
            spin_guard(a, EXIT)
            if INSTR: a(f's_add_u32 {S(sSpin)}, {S(sSpin)}, 1000')
            a('s_waitcnt lgkmcnt(0)')
            for x in chk: a(x)
            a(f's_cbranch_vccnz {Lsx}')
            a(f's_branch {Lsb}')
        post.append(slowx)
        assert SPEC[0] > k0
        for c in range(NSH):
            assert SPEC[c] >= wr[c] and (c > 0 or SPEC[c] >= wr[1]), (c, wr)
            k = gp.place([flr(c)] + trr(c), SPEC[c], cap=SCAP, step=1)
            kk = k + 1
            gp.fixed(kk, [f's_waitcnt lgkmcnt({gp.nds_after(flr(c), kk)})'])
            gp.place([flc(c, OK[c])], kk, cap=3)
        gp.place(ops2, 40, cap=2, step=1)
        G = G1 + ['s_waitcnt lgkmcnt(0)'] + G2
        for i in gp.weave(G, 48): a(i)
        TS(a, 4)
        a(f'v_min3_u32 {R(vOk)}, {R(OK[0])}, {R(OK[1])}, {R(OK[2])}')
        if NSH == 4: a(f'v_min_u32 {R(vOk)}, {R(vOk)}, {R(OK[3])}')
        a(f'v_cmp_lt_u32 vcc, {R(vOk)}, {R(vTag)}')
        Lsl = a.newlabel('SSL'); Lbk = a.newlabel('SBK')
        a(f's_cbranch_vccnz {Lsl}')
        TS(a, 7)
        a('s_waitcnt lgkmcnt(1)')
        a('s_barrier')
        a.label(Lbk)
        TS(a, 8)
        rr = [x for c in range(NSH, 7) for x in trr(c)]
        per = -(-len(rr) // NSH)
        for c in range(NSH):
            for x in rr[c*per:(c+1)*per]: a(x)
            a(smm(c))
        for c in range(NSH, 7):
            a(f's_waitcnt lgkmcnt({4*(6-c)})')
            a(smm(c))
        def slow0():
            a.label(Lsl); a.reset_hist()
            if INSTR: a(f's_add_u32 {S(sSpin)}, {S(sSpin)}, 100')
            a('s_barrier')
            for c in range(NSH):
                for i in trr(c): a(i)
            a('s_waitcnt lgkmcnt(0)')
            a(f's_branch {Lbk}')
        post.append(slow0)
        TS(a, 9)
        if INSTR: a(f's_mov_b32 s54, {S(sSpin)}')
        D0 = vAcc
        z = vT0; t = vT1; sx = vT2; e = vT3; nlo = vAcc + 6; nhi = vAcc + 7; en = vAcc + 8
        a(f'v_permlane32_swap_b32 {R(D0)}, {R(D0+2)}')
        a(f'v_permlane32_swap_b32 {R(D0+1)}, {R(D0+3)}')
        a(f'v_add_f32 {R(D0)}, {R(D0)}, {R(D0+2)}')
        a(f'v_add_f32 {R(D0+1)}, {R(D0+1)}, {R(D0+3)}')
        a(f'v_add_f32_dpp {R(z)}, {R(D0)}, {R(D0)} row_ror:8 row_mask:0xf bank_mask:0x3')
        a(f'v_add_f32_dpp {R(z)}, {R(D0+1)}, {R(D0+1)} row_ror:8 row_mask:0xf bank_mask:0xc')
        a(f'v_max_f32 {R(t)}, {R(z)}, {R(mx)}')
        a(f'v_max_f32_dpp {R(t)}, {R(t)}, {R(t)} quad_perm:[1,0,3,2] {DP}')
        a(f'v_max_f32_dpp {R(t)}, {R(t)}, {R(t)} quad_perm:[2,3,0,1] {DP}')
        a(f'v_max_f32_dpp {R(t)}, {R(t)}, {R(t)} row_half_mirror {DP}')
        a(f'v_sub_f32 {R(e)}, {R(z)}, {R(t)}')
        a(f'v_sub_f32 {R(sx)}, {R(mx)}, {R(t)}')
        a(f'v_exp_f32 {R(e)}, {R(e)}')
        a(f'v_exp_f32 {R(sx)}, {R(sx)}')
        a(f'v_mov_b32_dpp {R(en)}, {R(e)} quad_perm:[1,0,3,2] {DP}')
        a(f'v_cndmask_b32 {R(nlo)}, 0, {R(sx)}, s[38:39]')
        a(f'v_add_f32 {R(t)}, {R(e)}, {R(en)}')
        a(f'v_cndmask_b32 {R(nhi)}, 0, {R(sx)}, s[42:43]')
        a(f'v_cndmask_b32 {R(nlo)}, {R(nlo)}, {R(e)}, s[36:37]')
        a(f'v_add_f32_dpp {R(t)}, {R(t)}, {R(t)} quad_perm:[2,3,0,1] {DP}')
        a(f'v_cndmask_b32 {R(nhi)}, {R(nhi)}, {R(en)}, s[36:37]')
        a(f'v_add_f32_dpp {R(t)}, {R(t)}, {R(t)} row_half_mirror {DP}')
        a(f'v_fma_f32 {R(t)}, {R(lx)}, {R(sx)}, {R(t)}')
        a(f'v_rcp_f32 {R(t)}, {R(t)}')
        a(f'v_mul_f32 {R(nlo)}, {R(nlo)}, {R(t)}')
        a(f'v_mul_f32 {R(nhi)}, {R(nhi)}, {R(t)}')
        a(f'v_cvt_pk_bf16_f32 {R(nlo)}, {R(nlo)}, {R(nhi)}')
        a(f'v_min_u32 {R(nlo)}, -2, {R(nlo)}')
        a(f'buffer_store_dword {R(nlo)}, {R(vA4)}, {S(sWS,4)}, {S(sCur)} offen {ST}')
        TS(a, 13)
        if BE_EARLY: a('s_barrier')
    else:
        if w == 3:
            G0 = [sxm(3, i) for i in range(4)] + G1
            gp.place(sxout(0, 1024) + sxout(1, 1024) + [flagw(7)], 6)
            nw = gp.nds_after(f'ds_read_b128 {R(vMem+20,4)}', len(G0) - 1)
            nb = len(G0)
            G0 = G0 + [f's_waitcnt lgkmcnt({nw})']
        else:
            G0 = [sxm(w, 0), sxm(w, 1)] + G1 + ['s_waitcnt lgkmcnt(0)'] + [sxm(w, i) for i in (2, 3, 4)]
            nb = ne + 5
            k = gp.place(sxout(w - 1, 0) + [flagw(7)], nb + 2, cap=SXCAP)
            if w == 1: print('sx flag at', k)
        G2, wr = late_part(gp, accs, rest, nb)
        if w != 2: print('tile flags at', wr)
        late = []
        if not NOSTREAM:
            lds = [x for i in range(len(KSET[w])) for x in kld(w, i)]
            if A_PF == 3:
                dummy = {1: SXR + 4, 2: SXR, 3: 112}[w]
                t0, t1 = {1: (0, 5), 2: (5, 10), 3: (10, 16)}[w]
                for i in range(t0, min(t1, NTOUCH)):
                    lds += [f's_add_u32 {S(sT0)}, {S(sT2)}, {(i//8)*V_J + (i%8)*1024}',
                            f'buffer_load_dwordx4 {R(dummy,4)}, {R(vL16)}, {S(sWS,4)}, {S(sT0)} offen sc1']
            nin = (nb + len(G2) - 2 - KLD0 - (w - 1) * 2) // KLDE + 1
            cut = [i for i, x in enumerate(lds) if x.startswith('buffer_')]
            if A_PF == 3 and nin < len(cut):
                late = lds[cut[nin - 1] + 1:]; lds = lds[:cut[nin - 1] + 1]
            gp.place(lds, KLD0 + (w - 1) * 2, step=KLDE)
        for i in gp.weave(G0 + G2, nb + len(G2) - 1): a(i)
        a('s_waitcnt lgkmcnt(0)')
        TS(a, 7)
        a('s_barrier')
        for x in late:
            if x.startswith('buffer_'): a(f's_sleep {PACE}')
            a(x)
        if SPARE_PF and w == 3:
            Ls = a.newlabel('NPG')
            a(f's_cmp_lg_u32 {S(sRole)}, 0')
            a(f's_cbranch_scc1 {Ls}')
            a(f'v_mov_b32 {R(vT0)}, {S(sStep)}')
            a(f's_mov_b32 {S(sT0)}, {PROG}')
            a(f'buffer_store_dword {R(vT0)}, off, {S(sWS,4)}, {S(sT0)} {ST}')
            a.label(Ls)
        if A_PF == 1 and not NOSTREAM and w < 3:
            a(f's_min_u32 {S(sT0)}, {S(sRole)}, 13')
            a(f's_mul_i32 {S(sT0)}, {S(sT0)}, {2*V_J}')
            a(f's_add_u32 {S(sT1)}, {S(sStep)}, {PFD}')
            a(f's_mul_i32 {S(sT1)}, {S(sT1)}, {V_S}')
            a(f's_add_u32 {S(sT0)}, {S(sT0)}, {S(sT1)}')
            a(f's_add_u32 {S(sT0)}, {S(sT0)}, {VIMG + 8192 + (w-1)*V_J}')
            a(f'v_lshlrev_b32 {R(vT2)}, 7, {R(vLane)}')
            a(f'buffer_load_dword {R(vT3)}, {R(vT2)}, {S(sWS,4)}, {S(sT0)} offen sc1')
    step_end(a, L)
    if stamp: stamp(a, 1)
    a(f's_branch {EXIT}')
    for f in post: f()
BR = [0, 16, 24, 8, 32, 40, 48]
SPEC = [29, 34, 39, 44]; SCAP = 2; SXCAP = 4; SXAT = 21; FLEXCAP = 2

HL = [0, 2, 1, 3, 4, 6, 5, 7]
def cvdma():
    out = []
    for q in range(2):
        out += [f's_add_u32 {S(sT0)}, {S(sStr)}, {q*4096}', f's_add_u32 m0, {S(sVX)}, {q*4096}']
        out += [f'buffer_load_dwordx4 {R(vL16)}, {S(sWS,4)}, {S(sT0)} offen offset:{k*1024} sc1 lds' for k in range(4)]
    return out

def gen_C(a, EXIT, stamp=None):
    common_lane_setup(a)
    n, g = vT0, vT1
    a(f's_and_b32 {S(sT0)}, {S(sWave)}, 1')
    a(f's_lshl_b32 {S(sJ)}, {S(sRole)}, 1')
    a(f's_add_u32 {S(sJ)}, {S(sJ)}, {S(sT0)}')
    a(f'v_and_b32 {R(n)}, 15, {R(vLane)}')
    a(f'v_lshrrev_b32 {R(g)}, 4, {R(vLane)}')
    a(f'v_and_b32 {R(vT2)}, 1, {R(g)}')
    a(f'v_lshlrev_b32 {R(vT2)}, 2, {R(vT2)}')
    a(f'v_and_b32 {R(vT3)}, 2, {R(g)}')
    a(f'v_add_u32 {R(vT2)}, {R(vT2)}, {R(vT3)}')
    a(f'v_and_b32 {R(vT3)}, 1, {R(n)}')
    a(f'v_cmp_eq_u32 s[36:37], 0, {R(vT3)}')
    a(f'v_add_u32 {R(vT2)}, {R(vT2)}, {R(vT3)}')
    a(f'v_bfe_u32 {R(vT3)}, {R(n)}, 1, 1')
    a(f'v_lshl_add_u32 {R(vA0)}, {R(vT3)}, 3, {R(vT2)}')
    a(f'v_lshlrev_b32 {R(vA0)}, 4, {R(vA0)}')
    a(f'v_and_b32 {R(vT3)}, 12, {R(n)}')
    a(f'v_add_u32 {R(vA0)}, {R(vA0)}, {R(vT3)}')
    a(f's_lshl_b32 {S(sT0)}, {S(sJ)}, 8')
    a(f'v_add_u32 {R(vA0)}, {S(sT0)}, {R(vA0)}')
    a(f'v_mul_u32_u24 {R(vA1)}, 896, {R(vT2)}')
    a(f'v_and_b32 {R(vT3)}, 14, {R(n)}')
    a(f'v_lshl_add_u32 {R(vA1)}, {R(vT3)}, 1, {R(vA1)}')
    a(f's_lshl_b32 {S(sT0)}, {S(sJ)}, 5')
    a(f'v_add_u32 {R(vA1)}, {S(sT0)}, {R(vA1)}')
    a(f's_lshr_b32 {S(sT0)}, {S(sWave)}, 1')
    a(f's_lshl_b32 {S(sT0)}, {S(sT0)}, 12')
    a(f's_add_u32 {S(sT0)}, {S(sT0)}, {EB}')
    a(f'v_add_u32 {R(vA2)}, {S(sT0)}, {R(vL16)}')
    a(f'v_add_u32 {R(vA3)}, {PB}, {R(vL16)}')
    a(f's_mul_i32 {S(sT0)}, {S(sWave)}, 14336')
    a(f's_add_u32 {S(sT0)}, {S(sT0)}, {C_W}')
    a(f'v_add_u32 {R(vA5)}, {S(sT0)}, {R(vL16)}')
    a(f's_mov_b32 m0, {S(sT0)}')
    a(f's_and_b32 {S(sT0)}, {S(sWave)}, 1')
    a(f's_lshl_b32 {S(sT0)}, {S(sT0)}, 12')
    a(f's_add_u32 {S(sT0)}, {S(sT0)}, {C_X}')
    a(f'v_add_u32 {R(vA6)}, {S(sT0)}, {R(vL16)}')
    def toff(hl):
        a(f's_lshr_b32 {S(sT0)}, {S(sWave)}, 1')
        a(f's_lshl_b32 {S(sT0)}, {S(sT0)}, 3')
        a(f's_add_u32 {S(sT0)}, {S(sT0)}, {16 + hl}')
        a(f's_mul_i32 {S(sT0)}, {S(sT0)}, {MAT}')
        a(f's_mul_i32 {S(sT1)}, {S(sJ)}, 14336')
        a(f's_add_u32 {S(sT0)}, {S(sT0)}, {S(sT1)}')
    a(f's_mov_b32 {S(sSpin)}, 0')
    dispatch(a, [0, 2, 3], lambda hiw: gen_C_wave(a, hiw, EXIT, stamp), a.newlabel('CJ'))
    team_barrier(a, EXIT)
    Lm = a.newlabel('CM0')
    a(f's_cmp_ge_u32 {S(sWave)}, 2')
    a(f's_cbranch_scc1 {Lm}')
    a(f's_mov_b32 {S(sT0)}, {MBOX}')
    a(f'buffer_store_dword {R(vPoll)}, {R(vA1)}, {S(sWS,4)}, {S(sT0)} offen sc1')
    a.label(Lm)
    if WAITW: WAITW(a, 'C')
    toff(HL[0])
    for q in range(4):
        for k in range(4):
            if 4 * q + k < 14:
                a(f'buffer_load_dwordx4 {R(vL16)}, {S(sWS,4)}, {S(sT0)} offen offset:{k*1024} sc1 lds')
        a(f's_add_u32 {S(sT0)}, {S(sT0)}, 4096')
        a(f's_add_u32 m0, m0, 4096')
    load_weights(a, lambda t: toff(HL[t + 1]))
    early_rdy(a)
    a(f's_mul_i32 {S(sStr)}, {S(sJ)}, {V_J}')
    a(f's_lshr_b32 {S(sT0)}, {S(sWave)}, 1')
    a(f's_lshl_b32 {S(sT0)}, {S(sT0)}, 13')
    a(f's_add_u32 {S(sStr)}, {S(sStr)}, {S(sT0)}')
    a(f's_add_u32 {S(sStr)}, {S(sStr)}, {VIMG}')
    a(f's_lshl_b32 {S(sVX)}, {S(sWave)}, 13')
    a(f's_add_u32 {S(sVX)}, {S(sVX)}, {C_VX}')
    a(f's_mov_b32 {S(sSpin)}, 0')
    ensure_rdy(a, EXIT, 1, None)
    for i in cvdma(): a(i)
    a('s_waitcnt vmcnt(0)')
    dispatch(a, [0, 2, 3], lambda hiw: both_modes(a, lambda: gen_C_loop(a, hiw, EXIT, stamp)))

def gen_C_wave(a, hiw, EXIT, stamp):
    ACC = [vAcc, vAcc + 4, vAcc + 8, vT0]
    UB = vPoll
    EF = vBig; VF = [vBig + 16 + 4 * i for i in range(8)]
    WACC = [vBig + 48, vBig + 52, vMem, vMem + 4]
    WBK = vAcc
    if hiw == 0:
        a(f'buffer_load_dword {R(vT0)}, {R(vA1)}, s[32:35], 0 offen')
        a(f'v_and_b32 {R(vA1)}, 0x70, {R(vA0)}')
        a(f'v_bfe_u32 {R(vT1)}, {R(vLane)}, 3, 1')
        a(f'v_lshl_add_u32 {R(vA1)}, {R(vT1)}, 8, {R(vA1)}')
        a(f'v_bfe_u32 {R(vT1)}, {R(vLane)}, 1, 2')
        a(f'v_lshl_add_u32 {R(vA1)}, {R(vT1)}, 2, {R(vA1)}')
        a(f's_lshl_b32 {S(sT0)}, {S(sJ)}, 9')
        a(f'v_add_u32 {R(vA1)}, {S(sT0)}, {R(vA1)}')
        a('s_waitcnt vmcnt(0)')
        a(f'v_min_u32 {R(vT0)}, -2, {R(vT0)}')
        a(f's_mov_b32 {S(sT0)}, {TBOX}')
        a(f'buffer_store_dword {R(vT0)}, {R(vA0)}, {S(sWS,4)}, {S(sT0)} offen sc1')
        a(f'v_mov_b32 {R(vPoll)}, {R(vT0)}')
    else:
        a(f'v_mov_b32 {R(vA1)}, -1')
        for sl in range(1, 4):
            a(f's_mov_b32 {S(sT0)}, {TBOX + sl*SLOT}')
            a(f'buffer_store_dword {R(vA1)}, {R(vA0)}, {S(sWS,4)}, {S(sT0)} offen sc1')
        a(f'v_mov_b32 {R(vT0)}, 0')
        a(f's_mov_b32 {S(sT0)}, {PROG}')
        a(f'buffer_store_dword {R(vT0)}, {R(vT0)}, {S(sWS,4)}, {S(sT0)} offen sc1')
    if not hiw:
        a(f'v_bfe_u32 {R(vT0)}, {R(vLane)}, 1, 2')
        for q in range(4): a(f'v_cmp_eq_u32 s[{84+2*q}:{85+2*q}], {q}, {R(vT0)}')
        a(f'v_lshlrev_b32 v0, 3, {R(vLane)}')
        a(f'v_add_u32 v0, {PB + 2048}, v0')

def gen_C_loop(a, hiw, EXIT, stamp):
    ACC = [vAcc, vAcc + 4, vAcc + 8, vT0]
    UB = vPoll
    EF = vBig; VF = [vBig + 16 + 4 * i for i in range(8)]
    WACC = [vBig + 48, vBig + 52, vMem, vMem + 4]
    WBK = vAcc
    a(f's_mov_b32 {S(sStep)}, 0')
    if stamp: stamp(a, 0)
    L = a.newlabel('CLOOP')
    a.label(L); a.reset_hist()
    if not hiw: a('s_barrier')
    slots(a)
    a(f's_mov_b32 {S(sSpin)}, 0')
    a(f'v_add_u32 {R(vA7)}, {S(sVX)}, {R(vL16)}')
    a(f's_sub_u32 {S(sT0)}, {S(sVX)}, {C_VX}')
    a(f's_xor_b32 {S(sT0)}, {S(sT0)}, 32768')
    a(f's_add_u32 {S(sVX)}, {S(sT0)}, {C_VX}')
    if STRM_MASK is None and not VFIX: a(f's_add_u32 {S(sStr)}, {S(sStr)}, {V_S}')
    ensure_rdy(a, EXIT, 2)
    wpre = [f'ds_read_b128 {R(vBig+4*k,4)}, {R(vA5)} offset:{k*1024}' for k in range(14)]
    own = {0: [], 2: [0, 1, 2, 3], 3: [4, 5, 6]}[hiw]
    if hiw:
        a(f's_add_u32 {S(sT3)}, {S(sCur)}, {own[0]*1024}')
        a('s_waitcnt vmcnt(0)')
        for x in wpre: a(x)
        for z in zero4(ACC[0]) + zero4(ACC[1]) + zero4(ACC[2]): a(z)
        a(f'v_lshlrev_b32 {R(vT1)}, 7, {R(vLane)}')
        a(f's_add_u32 {S(sT1)}, {S(sStr)}, {(PFD-1)*V_S}')
        a('s_barrier')
        for k in range(C_PF):
            if k: a(f's_xor_b32 {S(sT1)}, {S(sT1)}, 8192')
            a(f'buffer_load_dword {R(vT2)}, {R(vT1)}, {S(sWS,4)}, {S(sT1)} offen sc1')
        if C_SLEEP: a(f's_sleep {C_SLEEP}')
        Lp = a.newlabel('CPM')
        TS(a, 0)
        n = len(own)
        def rnd():
            for k, c in enumerate(own):
                a(f'buffer_load_dwordx4 {R(vMem+4*c,4)}, {R(vL16)}, {S(sWS,4)}, {S(sT3)} offen offset:{k*1024} sc1')
        for d in range(CMDEPTH - 1):
            rnd()
            a(f's_sleep {CMSTAG}')
        a.label(Lp)
        rnd()
        spin_guard(a, EXIT)
        for k, c in enumerate(own):
            a(f's_waitcnt vmcnt({n*(CMDEPTH-1) + n - 1 - k})')
            for x in acc_max(vA4, range(vMem+4*c, vMem+4*c+4), k == 0): a(x)
        a(f'v_cmp_eq_u32 vcc, -1, {R(vA4)}')
        a(f's_cbranch_vccnz {Lp}')
        TS(a, 2)
        for c in own: a(f'ds_write_b128 {R(vL16)}, {R(vMem+4*c,4)} offset:{c*1024}')
    else:
        a(f's_waitcnt vmcnt({3 if INSTR else 2})')
        for x in wpre: a(x)
        for z in zero4(ACC[0]) + zero4(ACC[1]) + zero4(ACC[2]): a(z)
        TS(a, 2)
    for z in zero4(ACC[3]): a(z)
    a('s_waitcnt lgkmcnt(0)')
    a('s_barrier')
    TS(a, 3)
    cord = own + [c for c in range(7) if c not in own]
    for c in cord[len(own):]:
        a(f'ds_read_b128 {R(vMem+4*c,4)}, {R(vL16)} offset:{c*1024}')
    def comb(p):
        x, y = ACC[(2*p) % 4], ACC[(2*p+1) % 4]
        r0 = UB + 4 * (p // 2) + (p % 2)
        o = [f'v_permlane32_swap_b32 {R(x+r)}, {R(y+r)}' for r in range(4)]
        o += [f'v_add_f32 {R(x+r)}, {R(x+r)}, {R(y+r)}' for r in range(4)]
        o += [f'v_cvt_pk_bf16_f32 {R(r0)}, {R(x)}, {R(x+1)}', f'v_cvt_pk_bf16_f32 {R(r0+2)}, {R(x+2)}, {R(x+3)}']
        return o
    G = []
    for t in range(8):
        for c in cord:
            wr = WREG(t - 1, c) if t else vBig + 8 * c
            G.append(f'{SM} {R(ACC[t%4],4)}, {R(vMem+4*c,4)}, {R(wr,8)}, {R(vIdx)}')
    gp = Gaps()
    k = gp.place(comb(0), 16); gp.fixed(26, zero4(ACC[0])); gp.place(zero4(ACC[1]), 27)
    k = gp.place(comb(1), 30); gp.fixed(40, zero4(ACC[2])); gp.place(zero4(ACC[3]), 41)
    gp.place(comb(2), 44)
    def vread(i): return f'ds_read_b128 {R(VF[i],4)}, {R(vA7)} offset:{HL[i]*1024}'
    def eld(i): return f'buffer_load_dwordx4 {R(EF+4*i,4)}, {R(vA2)}, {S(sWS,4)}, {S(sCur)} offen offset:{i*1024} sc1'
    if not NOSTREAM: gp.place(cvdma(), 0, step=CVLDE)
    k = gp.place([vread(i) for i in range(8)], 7)
    sw = []
    for p in range(4):
        sw += [f'v_swap_b32 {R(VF[2*p]+1)}, {R(VF[2*p+1])}', f'v_swap_b32 {R(VF[2*p]+3)}, {R(VF[2*p+1]+2)}']
    k = gp.place([eld(i) for i in range(4)], EPOLL, step=ESTEP)
    k = gp.place([eld(i) for i in range(4)], EPOLL2, step=ESTEP); assert k <= 55
    gp.place(zero4(WACC[0]) + zero4(WACC[1]), 8)
    gp.fixed(22, ['s_waitcnt lgkmcnt(0)'])
    gp.place(sw, 22, cap=2, step=4)
    if hiw: gp.place([f'buffer_store_dword {R(vA1)}, {R(vA0)}, {S(sWS,4)}, {S(sPrv)} offen {ST}'], 1)
    for i in gp.weave(first_waits(G), 55): a(i)
    TS(a, 4)
    for z in zero4(WACC[2]) + zero4(WACC[3]): a(z)
    for x in comb(3): a(x)
    if hiw:
        a(f'ds_write_b128 {R(vA6)}, {R(UB,4)}')
        a(f'ds_write_b128 {R(vA6)}, {R(UB+4,4)} offset:1024')
    Le = a.newlabel('CPE'); Lg = a.newlabel('CEG')
    TS(a, 11)
    if INSTR: a(f's_mov_b32 {S(sSpin)}, 0')
    a('s_waitcnt vmcnt(4)')
    TS(a, 9)
    check_regs(a, EF, 16, vA4)
    a(f's_cbranch_vccz {Lg}')
    a.label(Le)
    for i in range(4): a(eld(i))
    spin_guard(a, EXIT)
    a('s_waitcnt vmcnt(4)')
    check_regs(a, EF, 16, vA4)
    a(f's_cbranch_vccnz {Le}')
    a.label(Lg)
    TS(a, 5)
    if INSTR: a(f's_mov_b32 s64, {S(sSpin)}')
    def wcv(p):
        r0 = WBK + 4 * (p // 2) + (p % 2)
        return [f'v_cvt_pk_bf16_f32 {R(r0)}, {R(WACC[p])}, {R(WACC[p]+1)}', f'v_cvt_pk_bf16_f32 {R(r0+2)}, {R(WACC[p]+2)}, {R(WACC[p]+3)}']
    for p in range(4):
        a(f'{SM} {R(WACC[p],4)}, {R(EF+4*p,4)}, {R(VF[2*p],8)}, {R(vIdx)}')
    for x in wcv(0) + wcv(1): a(x)
    if hiw: a(f'ds_write_b128 {R(vA6)}, {R(WBK,4)} offset:2048')
    for x in wcv(2) + wcv(3): a(x)
    if hiw:
        a(f'ds_write_b128 {R(vA6)}, {R(WBK+4,4)} offset:3072')
        a('s_waitcnt lgkmcnt(0)')
        a('s_barrier')
    else:
        UB2 = vBig; WB2 = vBig + 8; PF = vMem + 8; FR2 = vMem + 16; DG = vMem + 20; DD = vAcc + 8
        def pr():
            for k in range(2):
                a(f'buffer_load_dwordx4 {R(PF+4*k,4)}, {R(vA3)}, {S(sWS,4)}, {S(sCur)} offen offset:{k*1024} sc1')
            a(f'buffer_load_dwordx2 {R(FR2,2)}, v0, {S(sWS,4)}, {S(sCur)} offen sc1')
        for z in zero4(DD): a(z)
        pr()
        a('s_waitcnt vmcnt(3)')
        a('s_barrier')
        for k in range(4):
            a(f'ds_read_b128 {R(UB2+4*k,4)}, {R(vA6)} offset:{k*1024}')
        TS(a, 6)
        Lq = a.newlabel('CPP')
        for d in range(CDEPTH - 2):
            pr()
            if CSTAG: a(f's_sleep {CSTAG}')
        a('s_waitcnt lgkmcnt(0)')
        a.label(Lq)
        pr()
        spin_guard(a, EXIT)
        for k in range(3):
            a(f's_waitcnt vmcnt({3*(CDEPTH-1) + 2 - k})')
            for x in acc_max(vT0, range(PF+4*k, PF+4*k+(4 if k < 2 else 2)), k == 0): a(x)
        a(f'v_cmp_eq_u32 vcc, -1, {R(vT0)}')
        a(f's_cbranch_vccnz {Lq}')
        TS(a, 7)
        if INSTR: a(f's_mov_b32 s46, {S(sSpin)}')
        def dg(z): return [f'v_cndmask_b32 {R(DG+4*z+q)}, 0, {R(FR2+z)}, s[{84+2*q}:{85+2*q}]' for q in range(4)]
        a(f'{SM} {R(DD,4)}, {R(PF,4)}, {R(UB,8)}, {R(vIdx)}')
        for x in dg(0): a(x)
        a(f'{SM} {R(DD,4)}, {R(PF+4,4)}, {R(UB2,8)}, {R(vIdx)}')
        for x in dg(1)[:2]: a(x)
        a(f'{SM} {R(DD,4)}, {R(DG,4)}, {R(WBK,8)}, {R(vIdx)}')
        for x in dg(1)[2:]: a(x)
        a(f'{SM} {R(DD,4)}, {R(DG+4,4)}, {R(WB2,8)}, {R(vIdx)}')
        a(f'v_permlane32_swap_b32 {R(DD)}, {R(DD+2)}')
        a(f'v_permlane32_swap_b32 {R(DD+1)}, {R(DD+3)}')
        a(f'v_add_f32 {R(DD)}, {R(DD)}, {R(DD+2)}')
        a(f'v_add_f32 {R(DD+1)}, {R(DD+1)}, {R(DD+3)}')
        a(f'v_mov_b32_dpp {R(DD+2)}, {R(DD)} quad_perm:[1,0,3,2] {DP}')
        a(f'v_mov_b32_dpp {R(DD+3)}, {R(DD+1)} quad_perm:[1,0,3,2] {DP}')
        a(f'v_cvt_pk_bf16_f32 {R(DD)}, {R(DD)}, {R(DD+2)}')
        a(f'v_cvt_pk_bf16_f32 {R(DD+1)}, {R(DD+3)}, {R(DD+1)}')
        a(f'v_cndmask_b32 {R(DD)}, {R(DD+1)}, {R(DD)}, s[36:37]')
        a(f'v_min_u32 {R(DD)}, -2, {R(DD)}')
        TS(a, 8)
        a(f'buffer_store_dword {R(DD)}, {R(vA0)}, {S(sWS,4)}, {S(sNxt)} offen {ST}')
        a(f'buffer_store_dword {R(DD)}, {R(vA1)}, {S(sWS,4)}, {S(sMc)} offen {ST}')
    step_end(a, L)
    if stamp: stamp(a, 1)
    a(f's_branch {EXIT}')

def gen_PF(a, EXIT):
    a(f'v_and_b32 {R(vLane)}, 63, v0')
    a(f'v_lshlrev_b32 {R(vL16)}, 7, {R(vLane)}')
    a(f's_mov_b32 {S(sSpin)}, 0')
    team_barrier(a, EXIT, arrive=False)
    a(f's_lshl_b32 {S(sJ)}, {S(sRole)}, 2')
    a(f's_add_u32 {S(sJ)}, {S(sJ)}, {S(sWave)}')
    a(f's_mov_b32 {S(sStep)}, 1')
    a(f'v_mov_b32 {R(vT0)}, 0')
    a(f's_mov_b32 {S(sT3)}, {PROG}')
    L = a.newlabel('PFL'); Lw = a.newlabel('PFW'); Lgo = a.newlabel('PFG')
    a.label(L)
    a(f's_mov_b32 {S(sSpin)}, 0')
    a.label(Lw)
    a(f'buffer_load_dword {R(vT1)}, {R(vT0)}, {S(sWS,4)}, {S(sT3)} offen sc1')
    spin_guard(a, EXIT)
    a('s_waitcnt vmcnt(0)')
    a(f'v_readfirstlane_b32 {S(sT0)}, {R(vT1)}')
    a(f's_add_u32 {S(sT0)}, {S(sT0)}, {PFD}')
    a(f's_cmp_le_u32 {S(sStep)}, {S(sT0)}')
    a(f's_cbranch_scc1 {Lgo}')
    a('s_sleep 4')
    a(f's_branch {Lw}')
    a.label(Lgo)
    a(f's_mul_i32 {S(sT0)}, {S(sStep)}, {V_S}')
    a(f's_mul_i32 {S(sT1)}, {S(sJ)}, {V_J}')
    a(f's_add_u32 {S(sT0)}, {S(sT0)}, {S(sT1)}')
    a(f's_add_u32 {S(sT0)}, {S(sT0)}, {VIMG}')
    for i in range(4):
        if i == 3:
            Ls = a.newlabel('PFS')
            a(f's_cmp_ge_u32 {S(sJ)}, 4')
            a(f's_cbranch_scc1 {Ls}')
        a(f'buffer_load_dword {R(vT2)}, {R(vL16)}, {S(sWS,4)}, {S(sT0)} offen sc1')
        a(f's_add_u32 {S(sT0)}, {S(sT0)}, {8*V_J}')
    a.label(Ls)
    a(f's_add_u32 {S(sStep)}, {S(sStep)}, 1')
    a(f's_cmp_lt_u32 {S(sStep)}, 64')
    a(f's_cbranch_scc1 {L}')
    a(f's_branch {EXIT}')


def gen_spare(a, EXIT):
    a(f'v_and_b32 {R(vLane)}, 63, v0')
    a(f's_mov_b32 {S(sSpin)}, 0')
    Lpf = a.newlabel('SPF'); Lex = a.newlabel('SEX'); Lgk = a.newlabel('SGK'); Ltb = a.newlabel('STB')
    team_barrier(a, EXIT)
    a(f's_lshl_b32 {S(sJ)}, {S(sRole)}, 2')
    a(f's_add_u32 {S(sJ)}, {S(sJ)}, {S(sWave)}')
    a(f's_cmp_eq_u32 {S(sJ)}, 1')
    a(f's_cbranch_scc1 {Lgk}')
    a(f's_cmp_eq_u32 {S(sJ)}, 5')
    a(f's_cbranch_scc1 {Lex}')
    a(f's_cmp_gt_u32 {S(sJ)}, 5')
    a(f's_cselect_b32 {S(sT1)}, 2, 1')
    a(f's_cmp_eq_u32 {S(sJ)}, 0')
    a(f's_cselect_b32 {S(sT1)}, 0, {S(sT1)}')
    a(f's_sub_u32 {S(sJ)}, {S(sJ)}, {S(sT1)}')
    a(f'v_lshlrev_b32 {R(vL16)}, 7, {R(vLane)}')
    a(f's_mov_b32 {S(sStep)}, 1')
    a(f's_mov_b32 {S(sT3)}, {PROG}')
    L = a.newlabel('PFL'); Lw = a.newlabel('PFW'); Lgo = a.newlabel('PFG')
    a.label(L)
    a(f's_mov_b32 {S(sSpin)}, 0')
    ensure_rdy(a, EXIT, 1)
    a.label(Lw)
    a(f'buffer_load_dword {R(vT1)}, off, {S(sWS,4)}, {S(sT3)} sc1')
    spin_guard(a, EXIT)
    a('s_waitcnt vmcnt(0)')
    a(f'v_readfirstlane_b32 {S(sT0)}, {R(vT1)}')
    a(f's_add_u32 {S(sT0)}, {S(sT0)}, {PFD}')
    a(f's_cmp_le_u32 {S(sStep)}, {S(sT0)}')
    a(f's_cbranch_scc1 {Lgo}')
    a('s_sleep 4')
    a(f's_branch {Lw}')
    a.label(Lgo)
    a(f's_mul_i32 {S(sT0)}, {S(sStep)}, {V_S}')
    a(f's_mul_i32 {S(sT1)}, {S(sJ)}, {V_J}')
    a(f's_add_u32 {S(sT0)}, {S(sT0)}, {S(sT1)}')
    a(f's_add_u32 {S(sT0)}, {S(sT0)}, {VIMG}')
    for i in range(5):
        if i == 4:
            Ls = a.newlabel('PFS')
            a(f's_cmp_ge_u32 {S(sJ)}, 4')
            a(f's_cbranch_scc1 {Ls}')
        a(f'buffer_load_dword {R(vT2)}, {R(vL16)}, {S(sWS,4)}, {S(sT0)} offen sc1')
        a(f's_add_u32 {S(sT0)}, {S(sT0)}, {6*V_J}')
    a.label(Ls)
    a(f's_add_u32 {S(sStep)}, {S(sStep)}, 1')
    a(f's_cmp_lt_u32 {S(sStep)}, 64')
    a(f's_cbranch_scc1 {L}')
    a(f's_branch {EXIT}')
    a.label(Lgk); a.reset_hist()
    a(f'v_lshlrev_b32 {R(vL16)}, 3, {R(vLane)}')
    a(f's_mov_b32 {S(sStep)}, 0')
    a(f's_mov_b32 {S(sT3)}, {F_KV}')
    a(f's_mov_b32 {S(sT2)}, {F_RDY}')
    for ng in (7, 1):
        Lg = a.newlabel('GKL')
        a.label(Lg)
        for i in range(ng):
            a(f'buffer_load_dwordx2 {R(vMem+2*i,2)}, {R(vL16)}, {S(sWS,4)}, {S(sT3)} offen offset:{i*512} sc1')
        spin_guard(a, EXIT)
        a('s_sleep 2')
        a('s_waitcnt vmcnt(0)')
        a(f'v_min_u32 {R(vT0)}, {R(vMem)}, {R(vMem+1)}')
        for i in range(1, ng):
            a(f'v_min3_u32 {R(vT0)}, {R(vT0)}, {R(vMem+2*i)}, {R(vMem+2*i+1)}')
        a(f'v_cmp_eq_u32 vcc, 0, {R(vT0)}')
        a(f's_cbranch_vccnz {Lg}')
        a(f's_add_u32 {S(sStep)}, {S(sStep)}, {ng}')
        a(f'v_mov_b32 {R(vT2)}, {S(sStep)}')
        a('s_mov_b64 exec, 1')
        a(f'buffer_store_dword {R(vT2)}, off, {S(sWS,4)}, {S(sT2)} sc1')
        a('s_mov_b64 exec, -1')
        if ng == 7:
            a(f's_add_u32 {S(sT3)}, {S(sT3)}, {7*512}')
            a(f's_cmp_lt_u32 {S(sStep)}, 63')
            a(f's_cbranch_scc1 {Lg}')
    a(f's_branch {EXIT}')
    a.label(Lex); a.reset_hist()
    a(f'v_lshrrev_b32 {R(vT0)}, 3, {R(vLane)}')
    a(f'v_lshlrev_b32 {R(vT0)}, 8, {R(vT0)}')
    a(f'v_and_b32 {R(vT1)}, 7, {R(vLane)}')
    a(f'v_lshl_add_u32 {R(vA0)}, {R(vT1)}, 4, {R(vT0)}')
    for i in range(1, 4): a(f'v_add_u32 {R(vA0+i)}, {4096*i}, {R(vA0)}')
    a(f's_mov_b32 {S(sStep)}, 0')
    a(f's_mov_b32 {S(sT3)}, {MBOX}')
    Le = a.newlabel('EXL')
    a.label(Le)
    for c in range(7):
        a(f'buffer_load_dwordx4 {R(vMem+4*c,4)}, {R(vA0 + c//2)}, {S(sWS,4)}, {S(sT3)} offen offset:{(c%2)*2048} sc1')
    spin_guard(a, EXIT)
    a('s_waitcnt vmcnt(0)')
    check_regs(a, vMem, 28, vT0)
    a(f's_cbranch_vccnz {Le}')
    a(f's_add_u32 {S(sT2)}, {S(sT3)}, {MEMX - MBOX}')
    for c in range(7):
        a(f'buffer_store_dwordx4 {R(vMem+4*c,4)}, {R(vA0 + c//2)}, {S(sWS,4)}, {S(sT2)} offen offset:{(c%2)*2048} sc1')
    a(f's_mov_b32 {S(sSpin)}, 0')
    a(f's_bitcmp1_b32 {S(sStep)}, 0')
    a(f's_cselect_b32 {S(sT0)}, {14336 - 256}, 0')
    a(f's_add_u32 {S(sT3)}, {S(sT3)}, {S(sT0)}')
    a(f's_add_u32 {S(sT3)}, {S(sT3)}, 128')
    a(f's_add_u32 {S(sStep)}, {S(sStep)}, 1')
    a(f's_cmp_lt_u32 {S(sStep)}, 64')
    a(f's_cbranch_scc1 {Le}')
    a(f's_branch {EXIT}')


def gen_OBS(a, EXIT):
    a(f'v_and_b32 {R(vLane)}, 63, v0')
    a(f'v_lshlrev_b32 {R(vL16)}, 4, {R(vLane)}')
    a(f's_mov_b32 {S(sSpin)}, 0')
    team_barrier(a, EXIT, arrive=False)
    a(f's_cmp_eq_u32 {S(sWave)}, 3')
    a(f's_cbranch_scc1 {EXIT}')
    a(f'v_and_b32 {R(vT0)}, 15, {R(vLane)}')
    a(f'v_lshlrev_b32 {R(vA0)}, 7, {R(vT0)}')
    a(f'v_add_u32 {R(vA0)}, {PB}, {R(vA0)}')
    a(f'v_and_b32 {R(vT0)}, 7, {R(vLane)}')
    a(f'v_lshlrev_b32 {R(vA1)}, 10, {R(vT0)}')
    a(f'v_bfe_u32 {R(vT0)}, {R(vLane)}, 3, 1')
    a(f'v_lshl_add_u32 {R(vA1)}, {R(vT0)}, 7, {R(vA1)}')
    a(f'v_add_u32 {R(vA1)}, {EB}, {R(vA1)}')
    a(f'v_min_u32 {R(vA2)}, 27, {R(vLane)}')
    a(f'v_lshlrev_b32 {R(vA2)}, 8, {R(vA2)}')
    a(f's_cmp_eq_u32 {S(sWave)}, 1')
    a('s_cselect_b64 vcc, -1, 0')
    a(f'v_cndmask_b32 {R(vA0)}, {R(vA0)}, {R(vA1)}, vcc')
    a(f's_cmp_eq_u32 {S(sWave)}, 2')
    a('s_cselect_b64 vcc, -1, 0')
    a(f'v_cndmask_b32 {R(vA0)}, {R(vA0)}, {R(vA2)}, vcc')
    a('s_mov_b64 exec, 0xfffffff')
    a(f's_mov_b32 {S(sStep)}, 0')
    L = a.newlabel('OBL'); Lp = a.newlabel('OBP')
    a.label(L)
    slots(a)
    a(f's_cmp_eq_u32 {S(sWave)}, 2')
    a(f's_cselect_b32 {S(sCur)}, {S(sNxt)}, {S(sCur)}')
    a(f's_mov_b32 {S(sSpin)}, 0')
    a('s_waitcnt vmcnt(0)')
    for d in range(2):
        a(f'buffer_load_dword {R(vT2)}, {R(vA0)}, {S(sWS,4)}, {S(sCur)} offen sc1')
        a('s_sleep 1')
    a.label(Lp)
    a(f'buffer_load_dword {R(vT2)}, {R(vA0)}, {S(sWS,4)}, {S(sCur)} offen sc1')
    spin_guard(a, EXIT)
    a('s_waitcnt vmcnt(2)')
    a(f'v_cmp_eq_u32 vcc, -1, {R(vT2)}')
    a(f's_cbranch_vccnz {Lp}')
    a('s_mov_b64 exec, -1')
    step_end(a, L + 'X')
    a(f's_branch {EXIT}')
    a.label(L + 'X')
    a('s_mov_b64 exec, 0xfffffff')
    a(f's_branch {L}')
```

```python
from asmlib import *
from layout import *
from prep import f2u, LOG2E, srd
import phase0
MF = 'v_mfma_f32_16x16x32_bf16'
MF16 = 'v_mfma_f32_16x16x16_bf16'
WST = ''
WLD = ''
sWS = 8; sRole = 12; sWave = 13
def WREG(t, c):
    i = t * 7 + c
    return 120 + 8 * i if i < 17 else 256 + 8 * (i - 17)
def W(t, ks): return WREG(t, ks // 2) + 4 * (ks % 2)
X_RING = 0; S_RED = 4 * 28672
def acc(qt, t): return 64 + 4 * (7 * qt + t)

WINSTR = False
def WT(a, k):
    if WINSTR: a(f's_memtime s[{60+2*k}:{61+2*k}]')
def wdump(a, cond_reg, val):
    if not WINSTR: return
    L = a.newlabel('WD')
    a(f's_cmp_lg_u32 {cond_reg}, {val}')
    a(f's_cbranch_scc1 {L}')
    a('s_waitcnt lgkmcnt(0)')
    a('s_lshl_b32 s82, s83, 8')
    a('s_lshl_b32 s81, s13, 6')
    a('s_add_u32 s82, s82, s81')
    a(f's_add_u32 s82, s82, {DBG + 131072}')
    for k in range(10):
        a(f'v_mov_b32 v15, s{60+2*k}')
        a(f'buffer_store_dword v15, off, s[8:11], s82 offset:{4*k}')
    a('s_waitcnt vmcnt(0)')
    a.label(L)

class Hooks:
    def wait(self, a, what): pass
    def signal(self, a, what): pass

def lane_setup(a):
    a('v_and_b32 v1, 63, v0')
    a('v_lshlrev_b32 v2, 4, v1')
    a('v_and_b32 v3, 15, v1')
    a('v_lshrrev_b32 v4, 4, v1')

def kv_setup(a):
    lane_setup(a)
    a('s_mul_i32 s14, s12, 9363')
    a('s_lshr_b32 s14, s14, 16')
    a('s_mul_i32 s15, s14, 7')
    a('s_sub_u32 s15, s12, s15')
    a('s_and_b32 s16, s14, 15')

def kv_weights(a):
    a('s_and_b32 s17, s13, 1')
    a('s_mul_i32 s18, s13, 7')
    a('s_add_u32 s19, s18, s17')
    a('s_xor_b32 s20, s17, 1')
    a('s_mul_i32 s20, s20, 6')
    a('s_add_u32 s20, s20, s18')
    a(f's_mul_i32 s21, s14, {MAT}')
    a(f's_mov_b32 s29, {X_RING}')
    xdma(a, 's15', 's29')
    a('s_mul_i32 s22, s19, 14336')
    a('s_add_u32 s22, s22, s21')
    a('s_mul_i32 s23, s20, 14336')
    a('s_add_u32 s23, s23, s21')
    for kq in range(0, 14, 2):
        for t in range(7):
            a(f's_add_u32 s24, {"s22" if t < 6 else "s23"}, {(t%6)*14336*(t<6) + kq*1024}')
            for k in range(2):
                a(f'buffer_load_dwordx4 {R(W(t,kq+k),4)}, v2, s[8:11], s24 offen offset:{k*1024} {WLD}')
    a('s_lshr_b32 s23, s19, 1')
    a('s_lshl_b32 s23, s23, 10')
    a('s_lshr_b32 s24, s20, 1')
    a('s_lshl_b32 s24, s24, 10')
    a('s_lshl_b32 s25, s17, 3')
    a('s_add_u32 s24, s24, s25')

def xdma(a, seg_s, slot_s):
    a(f's_mul_i32 s26, {seg_s}, 28672')
    a('s_mul_i32 s27, s13, 7168')
    a('s_add_u32 s26, s26, s27')
    a(f's_add_u32 s26, s26, {XIMG}')
    a(f's_add_u32 m0, {slot_s}, s27')
    for k in range(7):
        if k == 4:
            a('s_add_u32 s26, s26, 4096')
            a('s_add_u32 m0, m0, 4096')
        a(f'buffer_load_dwordx4 v2, s[8:11], s26 offen offset:{(k%4)*1024} {WLD} lds')

KFR = 36
def k_cvt(a, kt, accq):
    for p in range(3):
        for b in range(2):
            for q in range(2):
                a(f'v_cvt_pk_bf16_f32 {R(KFR+14*kt+4*p+2*b+q)}, {R(acc(accq,2*p+b)+2*q)}, {R(acc(accq,2*p+b)+2*q+1)}')
    for q in range(2):
        a(f'v_cvt_pk_bf16_f32 {R(KFR+14*kt+12+q)}, {R(acc(accq,6)+2*q)}, {R(acc(accq,6)+2*q+1)}')

def xq_reads(a, dst, off):
    for p in range(3):
        a(f'ds_read_b128 {R(dst+4*p,4)}, v5 offset:{off + p*1024}')
    a(f'ds_read_b64 {R(dst+12,2)}, v6 offset:{off}')

def s_tiles(a, lst):
    for p in range(3):
        for d, kf, xq in lst:
            a(f'{MF} {R(d,4)}, {R(kf+4*p,4)}, {R(xq+4*p,4)}, {"0" if p == 0 else R(d,4)}')
    for d, kf, xq in lst:
        a(f'{MF16} {R(d,4)}, {R(kf+12,2)}, {R(xq+12,2)}, {R(d,4)}')

def gen_kv(a, hooks, isK):
    a('s_mov_b32 s28, s15')
    a('s_mov_b32 s34, 0')
    a('s_waitcnt vmcnt(63)')
    L = a.newlabel('KVL'); Ln = a.newlabel('KVN'); Ld = a.newlabel('KVD')
    a.label(L); a.reset_hist()
    a('s_barrier')
    a('s_add_u32 s30, s28, 7')
    a('s_sub_u32 s31, 28672, s29')
    a('s_cmp_ge_u32 s30, 64')
    a(f's_cbranch_scc1 {Ln}')
    xdma(a, 's30', 's31')
    a.label(Ln)
    a('v_add_u32 v7, s29, v2')
    def xr(ks):
        b = 16 + 8 * (ks % 2)
        a(f'ds_read_b128 {R(b,4)}, v7 offset:{ks*1024}')
        a(f'ds_read_b128 {R(b+4,4)}, v7 offset:{14336 + ks*1024}')
    xr(0); xr(1)
    for ks in range(14):
        vm = f'vmcnt({min(63, 7 * (12 - ks) + 7)}) ' if ks % 2 == 0 else ''
        a(f's_waitcnt {vm}lgkmcnt({2 if ks < 13 else 0})')
        b = 16 + 8 * (ks % 2)
        for qt in range(2):
            for t in range(7):
                c = '0' if ks == 0 else R(acc(qt, t), 4)
                x = R(b + 4 * qt, 4); w = R(W(t, ks), 4)
                a(f'{MF} {R(acc(qt,t),4)}, {w if isK else x}, {x if isK else w}, {c}')
        if ks + 2 < 14: xr(ks + 2)
        if ks == 6: hooks.signal(a, ('kvmid',))
    if isK:
        a('s_lshl_b32 s26, s28, 4')
        a('s_add_u32 s26, s26, s16')
        a('s_mul_i32 s27, s26, 3072')
        a(f's_add_u32 s27, s27, {SXX}')
        a(f's_mul_i32 s26, s16, {K_H}')
        a(f's_mul_i32 s32, s28, {K_S}')
        a('s_add_u32 s26, s26, s32')
        a(f's_add_u32 s26, s26, {KIMG}')
        a('v_add_u32 v5, s23, v7')
        a('v_add_u32 v6, s24, v7')
        for kt in range(2):
            k_cvt(a, kt, kt)
            xq_reads(a, 64 + 28 * kt, kt * 14336)
            a(f's_add_u32 s32, s26, s23')
            a(f's_add_u32 s33, s26, s24')
            for p in range(3):
                a(f'buffer_store_dwordx4 {R(KFR+14*kt+4*p,4)}, v2, s[8:11], s32 offen offset:{p*1024} {WST}')
            a(f'buffer_store_dwordx2 {R(KFR+14*kt+12,2)}, v2, s[8:11], s33 offen {WST}')
            if kt == 0: a('s_add_u32 s26, s26, 14336')
        a('s_waitcnt lgkmcnt(0)')
        SD = 16
        s_tiles(a, [(SD, KFR, 64), (SD + 4, KFR, 92), (SD + 8, KFR + 14, 92)])
        a('s_mul_i32 s32, s13, 3072')
        a(f's_add_u32 s32, s32, {S_RED}')
        a('v_add_u32 v5, s32, v2')
        for i in range(3):
            a(f'ds_write_b128 v5, {R(SD+4*i,4)} offset:{i*1024}')
        a('s_waitcnt lgkmcnt(0)')
        a('s_barrier')
        Ls = a.newlabel('KVS')
        a('s_min_u32 s32, s13, 2')
        a('s_lshl_b32 s32, s32, 10')
        a('v_add_u32 v5, s32, v2')
        a(f'v_add_u32 v6, {S_RED}, v5')
        for i in range(4):
            a(f'ds_read_b128 {R(64+4*i,4)}, v6 offset:{i*3072}')
        a('s_waitcnt lgkmcnt(0)')
        for r in range(4):
            a(f'v_add_f32 {R(64+r)}, {R(64+r)}, {R(68+r)}')
            a(f'v_add_f32 {R(72+r)}, {R(72+r)}, {R(76+r)}')
        for r in range(4):
            a(f'v_add_f32 {R(32+r)}, {R(64+r)}, {R(72+r)}')
        a(f'buffer_store_dwordx4 v[32:35], v5, s[8:11], s27 offen {WST}')
        nst = 9
    else:
        a('s_lshl_b32 s32, s16, 10')
        a(f's_mul_i32 s26, s28, {V_S}')
        a('s_add_u32 s32, s32, s26')
        a(f's_add_u32 s32, s32, {VIMG}')
        a(f's_mul_i32 s26, s19, {V_J}')
        a(f's_mul_i32 s27, s20, {V_J}')
        a('s_add_u32 s26, s26, s32')
        a('s_add_u32 s27, s27, s32')
        for t in range(7):
            o = KFR + 4 * t
            for r in range(4):
                a(f'v_cvt_pk_bf16_f32 {R(o+r)}, {R(acc(0,t)+r)}, {R(acc(1,t)+r)}')
            a(f'buffer_store_dwordx4 {R(o,4)}, v2, s[8:11], {"s26" if t < 6 else "s27"} offen {WST}')
            if t < 5: a(f's_add_u32 s26, s26, {V_J}')
        nst = 7
    hooks.signal(a, ('kv', nst))
    Lf = a.newlabel('KVF')
    a('s_cmp_lg_u32 s28, s15')
    a(f's_cbranch_scc1 {Lf}')
    hooks.signal(a, ('kvmid',))
    a.label(Lf)
    a(f's_waitcnt vmcnt({nst})')
    a('s_mov_b32 s28, s30')
    a('s_mov_b32 s29, s31')
    a('s_cmp_lt_u32 s28, 64')
    a(f's_cbranch_scc1 {L}')
    hooks.signal(a, ('kvmid',))

MFR = [16 + 4 * i for i in range(12)] + [92, 96]
def gen_mirror(a, hooks, isK, z0, zstep, src):
    for i in range(1, 4): a(f'v_add_u32 v{11+i}, {4096*i}, v2')
    a(f's_mov_b32 s28, {z0}')
    if isK:
        a('v_add_u32 v5, s23, v2')
        a('v_add_u32 v6, s24, v2')
        a('v_and_b32 v9, 1, v4')
        a('v_lshlrev_b32 v9, 4, v9')
        a('v_lshl_add_u32 v9, v3, 5, v9')
        a('v_lshrrev_b32 v10, 1, v4')
        a('s_lshr_b32 s26, s13, 1')
        a('v_cmp_eq_u32 vcc, s26, v10')
        a('v_mov_b32 v10, 0x80000000')
        a('v_cndmask_b32 v9, v10, v9, vcc')
    else:
        a('v_lshrrev_b32 v9, 1, v4')
        a(f'v_mul_u32_u24 v9, {16*7168}, v9')
        a('v_and_b32 v10, 31, v1')
        a('v_lshl_add_u32 v9, v10, 4, v9')
        a('v_cmp_gt_u32 vcc, 16, v10')
        a('v_mov_b32 v10, 0x80000000')
        a('v_cndmask_b32 v10, v10, v9, vcc')
    def xpair(zs):
        a(f's_lshl_b32 s30, {zs}, 1')
        a(f's_and_b32 s31, {zs}, 1')
        a('s_mul_i32 s31, s31, 57344')
        xdma(a, 's30', 's31')
        a('s_add_u32 s30, s30, 1')
        a('s_add_u32 s31, s31, 28672')
        xdma(a, 's30', 's31')
    if isK:
        a('s_barrier')
        xpair('s28')
    a('s_mov_b32 s34, 0')
    L = a.newlabel('MIR')
    a.label(L); a.reset_hist()
    WT(a, 0)
    a('s_mul_i32 s26, s28, 14336')
    a(f's_add_u32 s26, s26, {src}')
    Lr = a.newlabel('MIRP'); Lq = a.newlabel('MIRQ')
    a('s_mov_b32 s35, 0')
    a(f's_branch {Lr}')
    a.label(Lq)
    hooks.wait(a, ('mem0', MFR[13]))
    a.label(Lr)
    for ks in range(14):
        a(f'buffer_load_dwordx4 {R(MFR[ks],4)}, {"v2" if ks < 4 else "v%d" % (11 + ks//4)}, s[8:11], s26 offen offset:{(ks%4)*1024} {WLD}')
    WT(a, 1)
    hooks.signal(a, ('pend', 14))
    WT(a, 2)
    hooks.wait(a, ('mem1', Lq))
    WT(a, 3)
    if isK:
        a('s_and_b32 s31, s28, 1')
        a('s_mul_i32 s31, s31, 57344')
        a('s_add_u32 s30, s31, s23')
        a('v_add_u32 v5, s30, v2')
        a('s_add_u32 s30, s31, s24')
        a('v_add_u32 v6, s30, v2')
    fill = []
    if isK:
        a(f's_add_u32 s29, s28, {zstep}')
        a('s_min_u32 s30, s29, 31')
        a('s_lshl_b32 s30, s30, 1')
        a('s_and_b32 s31, s29, 1')
        a('s_mul_i32 s31, s31, 57344')
        rec = fill.append
        xdma(rec, 's30', 's31')
        rec('s_add_u32 s30, s30, 1'); rec('s_add_u32 s31, s31, 28672')
        xdma(rec, 's30', 's31')
    for ks in range(14):
        for t in range(7):
            c = '0' if ks == 0 else R(acc(0, t), 4)
            x = R(MFR[ks], 4); w = R(W(t, ks), 4)
            a(f'{MF} {R(acc(0,t),4)}, {w if isK else x}, {x if isK else w}, {c}')
            if t == 0:
                while fill:
                    i = fill.pop(0); a(i)
                    if i.startswith('buffer_'): break
    if isK:
        WT(a, 4)
        a('s_barrier')
        WT(a, 5)
        k_cvt(a, 0, 0)
        XQ = [64, 78, 92, 106]
        for i in range(4): xq_reads(a, XQ[i], i * 14336)
        a('s_waitcnt lgkmcnt(0)')
        SD = 16
        WT(a, 6)
        s_tiles(a, [(SD + 4 * i, KFR, XQ[i]) for i in range(4)])
        a('s_lshl_b32 s32, s13, 12')
        a(f's_add_u32 s32, s32, {S_RED}')
        a('v_add_u32 v7, s32, v2')
        for i in range(4):
            a(f'ds_write_b128 v7, {R(SD+4*i,4)} offset:{i*1024}')
        a('s_waitcnt lgkmcnt(0)')
        a('s_barrier')
        WT(a, 7)
        a('s_lshl_b32 s32, s13, 10')
        a(f's_add_u32 s32, s32, {S_RED}')
        a('v_add_u32 v7, s32, v2')
        for i in range(4):
            a(f'ds_read_b128 {R(64+4*i,4)}, v7 offset:{i*4096}')
        a('s_lshr_b32 s26, s13, 1')
        a('s_lshl_b32 s27, s28, 1')
        a('s_add_u32 s26, s26, s27')
        a('s_lshl_b32 s26, s26, 4')
        a('s_add_u32 s26, s26, s16')
        a('s_lshl_b32 s26, s26, 1')
        a('s_add_u32 s26, s26, s17')
        a('s_lshl_b32 s26, s26, 9')
        a(f's_add_u32 s26, s26, {SXM}')
        a('s_waitcnt lgkmcnt(0)')
        for r in range(4):
            a(f'v_add_f32 {R(64+r)}, {R(64+r)}, {R(68+r)}')
            a(f'v_add_f32 {R(72+r)}, {R(72+r)}, {R(76+r)}')
        for r in range(4):
            a(f'v_add_f32 {R(100+r)}, {R(64+r)}, {R(72+r)}')
        a(f'buffer_store_dwordx4 v[100:103], v9, s[8:11], s26 offen {WST}')
    else:
        a('s_lshl_b32 s26, s28, 5')
        a('s_add_u32 s26, s26, s16')
        a('s_mul_i32 s26, s26, 28')
        a('s_add_u32 s27, s26, s20')
        a('s_add_u32 s26, s26, s19')
        a('s_lshl_b32 s26, s26, 8')
        a('s_lshl_b32 s27, s27, 8')
        a(f's_add_u32 s26, s26, {UIMG}')
        a(f's_add_u32 s27, s27, {UIMG}')
        for p in range(4):
            o = 100 + 4 * p
            for b in range(2):
                t = min(2 * p + b, 6)
                for q in range(2):
                    a(f'v_cvt_pk_bf16_f32 {R(o+2*b+q)}, {R(acc(0,t)+2*q)}, {R(acc(0,t)+2*q+1)}')
            a(f'v_permlane16_swap_b32 {R(o)}, {R(o+2)}')
            a(f'v_permlane16_swap_b32 {R(o+1)}, {R(o+3)}')
            if p < 3: a(f'buffer_store_dwordx4 {R(o,4)}, v9, s[8:11], s26 offen offset:{p*512} {WST}')
            else: a(f'buffer_store_dwordx4 {R(o,4)}, v10, s[8:11], s27 offen {WST}')
    WT(a, 8)
    wdump(a, 's28', 12)
    hooks.signal(a, ('mir', 's28'))
    a(f's_add_u32 s28, s28, {zstep}')
    a('s_cmp_lt_u32 s28, 32')
    a(f's_cbranch_scc1 {L}')
    hooks.signal(a, ('pend', 0))

def gen_H(a, hooks, item='s12'):
    lane_setup(a)
    a(f's_mul_i32 s14, {item}, 2341')
    a('s_lshr_b32 s14, s14, 16')
    a('s_mul_i32 s15, s14, 28')
    a(f's_sub_u32 s15, {item}, s15')
    a('s_and_b32 s17, s13, 1')
    a('s_lshl_b32 s16, s15, 1')
    a('s_add_u32 s16, s16, s17')
    def HW(m, b, ks): return 256 + 4 * ((2 * m + b) * 14 + ks)
    srd(a, 44, 64, 448 * 3584)
    srd(a, 48, 72, 448 * 3584)
    phase0.raw_lane(a, 'v6', 'v7', 3584)
    a(f's_mul_i32 s18, s13, {14*8*3584}')
    a('s_lshl_b32 s19, s15, 7')
    a('s_add_u32 s18, s18, s19')
    a('s_mul_i32 s25, s13, 14336')
    a('s_waitcnt lgkmcnt(0)')
    a('s_barrier')
    for m in range(2):
        for i in range(14):
            a(f's_add_u32 m0, s25, {m*57344 + i*1024}')
            a(f's_add_u32 s19, s18, {i*8*3584}')
            a(f'buffer_load_dwordx4 v6, {S(44+4*m,4)}, s19 offen lds')
    a('v_lshrrev_b32 v7, 2, v3')
    a('v_and_b32 v8, 3, v3')
    a('v_lshlrev_b32 v8, 4, v8')
    a('v_lshl_add_u32 v8, v7, 7, v8')
    a('v_lshl_add_u32 v8, v4, 10, v8')
    a('v_bfe_u32 v7, v3, 3, 1')
    a('v_xor_b32 v7, s17, v7')
    a('v_lshl_add_u32 v8, v7, 6, v8')
    a('s_lshr_b32 s20, s13, 1')
    a('s_lshl_b32 s20, s20, 3')
    a('s_lshl_b32 s21, s14, 4')
    a('s_add_u32 s20, s20, s21')
    a('s_mul_i32 s21, s20, 14336')
    a(f's_add_u32 s21, s21, {XIMG}')
    a('s_mul_i32 s22, s20, 57344')
    a('s_lshl_b32 s23, s16, 10')
    a('s_add_u32 s22, s22, s23')
    a(f's_add_u32 s22, s22, {HIMG}')
    a('s_lshl_b32 s23, s20, 6')
    a(f's_add_u32 s23, s23, {GVEC}')
    a('v_lshlrev_b32 v5, 2, v3')
    a(f's_mov_b32 s24, {f2u(-LOG2E)}')
    XB = [16, 76, 136]; GB = [72, 132, 192]
    def xl(i):
        b = XB[i % 3]
        for ks in range(14):
            if ks % 4 == 0: a(f's_add_u32 s19, s21, {i*14336 + ks*1024}')
            a(f'buffer_load_dwordx4 {R(b+4*ks,4)}, v2, s[8:11], s19 offen offset:{(ks%4)*1024} {WLD}')
        a(f'buffer_load_dword {R(GB[i%3])}, v5, s[8:11], s23 offen offset:{i*64} {WLD}')
    xl(0); xl(1)
    a('s_waitcnt vmcnt(30)')
    a('s_barrier')
    for m in range(2):
        if m:
            a('v_add_u32 v8, 57344, v8')
        for ks in range(14):
            for b in range(2):
                for hf in range(2):
                    a(f'ds_read_b64_tr_b16 {R(HW(m,b,ks)+2*hf,2)}, v8 offset:{ks*4096 + hf*512 + 8*b}')
    a('s_waitcnt lgkmcnt(0)')
    AC = 200; T = 216; O = 232
    for i in range(8):
        if i + 2 < 8: xl(i + 2)
        n = 15 * (min(i + 2, 7) - i) + min(i, 2)
        a(f's_waitcnt vmcnt({n})')
        b = XB[i % 3]
        for ks in range(14):
            for m in range(2):
                for bb in range(2):
                    d = AC + 4 * (2 * m + bb)
                    a(f'{MF} {R(d,4)}, {R(HW(m,bb,ks),4)}, {R(b+4*ks,4)}, {"0" if ks == 0 else R(d,4)}')
        g = GB[i % 3]
        a(f'v_sub_f32 {R(g)}, 1.0, {R(g)}')
        for r in range(8): a(f'v_mul_f32 {R(T+r)}, s24, {R(AC+r)}')
        for r in range(8): a(f'v_exp_f32 {R(T+r)}, {R(T+r)}')
        for r in range(8): a(f'v_mul_f32 {R(T+8+r)}, {R(AC+r)}, {R(AC+8+r)}')
        for r in range(8): a(f'v_add_f32 {R(T+r)}, 1.0, {R(T+r)}')
        for r in range(8): a(f'v_rcp_f32 {R(T+r)}, {R(T+r)}')
        for r in range(8): a(f'v_mul_f32 {R(T+8+r)}, {R(T+8+r)}, {R(g)}')
        for r in range(8): a(f'v_mul_f32 {R(T+r)}, {R(T+r)}, {R(T+8+r)}')
        o = O + 4 * (i % 2)
        for q in range(4): a(f'v_cvt_pk_bf16_f32 {R(o+q)}, {R(T+2*q)}, {R(T+2*q+1)}')
        a(f'buffer_store_dwordx4 {R(o,4)}, v2, s[8:11], s22 offen {WST}')
        a('s_add_u32 s22, s22, 57344')
    hooks.signal(a, ('h', 's14'))

def red_g(a, x, t, op):
    for sw in ('v_permlane16_swap_b32', 'v_permlane32_swap_b32'):
        a(f'v_mov_b32 {R(t)}, {R(x)}')
        a(f'{sw} {R(x)}, {R(t)}')
        a(f'{op} {R(x)}, {R(x)}, {R(t)}')

def gen_token(a, hooks, nitems=2, seg0='s14', segstep=32):
    lane_setup(a)
    def WD(t, ks): return 256 + 4 * (14 * t + ks)
    srd(a, 44, 80, 1792 * 896)
    phase0.raw_lane(a, 'v6', 'v7', 896)
    a(f's_mul_i32 s18, s13, {448*896}')
    a('s_lshl_b32 s20, s15, 7')
    a('s_add_u32 s18, s18, s20')
    a('s_mul_i32 s19, s13, 14336')
    a('s_lshl_b32 s21, s19, 1')
    phase0.tr_lane(a, 'v10', 'v9')
    a('v_add_u32 v10, s21, v10')
    a('v_xor_b32 v11, 64, v10')
    a('s_waitcnt lgkmcnt(0)')
    for rd in range(2):
        for i in range(28):
            a(f's_add_u32 m0, s21, {i*1024}')
            a(f's_add_u32 s20, s18, {(224*rd + 8*i)*896}')
            a('buffer_load_dwordx4 v6, s[44:47], s20 offen lds')
        a('s_waitcnt vmcnt(0)')
        for k in range(7):
            for t in range(4):
                for hf in range(2):
                    a(f'ds_read_b64_tr_b16 {R(WD(t,7*rd+k)+2*hf,2)}, v{10 + t//2} offset:{k*4096 + hf*512 + (t%2)*32}')
        a('s_waitcnt lgkmcnt(0)')
    a('s_barrier')
    a('v_lshlrev_b32 v5, 2, v4')
    for r in range(4):
        a(f'v_add_u32 v6, {r}, v5')
        a(f'v_cmp_le_u32 s[{48+2*r}:{49+2*r}], v6, v3')
    for hl in range(4):
        a(f'v_cmp_eq_u32 s[{60+2*hl}:{61+2*hl}], {hl}, v4')
    a('v_lshlrev_b32 v7, 10, v4')
    a('v_lshl_add_u32 v7, v3, 5, v7')
    a('v_mul_u32_u24 v15, 7168, v4')
    a('v_lshl_add_u32 v15, v3, 4, v15')
    a('v_lshlrev_b32 v8, 2, v3')
    a('v_lshrrev_b32 v9, 3, v0')
    a('v_and_b32 v10, 7, v0')
    a('v_mul_u32_u24 v11, 896, v9')
    a('v_lshl_add_u32 v11, v10, 4, v11')
    a('v_lshrrev_b32 v12, 4, v9')
    a('v_lshlrev_b32 v12, 12, v12')
    a('v_lshl_add_u32 v12, v10, 9, v12')
    a('v_and_b32 v9, 15, v9')
    a('v_lshl_add_u32 v12, v9, 4, v12')
    a('s_lshl_b32 s20, s13, 13')
    a('v_add_u32 v13, s20, v2')
    a(f'v_mov_b32 v14, {f2u(-1e30)}')
    a(f's_mov_b32 s28, {seg0}')
    a(f's_mov_b32 s29, {nitems}')
    HF = 16; VF = 128; UF = 192; XX = 208; AC = 256 + 224
    L = a.newlabel('TOK')
    a.label(L); a.reset_hist()
    hooks.wait(a, ('h', 's28'))
    hooks.wait(a, ('kv', 's28'))
    a(f's_mul_i32 s20, s28, {2*57344}')
    a('s_add_u32 s20, s20, s19')
    a(f's_add_u32 s20, s20, {HIMG}')
    for qt in range(2):
        for ks in range(14):
            if ks % 4 == 0: a(f's_add_u32 s21, s20, {qt*57344 + ks*1024}')
            a(f'buffer_load_dwordx4 {R(HF+4*(14*qt+ks),4)}, v2, s[8:11], s21 offen offset:{(ks%4)*1024} {WLD}')
    a(f's_mul_i32 s20, s28, {V_S}')
    a(f's_mul_i32 s21, s15, {4*V_J}')
    a('s_add_u32 s20, s20, s21')
    a('s_lshl_b32 s21, s13, 12')
    a('s_add_u32 s20, s20, s21')
    a(f's_add_u32 s20, s20, {VIMG}')
    for t in range(4):
        for hl in range(4):
            a(f'buffer_load_dwordx4 {R(VF+4*(4*t+hl),4)}, v2, s[8:11], s20 offen offset:{hl*1024} {WLD}')
        a(f's_add_u32 s20, s20, {V_J}')
    a('s_lshl_b32 s23, s28, 4')
    a('s_lshl_b32 s21, s13, 2')
    a('s_add_u32 s23, s23, s21')
    a('s_mul_i32 s20, s23, 3072')
    a(f's_add_u32 s20, s20, {SXX}')
    for i in range(12):
        if i and i % 4 == 0: a('s_add_u32 s20, s20, 4096')
        a(f'buffer_load_dwordx4 {R(XX+4*i,4)}, v2, s[8:11], s20 offen offset:{(i%4)*1024} {WLD}')
    a('s_lshl_b32 s20, s28, 7')
    a(f's_add_u32 s20, s20, {GVEC}')
    a(f'buffer_load_dword v5, v8, s[8:11], s20 offen {WLD}')
    a(f'buffer_load_dword v6, v8, s[8:11], s20 offen offset:64 {WLD}')
    a('s_waitcnt vmcnt(30)')
    for ks in range(14):
        for qt in range(2):
            for t in range(4):
                d = AC + 4 * (4 * qt + t)
                a(f'{MF} {R(d,4)}, {R(WD(t,ks),4)}, {R(HF+4*(14*qt+ks),4)}, {"0" if ks == 0 else R(d,4)}')
    XM = 16; PX = 48; PMF = 96; m = 104; l = 105; t0 = 106; t1 = 107; MX = 80; LX = 82; FF = 84
    a('s_waitcnt vmcnt(0)')
    def xsl(hl, qt): return [XX + 12 * hl + r for r in range(4)] if qt == 0 else [XX + 12 * hl + 4 + r for r in range(8)]
    def maxall(dst, al):
        a(f'v_max3_f32 {R(dst)}, {R(al[0])}, {R(al[1])}, {R(al[2])}')
        i = 3
        while i < len(al):
            if i + 1 < len(al):
                a(f'v_max3_f32 {R(dst)}, {R(dst)}, {R(al[i])}, {R(al[i+1])}'); i += 2
            else:
                a(f'v_max_f32 {R(dst)}, {R(dst)}, {R(al[i])}'); i += 1
    for hl in range(4):
        for qt in range(2):
            xs = xsl(hl, qt); diag = xs[-4:]
            for r in range(4):
                a(f'v_cndmask_b32 {R(diag[r])}, v14, {R(diag[r])}, s[{48+2*r}:{49+2*r}]')
            maxall(m, xs)
            red_g(a, m, t0, 'v_max_f32')
            for x in xs: a(f'v_sub_f32 {R(x)}, {R(x)}, {R(m)}')
            for x in xs: a(f'v_exp_f32 {R(x)}, {R(x)}')
            a(f'v_add_f32 {R(l)}, {R(xs[0])}, {R(xs[1])}')
            for x in xs[2:]: a(f'v_add_f32 {R(l)}, {R(l)}, {R(x)}')
            red_g(a, l, t0, 'v_add_f32')
            a(f'v_cndmask_b32 {R(MX+qt)}, {R(MX+qt)}, {R(m)}, s[{60+2*hl}:{61+2*hl}]')
            a(f'v_cndmask_b32 {R(LX+qt)}, {R(LX+qt)}, {R(l)}, s[{60+2*hl}:{61+2*hl}]')
    a('s_lshl_b32 s20, s23, 10')
    a(f's_add_u32 s20, s20, {SXM}')
    a('s_mul_i32 s21, s23, 7168')
    a('s_lshl_b32 s22, s15, 10')
    a('s_add_u32 s21, s21, s22')
    a(f's_add_u32 s21, s21, {UIMG}')
    hooks.wait(a, ('mir', 's28'))
    for i in range(4):
        a(f'buffer_load_dwordx4 {R(XM+4*i,4)}, v7, s[8:11], s20 offen offset:{(i//2)*512 + (i%2)*16} {WLD}')
    for t in range(4):
        a(f'buffer_load_dwordx4 {R(UF+4*t,4)}, v15, s[8:11], s21 offen offset:{t*256} {WLD}')
    for qt in range(2):
        a(f's_waitcnt vmcnt({6 - 2*qt})')
        ms = [XM + 8 * qt + r for r in range(8)]
        maxall(m, ms + [MX + qt])
        for x in ms + [MX + qt]: a(f'v_sub_f32 {R(x)}, {R(x)}, {R(m)}')
        for x in ms + [MX + qt]: a(f'v_exp_f32 {R(x)}, {R(x)}')
        a(f'v_add_f32 {R(l)}, {R(ms[0])}, {R(ms[1])}')
        a(f'v_add_f32 {R(t1)}, {R(ms[2])}, {R(ms[3])}')
        for i in (4, 6):
            a(f'v_add_f32 {R(l)}, {R(l)}, {R(ms[i])}')
            a(f'v_add_f32 {R(t1)}, {R(t1)}, {R(ms[i+1])}')
        a(f'v_fma_f32 {R(l)}, {R(LX+qt)}, {R(MX+qt)}, {R(l)}')
        a(f'v_add_f32 {R(l)}, {R(l)}, {R(t1)}')
        a(f'v_rcp_f32 {R(l)}, {R(l)}')
        a(f'v_mul_f32 {R(l)}, {R(l)}, {R(5+qt)}')
        a(f'v_mul_f32 {R(MX+qt)}, {R(MX+qt)}, {R(l)}')
        f = FF + 4 * qt
        a(f'v_mov_b32 {R(f)}, {R(MX+qt)}')
        a(f'v_mov_b32 {R(f+1)}, {R(MX+qt)}')
        for x in ms[:4]: a(f'v_mul_f32 {R(x)}, {R(x)}, {R(l)}')
        a(f'v_permlane16_swap_b32 {R(f)}, {R(f+1)}')
        a(f'v_mov_b32 {R(f+2)}, {R(f)}')
        a(f'v_mov_b32 {R(f+3)}, {R(f+1)}')
        for x in ms[4:]: a(f'v_mul_f32 {R(x)}, {R(x)}, {R(l)}')
        a(f'v_permlane32_swap_b32 {R(f)}, {R(f+2)}')
        a(f'v_permlane32_swap_b32 {R(f+1)}, {R(f+3)}')
        for q in range(4):
            a(f'v_cvt_pk_bf16_f32 {R(PMF+4*qt+q)}, {R(ms[2*q])}, {R(ms[2*q+1])}')
        for hl in range(4):
            xs = xsl(hl, qt)
            for x in xs: a(f'v_mul_f32 {R(x)}, {R(x)}, {R(f+hl)}')
            p = PX + 4 * (2 * hl + qt)
            for r in range(4):
                a(f'v_cvt_pk_bf16_f32 {R(p+r)}, {R(xs[r])}, {R(xs[4+r]) if qt else 0}')
            for t in range(4):
                d = AC + 4 * (4 * qt + t)
                a(f'{MF} {R(d,4)}, {R(VF+4*(4*t+hl),4)}, {R(p,4)}, {R(d,4)}')
    a('s_waitcnt vmcnt(0)')
    for qt in range(2):
        for t in range(4):
            d = AC + 4 * (4 * qt + t)
            a(f'{MF} {R(d,4)}, {R(UF+4*t,4)}, {R(PMF+4*qt,4)}, {R(d,4)}')
    for i in range(8):
        a(f'ds_write_b128 v13, {R(AC+4*i,4)} offset:{i*1024}')
    a('s_waitcnt lgkmcnt(0)')
    a('s_barrier')
    for w in range(4):
        for hf in range(2):
            a(f'ds_read_b128 {R(16+8*w+4*hf,4)}, v12 offset:{w*8192 + hf*256}')
    a(f's_mul_i32 s20, s28, {32*896}')
    a('s_lshl_b32 s21, s15, 7')
    a('s_add_u32 s20, s20, s21')
    a('s_waitcnt lgkmcnt(0)')
    a('s_barrier')
    for r in range(8):
        a(f'v_add_f32 {R(16+r)}, {R(16+r)}, {R(24+r)}')
        a(f'v_add_f32 {R(32+r)}, {R(32+r)}, {R(40+r)}')
    for r in range(8): a(f'v_add_f32 {R(16+r)}, {R(16+r)}, {R(32+r)}')
    for q in range(4): a(f'v_cvt_pk_bf16_f32 {R(108+q)}, {R(16+2*q)}, {R(16+2*q+1)}')
    a('buffer_store_dwordx4 v[108:111], v11, s[36:39], s20 offen')
    a(f's_add_u32 s28, s28, {segstep}')
    a('s_cmp_lt_u32 s28, 64')
    a(f's_cbranch_scc1 {L}')
```

```python
import sys, os
from asmlib import *
from layout import *
import prep, workers, team2
from prep import srd
from team2 import F_KV, F_MIR, F_H, F_W, F_X
import phase0
team2.MEGA = True; team2.SPARE_PF = 1
for k_, v_ in dict(A_SLEEP=6, CDEPTH=3, PDEPTH=2, PSTAG=2, C_SLEEP=3, C_PF=0, SXAT=22, SPEC=[30,35,40,44], KLD0=2, KLDE=5, A_PF=2).items(): setattr(team2, k_, v_)
OPT = dict(FORCE_SLOW=0, TIMING=0, STATIC=0, TOUCH=1, ROT=1)
for kv in sys.argv[1:]:
    if '=' in kv:
        k_, v_ = kv.split('=')
        if k_ in OPT: OPT[k_] = eval(v_)
        else: setattr(team2, k_, eval(v_))
workers.WINSTR = OPT['TIMING'] in (1, 2)
if OPT['TIMING'] == 2: phase0.WT = workers.WT
phase0.TOUCH = OPT['TOUCH']; phase0.ROT = OPT['ROT']
workers.WST = 'sc1'; workers.WLD = 'sc1'
REF = open('gated_mix__memory_aug_recurrent_mem_tr__swiglu_ffn__prompt.s.ref').read()
head_comments = ''.join(l + '\n' for l in REF.split('\n') if l.startswith(';') and '@launch' not in l and 'Override launch' not in l and 'grid=ceil' not in l)
def kbegin(name): return f".globl {name}\n.p2align 8\n.type {name},@function\n{name}:\n"
def kdesc(name, vg=512, acc=256, sg=96):
    return f""".amdhsa_kernel {name}
  .amdhsa_next_free_vgpr {vg}
  .amdhsa_next_free_sgpr {sg}
  .amdhsa_accum_offset {acc}
  .amdhsa_group_segment_fixed_size 0
  .amdhsa_kernarg_size 120
  .amdhsa_user_sgpr_count 2
  .amdhsa_user_sgpr_kernarg_segment_ptr 1
  .amdhsa_system_sgpr_workgroup_id_x 1
.end_amdhsa_kernel
"""
EXIT = 'MEGA_EXIT'
SPINW = 4000000
def tmark(a, k):
    if not OPT['TIMING']: return
    if OPT['TIMING'] == 3:
        L = a.newlabel('TM')
        a('s_cmp_eq_u32 s83, 0')
        a(f's_cselect_b32 s82, {4 + 4*k}, 0')
        a('s_cmp_eq_u32 s83, 106')
        a(f's_cselect_b32 s82, {32 + 4*k}, s82')
        a('s_cmp_eq_u32 s82, 0')
        a(f's_cbranch_scc1 {L}')
        a('s_memrealtime s[80:81]')
        a('s_waitcnt lgkmcnt(0)')
        a('s_and_b32 s80, s80, 0xfffff')
        a('v_mov_b32 v15, s80')
        a('v_mov_b32 v14, s82')
        a('global_store_dword v14, v15, s[4:5]')
        a.label(L)
        return
    a('s_memrealtime s[80:81]')
    a('s_waitcnt lgkmcnt(0)')
    a('s_lshl_b32 s82, s83, 6')
    a(f's_add_u32 s82, s82, {DBG + 4*k}')
    a('v_mov_b32 v15, s80')
    a('buffer_store_dword v15, off, s[8:11], s82')
class H(workers.Hooks):
    def guard(self, a):
        a('s_add_u32 s35, s35, 1')
        a(f's_cmp_gt_u32 s35, {SPINW}')
        a(f's_cbranch_scc1 {EXIT}')
    def flag(self, a, soff):
        a('v_mov_b32 v15, 1')
        a('s_mov_b64 exec, 1')
        a(f'buffer_store_dword v15, off, s[8:11], {soff} sc1')
        a('s_mov_b64 exec, -1')
    def poll(self, a, t, wide, addr, sleep):
        L = a.newlabel('WF')
        a('s_mov_b32 s35, 0')
        for x in addr: a(x)
        Lf = a.newlabel('WF0')
        a(f's_branch {Lf}')
        a.label(L)
        a(f's_sleep {sleep}')
        a.label(Lf)
        if wide: a(f'buffer_load_dwordx2 {R(t+2,2)}, {R(t)}, s[8:11], s30 offen sc1')
        else: a(f'buffer_load_dword {R(t+2)}, {R(t)}, s[8:11], s30 offen sc1')
        self.guard(a)
        a('s_waitcnt vmcnt(0)')
        if wide: a(f'v_min_u32 {R(t+2)}, {R(t+2)}, {R(t+3)}')
        a(f'v_cmp_eq_u32 vcc, 0, {R(t+2)}')
        a(f's_cbranch_vccnz {L}')
    def wait(self, a, what):
        k = what[0]
        if k == 'h':
            self.poll(a, 16, False, [f's_lshr_b32 s30, {what[1]}, 2', 's_lshl_b32 s30, s30, 8', f's_add_u32 s30, s30, {F_H}',
                                     'v_min_u32 v16, 55, v1', 'v_lshlrev_b32 v16, 2, v16'], 16)
        elif k == 'kv':
            self.poll(a, 16, True, [f's_lshl_b32 s30, {what[1]}, 9', f's_add_u32 s30, s30, {F_KV}', 'v_lshlrev_b32 v16, 3, v1'], 16)
        elif k == 'mir':
            self.poll(a, 112, True, [f's_lshr_b32 s30, {what[1]}, 1', 's_lshl_b32 s30, s30, 9', f's_add_u32 s30, s30, {F_MIR}',
                                     'v_lshlrev_b32 v112, 3, v1'], 4)
        elif k == 'mem0':
            L = a.newlabel('WM'); Lf = a.newlabel('WM0')
            r = what[1]
            a(f's_branch {Lf}')
            a.label(L)
            a('s_sleep 2')
            a.label(Lf)
            a(f'buffer_load_dwordx4 {R(r,4)}, v14, s[8:11], s26 offen offset:1024 sc1')
            self.guard(a)
            a('s_waitcnt vmcnt(0)')
            a(f'v_cmp_eq_u32 vcc, -1, {R(r+3)}')
            a(f's_cbranch_vccnz {L}')
        elif k == 'mem1':
            self.guard(a)
            first = True
            for ks in range(14):
                a(f's_waitcnt vmcnt({14-ks})')
                for x in team2.acc_max(15, range(workers.MFR[ks], workers.MFR[ks] + 4), first): a(x)
                first = False
            a('v_cmp_eq_u32 vcc, -1, v15')
            a(f's_cbranch_vccnz {what[1]}')
    def signal(self, a, what):
        k = what[0]
        if k == 'kv':
            a('s_lshl_b32 s34, s28, 9')
            a('s_lshl_b32 s33, s14, 4')
            a('s_add_u32 s34, s34, s33')
            a('s_lshl_b32 s33, s13, 2')
            a('s_add_u32 s34, s34, s33')
            a(f's_add_u32 s34, s34, {F_KV}')
        elif k == 'kvmid':
            L = a.newlabel('NF')
            a('s_cmp_eq_u32 s34, 0')
            a(f's_cbranch_scc1 {L}')
            a('s_waitcnt vmcnt(0)')
            self.flag(a, 's34')
            a('s_mov_b32 s34, 0')
            a.label(L)
        elif k == 'mir':
            a('s_lshl_b32 s34, s28, 9')
            a('s_lshl_b32 s33, s14, 4')
            a('s_add_u32 s34, s34, s33')
            a('s_lshl_b32 s33, s13, 2')
            a('s_add_u32 s34, s34, s33')
            a(f's_add_u32 s34, s34, {F_MIR}')
        elif k == 'pend':
            L = a.newlabel('NF')
            a('s_cmp_eq_u32 s34, 0')
            a(f's_cbranch_scc1 {L}')
            a(f's_waitcnt vmcnt({what[1]})')
            self.flag(a, 's34')
            a('s_mov_b32 s34, 0')
            if what[1]:
                L2 = a.newlabel('NF2')
                a(f's_branch {L2}')
                a.label(L)
                a('buffer_load_dword v11, off, s[8:11], s26 sc1')
                a.label(L2)
            else:
                a.label(L)
        elif k == 'h':
            a('s_lshl_b32 s34, s14, 1')
            a('s_lshr_b32 s33, s13, 1')
            a('s_add_u32 s34, s34, s33')
            a('s_lshl_b32 s34, s34, 8')
            a('s_lshl_b32 s33, s16, 2')
            a('s_add_u32 s34, s34, s33')
            a(f's_add_u32 s34, s34, {F_H}')
            a('s_waitcnt vmcnt(0)')
            self.flag(a, 's34')
hooks = H()
a = Asm()
NAME = 'gated_mix__memory_aug_recurrent_mem_tr__swiglu_ffn__prompt_kernel'
def wait_init(a):
    L = a.newlabel('WI')
    a('s_mov_b32 s35, 0')
    a('v_mov_b32 v16, 0')
    a.label(L)
    a('global_load_dword v17, v16, s[4:5] sc1')
    hooks.guard(a)
    a('s_waitcnt vmcnt(0)')
    a('v_and_b32 v17, 63, v17')
    a('v_cmp_gt_u32 vcc, 32, v17')
    a(f's_cbranch_vccnz {L}')
def wait_x(a):
    hooks.poll(a, 16, True, [f's_mov_b32 s30, {F_X}', 'v_lshlrev_b32 v16, 3, v1'], 2)
def wait_unit(a, us):
    hooks.poll(a, 16, False, [f's_lshl_b32 s30, {us}, 7', f's_add_u32 s30, s30, {F_W}', 'v_min_u32 v16, 27, v1', 'v_lshlrev_b32 v16, 2, v16'], 2)
a.raw(kbegin(NAME)); a.reset_hist()
a('s_cmp_ge_u32 s2, 256')
a(f's_cbranch_scc1 {EXIT}')
srd(a, 8, 112, WS_BYTES)
a('s_load_dwordx2 s[4:5], s[0:1], 104')
a('v_readfirstlane_b32 s13, v0')
a('s_lshr_b32 s13, s13, 6')
if OPT['FORCE_SLOW']:
    a('s_mov_b32 s12, s2')
else:
    a('s_and_b32 s12, s2, 7')
    a('s_lshl_b32 s12, s12, 5')
    a('s_lshr_b32 s3, s2, 3')
    a('s_add_u32 s12, s12, s3')
a('s_mov_b32 s83, s12')
a('s_waitcnt lgkmcnt(0)')
tmark(a, 0)
a('s_cmp_ge_u32 s12, 32')
a('s_cbranch_scc1 WORKER')
phase0.gen_misc1(a)
def prebar(a):
    phase0.gen_misc2(a, 9)
    tmark(a, 4)
team2.PREBAR = prebar
a('s_getreg_b32 s3, hwreg(HW_REG_XCC_ID)')
a('s_and_b32 s3, s3, 15')
a('s_mul_i32 s41, s3, s3')
a('s_lshl_b32 s41, s41, 16')
a('s_lshl_b32 s3, s3, 6')
a('s_add_u32 s41, s41, s3')
a('s_add_u32 s41, s41, 1')
a('s_cmp_lt_u32 s12, 16')
a('s_cbranch_scc1 ROLE_A')
a('s_mov_b32 s26, 0')
a('s_cmp_ge_u32 s12, 30')
a('s_cbranch_scc1 ROLE_P')
srd(a, 32, 8, 7168)
a('s_waitcnt lgkmcnt(0)')
a('s_branch ROLE_C')
a.label('ROLE_A'); a.reset_hist()
a('s_mov_b32 s26, 0')
def waitw(a, role):
    tmark(a, 5)
    if role == 'A':
        hooks.poll(a, 16, False, ['s_lshl_b32 s30, s12, 7', f's_add_u32 s30, s30, {F_W}', 'v_lshrrev_b32 v16, 2, v2', 'v_min_u32 v16, 108, v16'], 2)
    else:
        hooks.poll(a, 16, False, ['s_lshr_b32 s30, s12, 1', 's_lshl_b32 s30, s30, 4', f's_add_u32 s30, s30, {F_W + 16*128}',
                                  'v_lshrrev_b32 v16, 6, v2', 'v_lshlrev_b32 v16, 7, v16', 'v_bfe_u32 v17, v2, 4, 2', 'v_lshl_add_u32 v16, v17, 2, v16'], 2)
    tmark(a, 3)
team2.WAITW = waitw
stamp = (lambda a, k: tmark(a, 1 + k)) if OPT['TIMING'] else None
team2.gen_A(a, EXIT, stamp)
a.label('ROLE_C'); a.reset_hist()
a('s_sub_u32 s12, s12, 16')
team2.gen_C(a, EXIT, stamp)
a.label('ROLE_P'); a.reset_hist()
a('s_sub_u32 s12, s12, 30')
team2.gen_spare(a, EXIT)
a.label('WORKER'); a.reset_hist()
a('s_sub_u32 s12, s12, 32')
workers.kv_setup(a)
a('s_cmp_ge_u32 s14, 16')
a('s_cbranch_scc1 W_P0V')
phase0.gen_phase0(a, True)
a('s_branch W_P0D')
a.label('W_P0V'); a.reset_hist()
phase0.gen_phase0(a, False)
a.label('W_P0D'); a.reset_hist()
a('s_nop 1')
wait_init(a)
if OPT['TIMING'] == 2:
    workers.WT(a, 8); workers.wdump(a, 's13', 's13'); workers.WINSTR = False
a('s_lshl_b32 s34, s14, 7')
a('s_lshl_b32 s33, s15, 4')
a('s_add_u32 s34, s34, s33')
a('s_lshl_b32 s33, s13, 2')
a('s_add_u32 s34, s34, s33')
a(f's_add_u32 s34, s34, {F_W}')
hooks.flag(a, 's34')
tmark(a, 4)
wait_unit(a, 's14')
tmark(a, 5)
a('s_barrier')
workers.kv_weights(a)
a('s_cmp_ge_u32 s14, 16')
a('s_cbranch_scc1 W_V')
workers.gen_kv(a, hooks, True)
tmark(a, 1)
a('s_cmp_lg_u32 s15, 6')
a('s_cbranch_scc1 W_H')
workers.gen_mirror(a, hooks, True, 0, 1, MEMX)
tmark(a, 2)
a(f's_branch {EXIT}')
a.label('W_V'); a.reset_hist()
workers.gen_kv(a, hooks, False)
tmark(a, 1)
a('s_cmp_lg_u32 s15, 6')
a('s_cbranch_scc1 W_H')
workers.gen_mirror(a, hooks, False, 0, 1, MEMX)
tmark(a, 2)
a(f's_branch {EXIT}')
a.label('W_H'); a.reset_hist(); a.flush()
a('s_mul_i32 s12, s14, 6')
a('s_add_u32 s12, s12, s15')
a('s_mov_b32 s58, s12')
a.label('W_HL'); a.reset_hist()
workers.gen_H(a, hooks, 's58')
a('s_add_u32 s58, s58, 32')
a('s_cmp_lt_u32 s58, 192')
a('s_cbranch_scc1 W_T')
a('s_cmp_lt_u32 s58, 224')
a('s_cbranch_scc1 W_HL')
a.label('W_T'); a.reset_hist()
tmark(a, 2)
a('s_cmp_ge_u32 s12, 189')
a(f's_cbranch_scc1 {EXIT}')
srd(a, 36, 96, 2048 * 896)
a('s_mul_i32 s14, s12, 9363')
a('s_lshr_b32 s14, s14, 16')
a('s_mul_i32 s15, s14, 7')
a('s_sub_u32 s15, s12, s15')
a('s_waitcnt lgkmcnt(0)')
a('s_barrier')
workers.gen_token(a, hooks, 0, 's14', 27)
tmark(a, 3)
a.label(EXIT); a('s_endpgm')

out = head_comments + f'; @launch grid=(256,1,1) block=(256,1,1) lds={phase0.P0_LDS}\n'
out += '.amdgcn_target "amdgcn-amd-amdhsa--gfx950"\n.text\n' + a.text() + '.section .rodata,"a"\n.p2align 6\n' + kdesc(NAME)
open(os.environ.get('OUT', 'mega.s'), 'w').write(out)
print('lines', len(a.lines), 'nops', a.nops_added, 'bytes', len(out))
```

```python
from asmlib import *
from layout import *
from prep import f2u, LOG2E, srd
MF = 'v_mfma_f32_16x16x32_bf16'
WSZ = 448 * 4096 * 2
P0_LDS = 163840
B_OFF = 131072
TOUCH = 1
ROT = 1
WT = lambda a, k: None
def gen_phase0(a, isK):
    WT(a, 0)
    srd(a, 44, 24 if isK else 32, WSZ)
    srd(a, 48, 16 if isK else 40, WSZ)
    a('s_lshl_b32 s23, s13, 2')
    a('s_min_u32 s23, s23, 10')
    a('v_lshrrev_b32 v5, 5, v1')
    a('v_and_b32 v6, 31, v1')
    a('v_lshlrev_b32 v6, 4, v6')
    a('v_lshlrev_b32 v7, 6, v5')
    a('v_xor_b32 v6, v6, v7')
    a('v_lshl_add_u32 v6, v5, 13, v6')
    a('v_xor_b32 v7, 128, v6')
    if not isK: raw_lane(a, 'v8', 'v9', 896)
    a('s_lshl_b32 s17, s16, 9')
    a('s_lshl_b32 s18, s23, 18')
    a('s_add_u32 s18, s18, s17')
    if isK:
        a('s_lshl_b32 s19, s15, 19')
        a('s_lshl_b32 s20, s13, 17')
        a('s_add_u32 s19, s19, s20')
        a('s_add_u32 s19, s19, s17')
    else:
        a(f's_mul_i32 s19, s16, {256*896}')
        a(f's_mul_i32 s20, s13, {64*896}')
        a('s_add_u32 s19, s19, s20')
        a('s_lshl_b32 s20, s15, 7')
        a('s_add_u32 s19, s19, s20')
    a('s_lshl_b32 s21, s13, 15')
    a('s_lshl_b32 s22, s13, 13')
    a(f's_add_u32 s22, s22, {B_OFF}')
    a('v_lshrrev_b32 v9, 2, v1')
    a('v_lshlrev_b32 v9, 13, v9')
    a('v_and_b32 v10, 3, v1')
    a('v_lshl_add_u32 v9, v10, 7, v9')
    a('s_lshl_b32 s24, s15, 19')
    a('s_lshl_b32 s25, s13, 17')
    a('s_add_u32 s24, s24, s25')
    a('s_add_u32 s24, s24, s17')
    if TOUCH == 3:
        a('s_lshr_b32 s30, s15, 1')
        a('s_lshl_b32 s30, s30, 2')
        a('s_min_u32 s30, s30, 10')
        a('s_add_u32 s30, s30, s13')
        a('s_lshl_b32 s30, s30, 1')
        a('s_and_b32 s25, s15, 1')
        a('s_add_u32 s30, s30, s25')
        a('s_lshl_b32 s30, s30, 17')
        a('s_add_u32 s30, s30, s17')
    a('s_waitcnt lgkmcnt(0)')
    if TOUCH == 3:
        L0 = a.newlabel('P0T')
        a('s_cmp_lg_u32 s13, 0')
        a(f's_cbranch_scc1 {L0}')
        a('buffer_load_dword v11, v9, s[44:47], s30 offen')
        a.label(L0)
    if TOUCH == 9:
        WT(a, 1)
        a('buffer_load_dword v11, off, s[44:47], s24')
        a('s_waitcnt vmcnt(0)')
        WT(a, 2)
        a('buffer_load_dword v11, v9, s[44:47], s24 offen')
        a('s_waitcnt vmcnt(0)')
        WT(a, 3)
        a('buffer_load_dword v11, off, s[48:51], s19')
        a('s_waitcnt vmcnt(0)')
        WT(a, 4)
    if TOUCH in (1, 2, 9): a('buffer_load_dword v11, v9, s[44:47], s24 offen')
    for i in range(8):
        a(f's_add_u32 m0, s22, {i*1024}')
        if isK:
            a(f's_add_u32 s24, s19, {i*2*8192}')
            a(f'buffer_load_dwordx4 v{6 + i%2}, s[48:51], s24 offen lds')
        else:
            a(f's_add_u32 s24, s19, {8*i*896}')
            a('buffer_load_dwordx4 v8, s[48:51], s24 offen lds')
    def prot(p, dst, sh):
        if not ROT: return [f's_mov_b32 {dst}, {p << sh}']
        return [f's_add_u32 {dst}, s15, {p}', f's_and_b32 {dst}, {dst}, 3', f's_lshl_b32 {dst}, {dst}, {sh}']
    def dma(p):
        out = prot(p, 's28', 18) + ['s_add_u32 s28, s28, s18']
        for i in range(16):
            out += [f's_add_u32 m0, s21, {(p%2)*16384 + i*1024}', f's_add_u32 s24, s28, {i*2*8192}',
                    f'buffer_load_dwordx4 v{6 + i%2}, s[44:47], s24 offen lds']
        return out
    if TOUCH == 2: a('s_waitcnt vmcnt(8)')
    if TOUCH == 9:
        a('s_waitcnt vmcnt(0)'); WT(a, 5)
    if TOUCH == 3: a('buffer_load_dword v11, v9, s[44:47], s30 offen')
    for x in dma(0): a(x)
    WT(a, 6 if TOUCH == 9 else 1)
    a('v_lshrrev_b32 v9, 2, v3')
    a('v_lshlrev_b32 v9, 12, v9')
    a('v_and_b32 v10, 3, v3')
    a('v_lshl_add_u32 v9, v10, 9, v9')
    a('v_lshl_add_u32 v9, v10, 6, v9')
    a('v_lshl_add_u32 v9, v4, 4, v9')
    BF = 256; AF = 16; ACC = 80; OUT = 144
    a(f's_waitcnt vmcnt({17 if TOUCH == 3 else 16})')
    a('s_barrier')
    d1 = dma(1)
    def nxt():
        while d1:
            x = d1.pop(0); a(x)
            if not x.startswith('s_'): break
    if isK:
        for k in range(4):
            a(f'v_xor_b32 v{12+k}, {64*k}, v9')
            a(f'v_add_u32 v{12+k}, {B_OFF}, v{12+k}')
        for es in range(8):
            for t in range(4):
                a(f'ds_read_b128 {R(BF+16*es+4*t,4)}, v{12 + es%4} offset:{(t//2)*16384 + (t%2)*2048 + (es//4)*256}')
                if t % 2: nxt()
    else:
        tr_lane(a, 'v12', 'v10')
        a(f'v_add_u32 v12, {B_OFF}, v12')
        a('v_xor_b32 v13, 64, v12')
        for es in range(8):
            for t in range(4):
                for hf in range(2):
                    a(f'ds_read_b64_tr_b16 {R(BF+16*es+4*t+2*hf,2)}, v{12 + t//2} offset:{es*4096 + hf*512 + (t%2)*32}')
                if t % 2: nxt()
    assert not d1
    for k in range(4):
        a(f'v_xor_b32 v{12+k}, {64*k}, v9')
        a(f'v_add_u32 v{12+k}, s21, v{12+k}')
    a(f's_mul_i32 s29, s14, {MAT}')
    a(f's_mul_i32 s25, s15, {4*14336}')
    a('s_add_u32 s29, s29, s25')
    a('s_lshl_b32 s25, s23, 10')
    a('s_add_u32 s29, s29, s25')
    if isK:
        a(f's_mov_b32 s26, {f2u(LOG2E/16)}')
    def acc(p, b, t): return ACC + 32 * (p % 2) + 4 * (4 * b + t)
    def epi(p):
        out = prot(p, 's27', 10) + ['s_add_u32 s27, s27, s29']
        for t in range(4):
            o = OUT + 4 * t
            for b in range(2):
                r = acc(p, b, t)
                if isK: out += [f'v_mul_f32 {R(r+q)}, s26, {R(r+q)}' for q in range(4)]
                out += [f'v_cvt_pk_bf16_f32 {R(o+2*b+q)}, {R(r+2*q)}, {R(r+2*q+1)}' for q in range(2)]
            out.append(f'buffer_store_dwordx4 {R(o,4)}, v2, s[8:11], s27 offen sc1')
            if t < 3: out.append('s_add_u32 s27, s27, 14336')
        return out
    NV = [16, 16, 20, 4]
    for p in range(4):
        a(f's_waitcnt vmcnt({NV[p]})')
        if TOUCH != 9: WT(a, 2 + p)
        for es in range(8):
            for b in range(2):
                a(f'ds_read_b128 {R(AF+8*es+4*b,4)}, v{12 + es%4} offset:{(p%2)*16384 + b*2048 + (es//4)*256}')
        fe = epi(p - 1) if p else []
        fd = dma(p + 2) if p + 2 < 4 else []
        k = 0
        for es in range(8):
            a(f's_waitcnt lgkmcnt({max(0, 12 - 4*es)})' if es < 4 else 's_nop 0')
            for b in range(2):
                for t in range(4):
                    c = '0' if es == 0 else R(acc(p, b, t), 4)
                    a(f'{MF} {R(acc(p,b,t),4)}, {R(AF+8*es+4*b,4)}, {R(BF+16*es+4*t,4)}, {c}')
                    k += 1
                    if es < 4:
                        for _ in range(2):
                            while fe:
                                x = fe.pop(0); a(x)
                                if not x.startswith('s_'): break
                    elif k % 2 == 0:
                        while fd:
                            x = fd.pop(0); a(x)
                            if not x.startswith('s_'): break
        assert not fe and not fd
    if TOUCH != 9: WT(a, 6)
    for x in epi(3): a(x)
    WT(a, 7)

M_LDS = 65536
def gen_misc1(a):
    a('v_and_b32 v1, 63, v0')
    a('v_lshlrev_b32 v240, 4, v1')
    a('s_lshl_b32 s52, s12, 2')
    a('s_add_u32 s52, s52, s13')
    srd(a, 44, 0, 2048 * 896)
    srd(a, 48, 88, 896)
    raw_lane(a, 'v241', 'v242', 896)
    a('v_lshrrev_b32 v242, 4, v1')
    a('v_lshlrev_b32 v242, 4, v242')
    a(f's_mul_i32 s53, s52, {16*896}')
    a('s_mul_i32 s54, s13, 14336')
    a(f's_add_u32 s54, s54, {M_LDS}')
    a('s_waitcnt lgkmcnt(0)')
    for i in range(2):
        for c in range(7):
            a(f's_add_u32 m0, s54, {(i*7 + c)*1024}')
            a(f's_add_u32 s55, s53, {i*8*896 + c*128}')
            a('buffer_load_dwordx4 v241, s[44:47], s55 offen lds')
    for ks in range(14):
        a(f'buffer_load_dwordx4 {R(176+4*ks,4)}, v242, s[48:51], 0 offen offset:{ks*64}')
    a('v_mov_b64 v[236:237], 0')
    a('v_lshlrev_b32 v243, 3, v1')
    a('s_lshl_b32 s56, s52, 9')
    a(f's_add_u32 s56, s56, {FLAGS}')
    a('buffer_store_dwordx2 v[236:237], v243, s[8:11], s56 offen sc1')
    a('v_bfe_u32 v243, v1, 3, 1')
    a('v_mul_u32_u24 v244, 7168, v243')
    a('v_and_b32 v243, 7, v1')
    a('v_lshl_add_u32 v244, v243, 7, v244')
    a('v_add_u32 v244, v244, v242')
    a('v_bfe_u32 v243, v1, 1, 1')
    a('v_lshl_add_u32 v244, v243, 6, v244')
    a('v_add_u32 v244, s54, v244')
    a('v_xor_b32 v245, 64, v244')
    a('v_and_b32 v246, 15, v1')
    a('v_lshlrev_b32 v246, 2, v246')

def gen_misc2(a, younger):
    XF = 120; GF = 176
    a(f's_waitcnt vmcnt({younger})')
    for ks in range(14):
        a(f'ds_read_b128 {R(XF+4*ks,4)}, v{244 + ks%2} offset:{(ks//2)*1024}')
    a(f's_add_u32 s55, s53, {XIMG}')
    for ks in range(14):
        if ks and ks % 4 == 0: a('s_add_u32 s55, s55, 4096')
        a(f's_waitcnt lgkmcnt({13-ks})')
        a(f'buffer_store_dwordx4 {R(XF+4*ks,4)}, v240, s[8:11], s55 offen offset:{(ks%4)*1024} sc1')
        a(f'{MF} v[248:251], {R(GF+4*ks,4)}, {R(XF+4*ks,4)}, {"0" if ks == 0 else "v[248:251]"}')
    a(f's_mov_b32 s56, {f2u(-LOG2E)}')
    a('v_mul_f32 v252, s56, v248')
    a('v_exp_f32 v252, v252')
    a('v_add_f32 v252, 1.0, v252')
    a('v_rcp_f32 v252, v252')
    a('s_lshl_b32 s55, s52, 6')
    a(f's_add_u32 s55, s55, {GVEC}')
    a('s_mov_b64 exec, 0xffff')
    a('buffer_store_dword v252, v246, s[8:11], s55 offen sc1')
    a('s_mov_b64 exec, -1')
    for r in range(4): a(f'v_mov_b32 v{232+r}, -1')
    a('s_mul_i32 s55, s52, 3584')
    for base in (MEMNAT, MEMX):
        a(f's_add_u32 s56, s55, {base}')
        for k in range(4):
            a(f'buffer_store_dwordx4 v[232:235], v240, s[8:11], s56 offen offset:{min(k*1024, 2560)} sc1')

def raw_lane(a, vdst, vt, stride):
    a(f'v_lshrrev_b32 {vt}, 3, v1')
    a(f'v_mul_u32_u24 {vdst}, {stride}, {vt}')
    a(f'v_bfe_u32 {vt}, v1, 4, 1')
    a(f'v_lshlrev_b32 {vt}, 2, {vt}')
    a(f'v_xor_b32 {vt}, {vt}, v1')
    a(f'v_and_b32 {vt}, 7, {vt}')
    a(f'v_lshl_add_u32 {vdst}, {vt}, 4, {vdst}')

def tr_lane(a, vdst, vt):
    a(f'v_lshrrev_b32 {vt}, 2, v3')
    a(f'v_lshlrev_b32 {vdst}, 7, {vt}')
    a(f'v_lshl_add_u32 {vdst}, v4, 10, {vdst}')
    a(f'v_bfe_u32 {vt}, v3, 3, 1')
    a(f'v_lshl_add_u32 {vdst}, {vt}, 6, {vdst}')
    a(f'v_and_b32 {vt}, 3, v3')
    a(f'v_lshl_add_u32 {vdst}, {vt}, 3, {vdst}')
```

```python
from asmlib import *
from layout import *

NSTEP = 63
SM = 'v_smfmac_f32_16x16x64_bf16'
MF = 'v_mfma_f32_16x16x32_bf16'
DP = 'row_mask:0xf bank_mask:0xf'
sWS = 8; sRole = 12; sWave = 13; sStep = 14; sCur = 15; sNxt = 16; sPrv = 17
sT0 = 18; sT1 = 19; sT2 = 20; sT3 = 21; sSpin = 22; sStr = 23; sVX = 24; sJ = 25
SPIN_MAX = 2000000
MBOX = MEMNAT
sMc = 31
EB = WB
PROG = TBOX + 4 * SLOT - 256
F_CLAIM = FLAGS
F_TBAR = FLAGS + 8 * 256
F_RDY = FLAGS + 9 * 256
F_KV = FLAGS + 4096
F_MIR = F_KV + 64 * 512
F_H = F_MIR + 32 * 512
F_W = F_H + 16 * 256
F_X = F_W + 4096
FLAGS_BYTES = 65536
MEGA = False
sMode = 40; sArr = 41; sRdy = 26; sNeed = 27
L_MODE = 7200
INSTR = False; XST = {0: 10, 12: 11, 14: 12, 41: 13}
PFW = ['be', 'be']; NTOUCH = 16; PACE = 2; BE_EARLY = 1; KFIX = 0; VFIX = 0; STRM_MASK = None; NOSTREAM = 0; NONAT = 0
A_BE = 1; PDEPTH = 3; PSTAG = 1; A_SLEEP = 2
CDEPTH = 3; CSTAG = 1; CMDEPTH = 2; CMSTAG = 2; C_SLEEP = 1; CW_SLEEP = 0; C_PF = 0; PFD = 3; SPARE_PF = 0
B2AT = 20; B2A3 = 2; B3A = 43; B3B = 53; NSH = 4; NSH2 = 5; NE = 9; KLD0 = 8; KLDE = 3; A_PF = 1; XS0 = 4; XCAP = 3; EPOLL = 40; ESTEP = 2; EP = [40, 47, 54]; EDEPTH = 3; PRP = 0; VR2 = 0; CSPEC = 0; CSKIP = 0; CPAD = 0; PPAD = 0; EPOLL2 = 48; CVLD0 = 8; CVLDE = 4
ST = ''

def WREG(t, c):
    i = t * 7 + c
    return 120 + 8 * i if i < 17 else 256 + 8 * (i - 17)

A_MEM = 0; A_XT = 8192; A_SX = 28672; A_Z = 24576; A_FL = 24576; A_ST = 25600; A_KX = 28672
C_MEM = 0; C_X = 8192; C_W = 20480; C_VX = C_W + 4 * 14336
LDS_TEAM = C_VX + 65536

vLane = 1; vL16 = 2; vIdx = 3
vA0 = 4; vA1 = 5; vA2 = 6; vA3 = 7; vA4 = 8; vA5 = 9; vA6 = 10; vA7 = 11
vT0 = 12; vT1 = 13; vT2 = 14; vT3 = 15
vMem = 16; vAcc = 44; vPoll = 56; vBig = 64

def TSI(k): return [f's_memtime s[{44+2*k}:{45+2*k}]'] if INSTR else []
def TS(a, k):
    for i in TSI(k): a(i)
def ts_dump(a):
    if not INSTR: return
    a('s_waitcnt lgkmcnt(0)')
    for k in range(16):
        a(f'v_writelane_b32 {R(vT1)}, s{44+2*k}, {k}')
    a('s_lshr_b32 s18, s2, 3')
    a('s_lshl_b32 s18, s18, 2')
    a('s_add_u32 s18, s18, s13')
    a('s_lshl_b32 s18, s18, 6')
    a(f's_add_u32 s18, s18, {S(sStep)}')
    a('s_lshl_b32 s18, s18, 6')
    a(f's_add_u32 s18, s18, {DBG + 4096}')
    a(f'v_lshrrev_b32 {R(vT0)}, 2, {R(vL16)}')
    a('s_mov_b64 exec, 0xffff')
    a(f'buffer_store_dword {R(vT1)}, {R(vT0)}, s[8:11], s18 offen')
    a('s_mov_b64 exec, -1')

def slots(a, nxt=True):
    a(f's_and_b32 {S(sT0)}, {S(sStep)}, 3')
    a(f's_lshl_b32 {S(sT0)}, {S(sT0)}, 17')
    a(f's_add_u32 {S(sCur)}, {S(sT0)}, {TBOX}')
    a(f's_xor_b32 {S(sPrv)}, {S(sCur)}, {2*SLOT}')
    if nxt:
        a(f's_add_u32 {S(sT0)}, {S(sStep)}, 1')
        a(f's_lshr_b32 {S(sMc)}, {S(sT0)}, 1')
        a(f's_mul_i32 {S(sMc)}, {S(sMc)}, 14336')
        a(f's_and_b32 {S(sT1)}, {S(sT0)}, 1')
        a(f's_lshl_b32 {S(sT1)}, {S(sT1)}, 7')
        a(f's_add_u32 {S(sMc)}, {S(sMc)}, {S(sT1)}')
        a(f's_add_u32 {S(sMc)}, {S(sMc)}, {MBOX}')
        a(f's_and_b32 {S(sT0)}, {S(sT0)}, 3')
        a(f's_lshl_b32 {S(sT0)}, {S(sT0)}, 17')
        a(f's_add_u32 {S(sNxt)}, {S(sT0)}, {TBOX}')

def acc_max(tmp, regs, first):
    regs = list(regs); o = []
    if first:
        o.append(f'v_max3_u32 {R(tmp)}, {R(regs[0])}, {R(regs[1])}, {R(regs[2])}'); regs = regs[3:]
    while regs:
        if len(regs) >= 2:
            o.append(f'v_max3_u32 {R(tmp)}, {R(tmp)}, {R(regs[0])}, {R(regs[1])}'); regs = regs[2:]
        else:
            o.append(f'v_max_u32 {R(tmp)}, {R(tmp)}, {R(regs[0])}'); regs = regs[1:]
    return o

def check_regs(a, base, n, tmp):
    for x in acc_max(tmp, range(base, base + n), True): a(x)
    a(f'v_cmp_eq_u32 vcc, -1, {R(tmp)}')

def spin_guard(a, exit_label):
    a(f's_add_u32 {S(sSpin)}, {S(sSpin)}, 1')
    a(f's_cmp_gt_u32 {S(sSpin)}, {SPIN_MAX}')
    a(f's_cbranch_scc1 {exit_label}')

def zero4(r): return [f'v_mov_b64 {R(r,2)}, 0', f'v_mov_b64 {R(r+2,2)}, 0']

WAITW = None
PREBAR = None
def load_weights(a, tile_off):
    for t in range(7):
        if t == 5 and MEGA:
            a(f's_mov_b32 {S(sT0)}, {F_RDY}')
            a(f'buffer_load_dword {R(vT0)}, off, {S(sWS,4)}, {S(sT0)} sc1')
        tile_off(t)
        for q in range(4):
            if q: a(f's_add_u32 {S(sT0)}, {S(sT0)}, 4096')
            for k in range(4):
                ks = 4 * q + k
                if ks >= 14: break
                reg = WREG(t, ks // 2) + 4 * (ks % 2)
                a(f'buffer_load_dwordx4 {R(reg,4)}, {R(vL16)}, {S(sWS,4)}, {S(sT0)} offen offset:{k*1024} sc1')

def early_rdy(a):
    if not MEGA: return
    a('s_waitcnt vmcnt(28)')
    a(f'v_readfirstlane_b32 {S(sRdy)}, {R(vT0)}')

def dispatch(a, keys, fn, join=None):
    L = {k: a.newlabel('DSP') for k in keys}
    for k in keys[1:]:
        a(f's_cmp_eq_u32 {S(sWave)}, {k}')
        a(f's_cbranch_scc1 {L[k]}')
    for k in keys:
        a.label(L[k]); a.reset_hist()
        fn(k)
        if join: a(f's_branch {join}')
    if join:
        a.label(join); a.reset_hist()

def common_lane_setup(a):
    a(f'v_and_b32 {R(vLane)}, 63, v0')
    a(f'v_lshlrev_b32 {R(vL16)}, 4, {R(vLane)}')
    a(f'v_and_b32 {R(vT0)}, 8, {R(vLane)}')
    a(f'v_cmp_eq_u32 vcc, 0, {R(vT0)}')
    a(f'v_mov_b32 {R(vT1)}, 0xeeee')
    a(f'v_mov_b32 {R(vT2)}, 0x4444')
    a(f'v_cndmask_b32 {R(vIdx)}, {R(vT1)}, {R(vT2)}, vcc')

def team_barrier_old(a, exit_label, n=30, arrive=True):
    a('s_waitcnt vmcnt(0) lgkmcnt(0)')
    a('s_barrier')
    Lw = a.newlabel('TBW'); Ls = a.newlabel('TBS')
    a(f's_cmp_lg_u32 {S(sWave)}, 0')
    a(f's_cbranch_scc1 {Ls}')
    a(f'v_mov_b32 {R(vT0)}, 0')
    a(f'v_mov_b32 {R(vT1)}, 1')
    a('s_mov_b64 exec, 1')
    if arrive: a(f'global_atomic_add {R(vT0)}, {R(vT1)}, s[4:5] offset:128 sc1')
    a.label(Lw)
    a(f'global_load_dword {R(vT2)}, {R(vT0)}, s[4:5] offset:128 sc1')
    spin_guard(a, exit_label)
    a('s_waitcnt vmcnt(0)')
    a(f'v_cmp_gt_u32 vcc, {n}, {R(vT2)}')
    a(f's_cbranch_vccnz {Lw}')
    a('s_mov_b64 exec, -1')
    a.label(Ls)
    a('s_barrier')

def team_barrier(a, exit_label, n=30, arrive=True):
    if not MEGA: return team_barrier_old(a, exit_label, n, arrive)
    a('s_waitcnt vmcnt(0) lgkmcnt(0)')
    a('s_barrier')
    L0 = a.newlabel('TB0')
    a(f'v_mov_b32 {R(vT1)}, {S(sArr)}')
    a(f'v_mov_b32 {R(vT3)}, 0')
    a(f's_cmp_lg_u32 {S(sWave)}, 0')
    a(f's_cbranch_scc1 {L0}')
    a('s_mov_b64 exec, 1')
    a(f'global_atomic_add {R(vT3)}, {R(vT1)}, s[4:5] sc1')
    a('s_mov_b64 exec, -1')
    a.label(L0)
    PREBAR(a)
    a('s_waitcnt vmcnt(0) lgkmcnt(0)')
    a('s_barrier')
    Lw = a.newlabel('TBW'); Ls = a.newlabel('TBS')
    a(f'v_mov_b32 {R(vT0)}, {L_MODE}')
    a(f's_cmp_lg_u32 {S(sWave)}, 0')
    a(f's_cbranch_scc1 {Ls}')
    a(f'v_mov_b32 {R(vT1)}, 1')
    a(f'v_mov_b32 {R(vT3)}, 0')
    a('s_mov_b64 exec, 1')
    a(f'global_atomic_add {R(vT3)}, {R(vT1)}, s[4:5] offset:128 sc1')
    a.label(Lw)
    a(f'global_load_dword {R(vT2)}, {R(vT3)}, s[4:5] sc1')
    spin_guard(a, exit_label)
    a('s_waitcnt vmcnt(0)')
    a(f'v_and_b32 {R(vT1)}, 0x3f, {R(vT2)}')
    a(f'v_cmp_gt_u32 vcc, 32, {R(vT1)}')
    a(f's_cbranch_vccnz {Lw}')
    a(f'v_bfe_u32 {R(vT1)}, {R(vT2)}, 6, 10')
    a(f'v_mul_u32_u24 {R(vT1)}, {R(vT1)}, {R(vT1)}')
    a(f'v_lshrrev_b32 {R(vT2)}, 16, {R(vT2)}')
    a(f'v_lshlrev_b32 {R(vT2)}, 5, {R(vT2)}')
    a(f'v_sub_u32 {R(vT2)}, {R(vT2)}, {R(vT1)}')
    a(f'ds_write_b32 {R(vT0)}, {R(vT2)}')
    a('s_waitcnt lgkmcnt(0)')
    a('s_mov_b64 exec, -1')
    a.label(Ls)
    a('s_barrier')
    a(f'ds_read_b32 {R(vT1)}, {R(vT0)}')
    a('s_waitcnt lgkmcnt(0)')
    a(f'v_readfirstlane_b32 {S(sMode)}, {R(vT1)}')

def ensure_rdy(a, exit_label, ahead, base=sStep):
    if not MEGA: return
    Lok = a.newlabel('RDO'); Lp = a.newlabel('RDP')
    if base is None: a(f's_mov_b32 {S(sNeed)}, {ahead}')
    else:
        a(f's_add_u32 {S(sNeed)}, {S(base)}, {ahead}')
        a(f's_min_u32 {S(sNeed)}, {S(sNeed)}, 64')
    a(f's_cmp_ge_u32 {S(sRdy)}, {S(sNeed)}')
    a(f's_cbranch_scc1 {Lok}')
    a(f's_mov_b32 {S(sT0)}, {F_RDY}')
    a.label(Lp)
    a(f'buffer_load_dword {R(vT0)}, off, {S(sWS,4)}, {S(sT0)} sc1')
    spin_guard(a, exit_label)
    a('s_waitcnt vmcnt(0)')
    a(f'v_readfirstlane_b32 {S(sRdy)}, {R(vT0)}')
    a(f's_cmp_lt_u32 {S(sRdy)}, {S(sNeed)}')
    a(f's_cbranch_scc1 {Lp}')
    a.label(Lok)

def both_modes(a, body):
    global ST
    if not MEGA:
        body(); return
    Lslow = a.newlabel('SLOW')
    a(f's_cmp_lg_u32 {S(sMode)}, 0')
    a(f's_cbranch_scc1 {Lslow}')
    ST = ''; body()
    a.label(Lslow); a.reset_hist()
    ST = 'sc1'; body(); ST = ''

class Gaps:
    def __init__(self): self.m = {}; self.v = {}
    def nm(self, k): return sum(1 for x in self.m.get(k, []) if not x.startswith('s_') and not x.endswith(':'))
    def fixed(self, k, lst):
        for x in lst:
            (self.v if x.startswith('v_') else self.m).setdefault(k, []).append(x)
    def place(self, lst, start, step=0, cap=1):
        k = start; pend = []; last = start; prevv = False
        for x in lst:
            pend.append(x)
            if x.startswith('s_'): continue
            isv = x.startswith('v_')
            if prevv and k == last and (not isv or len(pend) > 1): k += 1
            while (len(self.v.get(k, [])) if isv else self.nm(k)) >= cap: k += 1
            self.fixed(k, pend); pend = []; last = k; k += step; prevv = isv
        if pend: self.fixed(last + (1 if prevv else 0), pend)
        return last
    def nvm(self, upto):
        return sum(1 for k, v in self.m.items() if k <= upto for x in v if x.startswith('buffer_'))
    def nds_after(self, pat, upto):
        seq = [x for k in sorted(self.m) if k <= upto for x in self.m[k] if x.startswith('ds_')]
        idx = max(i for i, x in enumerate(seq) if pat in x)
        return len(seq) - 1 - idx
    def weave(self, stream, last):
        items = {}
        for kk in sorted(set(self.m) | set(self.v)):
            items.setdefault(min(kk, last), []).extend(self.m.get(kk, []) + self.v.get(kk, []))
        out = []; k = -1; i = 0
        while i < len(stream):
            ins = stream[i]; out.append(ins); i += 1
            if ins.startswith('v_smfmac') or ins.startswith('v_mfma'):
                k += 1
                if k in XST: out.extend(TSI(XST[k]))
                it = items.get(k, [])
                tail = []
                while i < len(stream) and stream[i].startswith('s_'):
                    tail.append(stream[i]); i += 1
                nv = [x for x in it if not x.startswith('v_')] if k < last else it
                vv = [x for x in it if x.startswith('v_')] if k < last else []
                out.extend(nv + tail + vv)
        return out

def first_waits(stream):
    out = []; k = 0
    for ins in stream:
        if ins.startswith(SM) and k < 7:
            out.append(f's_waitcnt lgkmcnt({6-k})'); k += 1
        out.append(ins)
    return out

def mem_frag_reads(a):
    for c in range(7):
        a(f'ds_read_b128 {R(vMem+4*c,4)}, {R(vL16)} offset:{c*1024}')

def step_end(a, Lloop):
    TS(a, 15)
    if INSTR: a('s_memrealtime s[72:73]')
    ts_dump(a)
    a(f's_add_u32 {S(sStep)}, {S(sStep)}, 1')
    a(f's_cmp_lt_u32 {S(sStep)}, {NSTEP}')
    a(f's_cbranch_scc1 {Lloop}')

CH = [[0, 1], [2, 3], [4, 5], [6, 0]]
def poll_mem(a, chunks, exit_label, pre=None, w=1):
    L = a.newlabel('PM')
    n = len(chunks)
    def rnd():
        for i, c in enumerate(chunks):
            if c < 4:
                a(f'buffer_load_dwordx4 {R(vMem+4*c,4)}, {R(vL16)}, {S(sWS,4)}, {S(sCur)} offen offset:{c*1024} sc1')
            else:
                a(f'buffer_load_dwordx4 {R(vMem+4*c,4)}, {R(vA7)}, {S(sWS,4)}, {S(sCur)} offen offset:{(c-4)*1024} sc1')
    if w or not BE_EARLY: a('s_barrier')
    for x in (pre or []): a(x)
    if A_SLEEP: a(f's_sleep {A_SLEEP}')
    TS(a, 0)
    for d in range(PDEPTH - 1):
        rnd()
        if PSTAG: a(f's_sleep {PSTAG}')
    a('s_waitcnt lgkmcnt(0)')
    a.label(L)
    rnd()
    spin_guard(a, exit_label)
    for i in range(PPAD): a('s_nop 7')
    for i, c in enumerate(chunks):
        a(f's_waitcnt vmcnt({n*(PDEPTH-1) + n-1-i})')
        for x in acc_max(vT0, range(vMem+4*c, vMem+4*c+4), i == 0): a(x)
    a(f'v_cmp_eq_u32 vcc, -1, {R(vT0)}')
    a(f's_cbranch_vccnz {L}')
    TS(a, 2)
    if INSTR: a(f's_mov_b32 s46, {S(sSpin)}')

def kdma(kt):
    out = []
    for q in range(4):
        out += [f's_add_u32 {S(sT0)}, {S(sStr)}, {kt*14336 + q*4096}', f's_mov_b32 m0, {A_KX + kt*14336 + q*4096}']
        for k in range(4):
            if 4 * q + k < 14:
                out.append(f'buffer_load_dwordx4 {R(vL16)}, {S(sWS,4)}, {S(sT0)} offen offset:{k*1024} sc1 lds')
    return out

KSET = {1: [(2, 0), (3, 0), (1, 0), (4, 0), (5, 0)], 2: [(4, 1), (5, 1), (1, 1), (2, 1), (3, 1)], 3: [(6, 0), (6, 1), (0, 0), (0, 1)]}
KR = 80; SXR = 72
def kld(w, i):
    c, kt = KSET[w][i]
    return [f's_add_u32 {S(sT0)}, {S(sStr)}, {kt*14336 + c*2048}'] + \
           [f'buffer_load_dwordx4 {R(KR+8*i+4*hh,4)}, {R(vL16)}, {S(sWS,4)}, {S(sT0)} offen offset:{hh*1024} sc1' for hh in range(2)]
def sxm(w, i):
    c, kt = KSET[w][i]
    return f'{SM} {R(SXR+4*kt,4)}, {R(vMem+4*c,4)}, {R(KR+8*i,8)}, {R(vIdx)}'
def sxadd(kt):
    return [f'ds_add_f32 {R(vA2)}, {R(SXR+4*kt+r)} offset:{A_SX + r*128 + kt*8}' for r in range(4)]

def sxout(kt, off):
    r = SXR + 4 * kt
    return [f'v_permlane32_swap_b32 {R(r)}, {R(r+2)}', f'v_permlane32_swap_b32 {R(r+1)}, {R(r+3)}',
            f'v_add_f32 {R(r)}, {R(r)}, {R(r+2)}', f'v_add_f32 {R(r+1)}, {R(r+1)}, {R(r+3)}',
            f'ds_write_b64 {R(vA1)}, {R(r,2)} offset:{A_SX + off + kt*512}']

def tprime_write(acc, t):
    return [f'v_cvt_pk_bf16_f32 {R(vT0)}, {R(acc)}, {R(acc+1)}',
            f'v_cvt_pk_bf16_f32 {R(vT1)}, {R(acc+2)}, {R(acc+3)}',
            f'ds_write_b64 {R(vA0)}, {R(vT0,2)} offset:{A_XT + t*2048}']
def tpm(accs, t, c):
    return f'{SM} {R(accs[t],4)}, {R(vMem+4*c,4)}, {R(WREG(t,c),8)}, {R(vIdx)}'
def early_part(gp, accs, own, ne, wr_own=None):
    first = [(t, c) for c in own for t in range(7)][:ne]
    G = [tpm(accs, t, c) for t, c in first]
    for i, c in enumerate(wr_own or own):
        gp.fixed(i, [f'ds_write_b128 {R(vL16)}, {R(vMem+4*c,4)} offset:{c*1024}'])
    oth = [c for c in range(7) if c not in own]
    gp.fixed(B1AT, ['s_waitcnt lgkmcnt(0)', 's_barrier'] + TSI(3))
    gp.place([f'ds_read_b128 {R(vMem+4*c,4)}, {R(vL16)} offset:{c*1024}' for c in oth], B1AT, cap=2)
    rest = [[c for c in own + oth if (t, c) not in first] for t in range(7)]
    return G, rest
vTag = 0; vFlA = vA6
def flagw(t): return f'ds_write_b32 {R(vFlA)}, {R(vTag)} offset:{A_FL + t*16}'
def late_part(gp, accs, rest, base, flags=True, flex=False):
    G = []; wr = []
    for t in range(7):
        G += [tpm(accs, t, c) for c in rest[t]]
        e = base + len(G) - 1
        p = tprime_write(accs[t], t) + ([flagw(t)] if flags and t < 5 else [])
        if flex:
            wr.append(gp.place(p, max(e + 3, wr[-1] if wr else 0), cap=FLEXCAP, step=1))
        else:
            for i, x in enumerate(p): gp.fixed(e + 3 + i, [x])
            wr.append(e + 3 + len(p) - 1)
    return G, wr
B1AT = 4

def row_map(a, row, key, tmp):
    a(f'v_bfe_u32 {R(row)}, {R(vLane)}, 4, 1')
    a(f'v_lshlrev_b32 {R(row)}, 2, {R(row)}')
    a(f'v_bfe_u32 {R(tmp)}, {R(vLane)}, 5, 1')
    a(f'v_lshl_add_u32 {R(row)}, {R(tmp)}, 1, {R(row)}')
    a(f'v_bfe_u32 {R(tmp)}, {R(vLane)}, 3, 1')
    a(f'v_add_u32 {R(row)}, {R(row)}, {R(tmp)}')
    a(f'v_and_b32 {R(key)}, 7, {R(vLane)}')

def e_addr(a, dst, row, key):
    a(f's_lshr_b32 {S(sT0)}, {S(sRole)}, 2')
    a(f's_lshl_b32 {S(sT0)}, {S(sT0)}, 11')
    a(f's_and_b32 {S(sT1)}, {S(sRole)}, 1')
    a(f's_lshl_b32 {S(sT1)}, {S(sT1)}, 10')
    a(f's_add_u32 {S(sT0)}, {S(sT0)}, {S(sT1)}')
    a(f's_and_b32 {S(sT1)}, {S(sRole)}, 2')
    a(f's_lshl_b32 {S(sT1)}, {S(sT1)}, 6')
    a(f's_add_u32 {S(sT0)}, {S(sT0)}, {S(sT1)}')
    a(f's_add_u32 {S(sT0)}, {S(sT0)}, {EB}')
    a(f'v_lshrrev_b32 {R(vT0)}, 1, {R(key)}')
    a(f'v_lshl_add_u32 {R(dst)}, {R(vT0)}, 8, {S(sT0)}')
    a(f'v_lshl_add_u32 {R(dst)}, {R(row)}, 4, {R(dst)}')
    a(f'v_and_b32 {R(vT0)}, 1, {R(key)}')
    a(f'v_lshl_add_u32 {R(dst)}, {R(vT0)}, 3, {R(dst)}')

def gen_A(a, EXIT, stamp=None):
    common_lane_setup(a)
    a(f'v_add_u32 {R(vA7)}, 4096, {R(vL16)}')
    a(f'v_mov_b64 {R(vA4,2)}, 0')
    n, g = vT0, vT1
    a(f'v_and_b32 {R(n)}, 15, {R(vLane)}')
    a(f'v_lshrrev_b32 {R(g)}, 4, {R(vLane)}')
    a(f'v_lshrrev_b32 {R(vT2)}, 2, {R(n)}')
    a(f'v_xor_b32 {R(vT3)}, {R(g)}, {R(vT2)}')
    a(f'v_and_b32 {R(vA0)}, 3, {R(n)}')
    a(f'v_lshl_add_u32 {R(vA0)}, {R(vA0)}, 2, {R(vT3)}')
    a(f'v_and_b32 {R(vT3)}, 1, {R(vT2)}')
    a(f's_and_b32 {S(sT0)}, {S(sWave)}, 1')
    a(f'v_xor_b32 {R(vT3)}, {S(sT0)}, {R(vT3)}')
    a(f'v_lshl_add_u32 {R(vA0)}, {R(vT3)}, 4, {R(vA0)}')
    a(f'v_lshlrev_b32 {R(vA0)}, 3, {R(vA0)}')
    a(f'v_lshl_add_u32 {R(vA0)}, {R(vT2)}, 8, {R(vA0)}')
    a(f's_lshr_b32 {S(sT0)}, {S(sWave)}, 1')
    a(f's_lshl_b32 {S(sT0)}, {S(sT0)}, 10')
    a(f'v_add_u32 {R(vA0)}, {S(sT0)}, {R(vA0)}')
    a(f'v_and_b32 {R(vT2)}, 3, {R(n)}')
    a(f'v_xor_b32 {R(vT2)}, {R(vT2)}, {R(g)}')
    a(f'v_and_b32 {R(vT3)}, 12, {R(n)}')
    a(f'v_add_u32 {R(vT2)}, {R(vT2)}, {R(vT3)}')
    a(f'v_and_b32 {R(vT3)}, 1, {R(g)}')
    a(f'v_lshl_add_u32 {R(vT2)}, {R(vT3)}, 4, {R(vT2)}')
    a(f'v_lshlrev_b32 {R(vT2)}, 3, {R(vT2)}')
    a(f'v_lshl_add_u32 {R(vA1)}, {R(g)}, 8, {R(vT2)}')
    a(f'v_xor_b32 {R(vA2)}, 128, {R(vA1)}')
    for z in zero4(vAcc): a(z)
    a(f'ds_write_b128 {R(vL16)}, {R(vAcc,4)} offset:{A_Z}')
    a(f'ds_write_b128 {R(vL16)}, {R(vAcc,4)} offset:{A_SX}')
    def toff(t):
        a(f's_mul_i32 {S(sT0)}, {S(sRole)}, {MAT}')
        a(f's_mul_i32 {S(sT1)}, {S(sWave)}, 14336')
        a(f's_add_u32 {S(sT0)}, {S(sT0)}, {S(sT1)}')
        a(f's_add_u32 {S(sT0)}, {S(sT0)}, {WIMG + t*4*14336}')
    a(f's_mov_b32 {S(sSpin)}, 0')
    dispatch(a, [0, 1, 2, 3], lambda w: gen_A_wave(a, w, EXIT, stamp), a.newlabel('AJ'))
    team_barrier(a, EXIT)
    if WAITW: WAITW(a, 'A')
    load_weights(a, toff)
    early_rdy(a)
    a(f's_mul_i32 {S(sT0)}, {S(sRole)}, {K_H}')
    a(f's_add_u32 {S(sStr)}, {S(sT0)}, {KIMG}')
    def p2(w):
        if w:
            ensure_rdy(a, EXIT, 1, None)
            for i in range(len(KSET[w])):
                for x in kld(w, i): a(x)
        both_modes(a, lambda: gen_A_loop(a, w, EXIT, stamp))
    dispatch(a, [0, 1, 2, 3], p2)

def gen_A_wave(a, w, EXIT, stamp):
    post = []
    row, key = vT2, vT3
    M1 = vAcc + 10
    if w == 0:
        row_map(a, row, key, vT0)
        a(f'v_and_b32 {R(vT0)}, 1, {R(key)}')
        a(f'v_cmp_eq_u32 s[36:37], 0, {R(vT0)}')
        a(f's_lshl_b32 {S(sT0)}, {S(sRole)}, 7')
        a(f's_add_u32 {S(sT0)}, {S(sT0)}, {PB}')
        a(f'v_lshl_add_u32 {R(vA4)}, {R(row)}, 4, {S(sT0)}')
        a(f'v_lshl_add_u32 {R(vA4)}, {R(key)}, 1, {R(vA4)}')
        a(f's_and_b32 {S(sT0)}, {S(sRole)}, 7')
        a(f's_lshl_b32 {S(sT0)}, {S(sT0)}, 6')
        a(f's_lshr_b32 {S(sT1)}, {S(sRole)}, 3')
        a(f's_lshl_b32 {S(sT1)}, {S(sT1)}, 2')
        a(f's_add_u32 {S(sT0)}, {S(sT0)}, {S(sT1)}')
        a(f's_add_u32 {S(sT0)}, {S(sT0)}, {PB + 2048}')
        a(f'v_lshl_add_u32 {R(vT1)}, {R(row)}, 3, {S(sT0)}')
        a(f'v_cndmask_b32 {R(vA4)}, {R(vT1)}, {R(vA4)}, s[36:37]')
        a(f'v_and_b32 {R(vT0)}, 1, {R(row)}')
        a(f'v_cmp_eq_u32 s[38:39], 0, {R(vT0)}')
        a(f'v_cmp_eq_u32 s[42:43], 1, {R(vT0)}')
        a(f'v_mov_b32 {R(M1)}, -1')
        for sl in range(4):
            a(f's_mov_b32 {S(sT0)}, {TBOX + sl*SLOT}')
            a(f'buffer_store_dword {R(M1)}, {R(vA4)}, {S(sWS,4)}, {S(sT0)} offen sc1')
        e_addr(a, vA5, row, key)
        SA, SB = vLane, vAcc + 11
        a(f'v_lshrrev_b32 {R(SB)}, 4, {R(vLane)}')
        a(f'v_lshlrev_b32 {R(SB)}, 7, {R(SB)}')
        a(f'v_and_b32 {R(vT0)}, 3, {R(key)}')
        a(f'v_lshl_add_u32 {R(SB)}, {R(vT0)}, 5, {R(SB)}')
        a(f'v_lshrrev_b32 {R(vT0)}, 2, {R(key)}')
        a(f'v_lshl_add_u32 {R(SB)}, {R(vT0)}, 3, {R(SB)}')
        a(f'v_and_b32 {R(vT0)}, 1, {R(row)}')
        a(f'v_lshl_add_u32 {R(SB)}, {R(vT0)}, 2, {R(SB)}')
        a(f'v_add_u32 {R(SA)}, {A_SX}, {R(SB)}')
        a(f'v_add_u32 {R(SB)}, {A_SX + 16}, {R(SB)}')
    elif w == 3:
        a(f'v_lshrrev_b32 {R(row)}, 3, {R(vLane)}')
        a(f'v_and_b32 {R(key)}, 7, {R(vLane)}')
        e_addr(a, vA4, row, key)
        a(f'v_mov_b32 {R(M1)}, -1')
        a(f'v_mov_b32 {R(M1+1)}, -1')
        for sl in range(4):
            a(f's_mov_b32 {S(sT0)}, {TBOX + sl*SLOT}')
            a(f'buffer_store_dwordx2 {R(M1,2)}, {R(vA4)}, {S(sWS,4)}, {S(sT0)} offen sc1')
    if w:
        a(f'v_lshlrev_b32 {R(vA1)}, 3, {R(vLane)}')
    a(f'v_mov_b32 {R(vFlA)}, {4*w}')
    a(f'v_mov_b32 {R(vTag)}, 0')

def gen_A_loop(a, w, EXIT, stamp):
    post = []
    M1 = vAcc + 10
    a(f's_mov_b32 {S(sStep)}, 0')
    if stamp: stamp(a, 0)
    L = a.newlabel('ALOOP')
    if w == 0 and BE_EARLY: a('s_barrier')
    a.label(L); a.reset_hist()
    slots(a, False)
    a(f'v_add_u32 {R(vTag)}, 1, {R(vTag)}')
    a(f's_mov_b32 {S(sSpin)}, 0')
    pre_poll = None
    if w == 0:
        accs = [vBig, vBig + 4, vBig + 8, vBig + 12, vBig + 44, vBig + 48, vBig + 52]
        pz = accs + [vAcc]
        a(f'buffer_store_dword {R(M1)}, {R(vA4)}, {S(sWS,4)}, {S(sPrv)} offen {ST}')
    else:
        accs = [44 + 4 * i for i in range(7)]
        pz = accs + ([SXR, SXR + 4] if w == 3 else [SXR + 4 * (w - 1)])
        if w == 3:
            a(f'v_mov_b64 {R(vT2,2)}, -1')
            a(f'buffer_store_dwordx2 {R(vT2,2)}, {R(vA4)}, {S(sWS,4)}, {S(sPrv)} offen {ST}')
        if STRM_MASK is None and not KFIX: a(f's_add_u32 {S(sStr)}, {S(sStr)}, {K_S}')
        ensure_rdy(a, EXIT, 2)
    if A_PF == 3 and w:
        a(f's_min_u32 {S(sT2)}, {S(sRole)}, 13')
        a(f's_mul_i32 {S(sT2)}, {S(sT2)}, {2*V_J}')
        a(f's_add_u32 {S(sT1)}, {S(sStep)}, {PFD}')
        a(f's_mul_i32 {S(sT1)}, {S(sT1)}, {V_S}')
        a(f's_add_u32 {S(sT2)}, {S(sT2)}, {S(sT1)}')
        a(f's_add_u32 {S(sT2)}, {S(sT2)}, {VIMG + 8192}')
    if A_PF == 2 and w in (1, 2):
        a(f's_min_u32 {S(sT2)}, {S(sRole)}, 13')
        a(f's_mul_i32 {S(sT2)}, {S(sT2)}, {2*V_J}')
        a(f's_add_u32 {S(sT1)}, {S(sStep)}, {PFD-1}')
        a(f's_mul_i32 {S(sT1)}, {S(sT1)}, {V_S}')
        a(f's_add_u32 {S(sT2)}, {S(sT2)}, {S(sT1)}')
        a(f's_add_u32 {S(sT2)}, {S(sT2)}, {VIMG + 8192 + (w-1)*V_J}')
        a(f'v_lshlrev_b32 {R(vT2)}, 7, {R(vLane)}')
        touch = [f'buffer_load_dword {R(vT3)}, {R(vT2)}, {S(sWS,4)}, {S(sT2)} offen sc1']
        if PFW[w-1] == 'be': pre_poll = touch
    for x in pz:
        for z in zero4(x): a(z)
    poll_mem(a, CH[w], EXIT, pre_poll, w)
    gp = Gaps()
    XTW = lambda t: f'ds_write_b64 {R(vA0)}, {R(vT0,2)} offset:{A_XT + t*2048}'
    ne = NE + 2 if w == 0 else (NE - 2 if w == 3 else NE)
    G1, rest = early_part(gp, accs, CH[w], ne, [6] if w == 3 else None)
    if w == 0:
        def trr(c):
            b = vBig + BR[c]
            return [f'ds_read_b64_tr_b16 {R(b,2)}, {R(vA1)} offset:{A_XT + c*2048}',
                    f'ds_read_b64_tr_b16 {R(b+2,2)}, {R(vA2)} offset:{A_XT + c*2048}',
                    f'ds_read_b64_tr_b16 {R(b+4,2)}, {R(vA1)} offset:{A_XT + c*2048 + 1024}',
                    f'ds_read_b64_tr_b16 {R(b+6,2)}, {R(vA2)} offset:{A_XT + c*2048 + 1024}']
        def smm(c): return f'{SM} {R(vAcc,4)}, {R(vMem+4*c,4)}, {R(vBig+BR[c],8)}, {R(vIdx)}'
        FR = [vPoll, vPoll + 4]; vOk = vA3; OK = [vAcc + 6, vAcc + 7, vAcc + 8, vAcc + 9]
        mx = vAcc + 4; lx = vAcc + 5
        def flr(c): return f'ds_read_b128 {R(FR[c%2],4)}, {R(vFlA)} offset:{A_FL + c*16}'
        def flc(c, dst):
            f = FR[c % 2]
            return f'v_min3_u32 {R(dst)}, {R(f+1)}, {R(f+2)}, {R(f+3)}'
        SA, SB = vLane, vAcc + 11
        sx0 = vBig + 32; sy0 = vBig + 16; q = vBig + 40
        s0, s1, s2, s3 = sx0, sx0 + 1, sx0 + 2, sx0 + 3
        def rd4(dst, base):
            return [f'ds_read2st64_b32 {R(dst+2*ab,2)}, {R(SB if ab else SA)} offset0:{base} offset1:{base+2}' for ab in range(2)]
        fB = f'ds_read_b128 {R(FR[1],4)}, {R(vFlA)} offset:{A_FL + 7*16}'
        sxr = [fB] + rd4(sy0, 0) + rd4(sx0, 4)
        k = gp.place(sxr, SXAT, cap=3)
        chk = [f'v_min3_u32 {R(vOk)}, {R(FR[1]+3)}, {R(FR[1]+1)}, {R(FR[1]+2)}', f'v_cmp_lt_u32 vcc, {R(vOk)}, {R(vTag)}']
        pre = [f'v_add_f32 {R(sx0+r)}, {R(sx0+r)}, {R(sy0+r)}' for r in range(4)]
        ops = [f'v_max3_f32 {R(mx)}, {R(s0)}, {R(s1)}, {R(s2)}', f'v_max_f32 {R(mx)}, {R(mx)}, {R(s3)}',
               f'v_max_f32_dpp {R(mx)}, {R(mx)}, {R(mx)} quad_perm:[1,0,3,2] {DP}',
               f'v_max_f32_dpp {R(mx)}, {R(mx)}, {R(mx)} quad_perm:[2,3,0,1] {DP}',
               f'v_max_f32_dpp {R(mx)}, {R(mx)}, {R(mx)} row_half_mirror {DP}']
        ops += [f'v_sub_f32 {R(x)}, {R(x)}, {R(mx)}' for x in (s0, s1, s2, s3)]
        ops += [f'v_exp_f32 {R(x)}, {R(x)}' for x in (s0, s1, s2, s3)]
        ops += [f'v_cvt_pk_bf16_f32 {R(q)}, {R(s0)}, {R(s1)}', f'v_cvt_pk_bf16_f32 {R(q+1)}, {R(s2)}, {R(s3)}',
                f'v_min_u32 {R(q)}, -2, {R(q)}', f'v_min_u32 {R(q+1)}, -2, {R(q+1)}',
                f'buffer_store_dwordx2 {R(q,2)}, {R(vA5)}, {S(sWS,4)}, {S(sCur)} offen {ST}'] + TSI(6)
        k0 = k + XS0
        Lsx = a.newlabel('SXS'); Lsb = a.newlabel('SXB')
        gp.fixed(k0 - 1, ['s_waitcnt lgkmcnt(@)'] + chk)
        gp.fixed(k0, [f's_cbranch_vccnz {Lsx}', Lsb + ':'])
        k = gp.place(pre + ops[:2], k0, cap=XCAP)
        k = gp.place(ops[2:5], k + 1, cap=XCAP, step=1)
        k = gp.place(ops[5:], k, cap=XCAP)
        print('E store at', k)
        G2, wr = late_part(gp, accs, rest, ne, flags=False, flex=True)
        print('wave0 writes', wr)
        gp.m[k0 - 1].remove('s_waitcnt lgkmcnt(@)')
        gp.m[k0 - 1].insert(0, f's_waitcnt lgkmcnt({gp.nds_after(sxr[-1], k0 - 2)})')
        ops2 = [f'v_add_f32 {R(s0)}, {R(s0)}, {R(s2)}', f'v_add_f32 {R(lx)}, {R(s1)}, {R(s3)}', f'v_add_f32 {R(lx)}, {R(lx)}, {R(s0)}',
                f'v_add_f32_dpp {R(lx)}, {R(lx)}, {R(lx)} quad_perm:[1,0,3,2] {DP}',
                f'v_add_f32_dpp {R(lx)}, {R(lx)}, {R(lx)} quad_perm:[2,3,0,1] {DP}',
                f'v_add_f32_dpp {R(lx)}, {R(lx)}, {R(lx)} row_half_mirror {DP}']
        def slowx():
            a.label(Lsx); a.reset_hist()
            for x in sxr: a(x)
            spin_guard(a, EXIT)
            if INSTR: a(f's_add_u32 {S(sSpin)}, {S(sSpin)}, 1000')
            a('s_waitcnt lgkmcnt(0)')
            for x in chk: a(x)
            a(f's_cbranch_vccnz {Lsx}')
            a(f's_branch {Lsb}')
        post.append(slowx)
        assert SPEC[0] > k0
        for c in range(NSH):
            assert SPEC[c] >= wr[c] and (c > 0 or SPEC[c] >= wr[1]), (c, wr)
            k = gp.place([flr(c)] + trr(c), SPEC[c], cap=SCAP, step=1)
            kk = k + 1
            gp.fixed(kk, [f's_waitcnt lgkmcnt({gp.nds_after(flr(c), kk)})'])
            gp.place([flc(c, OK[c])], kk, cap=3)
        gp.place(ops2, 40, cap=2, step=1)
        G = G1 + ['s_waitcnt lgkmcnt(0)'] + G2
        lastp = tprime_write(accs[6], 6)
        for d in (gp.m, gp.v):
            for kk in d:
                d[kk] = [x for x in d[kk] if x not in lastp]
        for i in gp.weave(G, 48): a(i)
        TS(a, 4)
        assert NSH == 4
        r4 = [flr(4)] + trr(4)
        for x in r4[:2]: a(x)
        a(f'v_min3_u32 {R(vOk)}, {R(OK[0])}, {R(OK[1])}, {R(OK[2])}')
        a(f'v_min_u32 {R(vOk)}, {R(vOk)}, {R(OK[3])}')
        a(smm(0))
        for x in r4[2:4]: a(x)
        a(lastp[0])
        a(smm(1))
        a(r4[4])
        a(lastp[1])
        a(smm(2))
        a(lastp[2])
        a('s_waitcnt lgkmcnt(5)')
        a(f'v_min3_u32 {R(vOk)}, {R(vOk)}, {R(FR[0]+1)}, {R(FR[0]+2)}')
        a(smm(3))
        a(f'v_min_u32 {R(vOk)}, {R(vOk)}, {R(FR[0]+3)}')
        a(f'v_cmp_lt_u32 vcc, {R(vOk)}, {R(vTag)}')
        Lsl = a.newlabel('SSL'); Lbk = a.newlabel('SBK')
        TS(a, 7)
        a('s_barrier')
        TS(a, 8)
        for x in trr(5) + trr(6): a(x)
        a(f's_cbranch_vccnz {Lsl}')
        a('s_waitcnt lgkmcnt(9)')
        a.label(Lbk)
        a(smm(4))
        a('s_waitcnt lgkmcnt(4)')
        a(smm(5))
        a('s_waitcnt lgkmcnt(0)')
        a(smm(6))
        def slow0():
            a.label(Lsl); a.reset_hist()
            if INSTR: a(f's_add_u32 {S(sSpin)}, {S(sSpin)}, 100')
            for c in range(5):
                for i in trr(c): a(i)
            for z in zero4(vAcc): a(z)
            a('s_waitcnt lgkmcnt(0)')
            for c in range(4): a(smm(c))
            a(f's_branch {Lbk}')
        post.append(slow0)
        TS(a, 9)
        if INSTR: a(f's_mov_b32 s54, {S(sSpin)}')
        D0 = vAcc
        z = vT0; t = vT1; sx = vT2; e = vT3; nlo = vAcc + 6; nhi = vAcc + 7; en = vAcc + 8
        a(f'v_permlane32_swap_b32 {R(D0)}, {R(D0+2)}')
        a(f'v_permlane32_swap_b32 {R(D0+1)}, {R(D0+3)}')
        a(f'v_add_f32 {R(D0)}, {R(D0)}, {R(D0+2)}')
        a(f'v_add_f32 {R(D0+1)}, {R(D0+1)}, {R(D0+3)}')
        a(f'v_add_f32_dpp {R(z)}, {R(D0)}, {R(D0)} row_ror:8 row_mask:0xf bank_mask:0x3')
        a(f'v_add_f32_dpp {R(z)}, {R(D0+1)}, {R(D0+1)} row_ror:8 row_mask:0xf bank_mask:0xc')
        a(f'v_max_f32 {R(t)}, {R(z)}, {R(mx)}')
        a(f'v_max_f32_dpp {R(t)}, {R(z)}, {R(t)} quad_perm:[1,0,3,2] {DP}')
        a(f'v_max_f32_dpp {R(t)}, {R(t)}, {R(t)} quad_perm:[2,3,0,1] {DP}')
        a(f'v_max_f32_dpp {R(t)}, {R(t)}, {R(t)} row_half_mirror {DP}')
        a(f'v_sub_f32 {R(e)}, {R(z)}, {R(t)}')
        a(f'v_sub_f32 {R(sx)}, {R(mx)}, {R(t)}')
        a(f'v_exp_f32 {R(e)}, {R(e)}')
        a(f'v_exp_f32 {R(sx)}, {R(sx)}')
        a(f'v_mov_b32_dpp {R(en)}, {R(e)} quad_perm:[1,0,3,2] {DP}')
        a(f'v_cndmask_b32 {R(nlo)}, 0, {R(sx)}, s[38:39]')
        a(f'v_add_f32 {R(t)}, {R(e)}, {R(en)}')
        a(f'v_cndmask_b32 {R(nhi)}, 0, {R(sx)}, s[42:43]')
        a(f'v_cndmask_b32 {R(nlo)}, {R(nlo)}, {R(e)}, s[36:37]')
        a(f'v_add_f32_dpp {R(t)}, {R(t)}, {R(t)} quad_perm:[2,3,0,1] {DP}')
        a(f'v_cndmask_b32 {R(nhi)}, {R(nhi)}, {R(en)}, s[36:37]')
        a(f'v_add_f32_dpp {R(t)}, {R(t)}, {R(t)} row_half_mirror {DP}')
        a(f'v_fma_f32 {R(t)}, {R(lx)}, {R(sx)}, {R(t)}')
        a(f'v_rcp_f32 {R(t)}, {R(t)}')
        a(f'v_mul_f32 {R(nlo)}, {R(nlo)}, {R(t)}')
        a(f'v_mul_f32 {R(nhi)}, {R(nhi)}, {R(t)}')
        a(f'v_cvt_pk_bf16_f32 {R(nlo)}, {R(nlo)}, {R(nhi)}')
        a(f'v_min_u32 {R(nlo)}, -2, {R(nlo)}')
        a(f'buffer_store_dword {R(nlo)}, {R(vA4)}, {S(sWS,4)}, {S(sCur)} offen {ST}')
        TS(a, 13)
        if BE_EARLY: a('s_barrier')
    else:
        if w == 3:
            G0 = [sxm(3, i) for i in range(4)] + G1
            gp.place(sxout(0, 1024) + sxout(1, 1024) + [flagw(7)], 6)
            nw = gp.nds_after(f'ds_read_b128 {R(vMem+20,4)}', len(G0) - 1)
            nb = len(G0)
            G0 = G0 + [f's_waitcnt lgkmcnt({nw})']
        else:
            G0 = [sxm(w, 0), sxm(w, 1)] + G1 + ['s_waitcnt lgkmcnt(0)'] + [sxm(w, i) for i in (2, 3, 4)]
            nb = ne + 5
            k = gp.place(sxout(w - 1, 0) + [flagw(7)], nb + 2, cap=SXCAP)
            if w == 1: print('sx flag at', k)
        G2, wr = late_part(gp, accs, rest, nb)
        if w != 2: print('tile flags at', wr)
        late = []
        if A_PF == 2 and w < 3 and isinstance(PFW[w-1], int): gp.place(touch, PFW[w-1])
        if not NOSTREAM:
            lds = [x for i in range(len(KSET[w])) for x in kld(w, i)]
            if A_PF == 3:
                dummy = {1: SXR + 4, 2: SXR, 3: 112}[w]
                t0, t1 = {1: (0, 5), 2: (5, 10), 3: (10, 16)}[w]
                for i in range(t0, min(t1, NTOUCH)):
                    lds += [f's_add_u32 {S(sT0)}, {S(sT2)}, {(i//8)*V_J + (i%8)*1024}',
                            f'buffer_load_dwordx4 {R(dummy,4)}, {R(vL16)}, {S(sWS,4)}, {S(sT0)} offen sc1']
            nin = (nb + len(G2) - 2 - KLD0 - (w - 1) * 2) // KLDE + 1
            cut = [i for i, x in enumerate(lds) if x.startswith('buffer_')]
            if A_PF == 3 and nin < len(cut):
                late = lds[cut[nin - 1] + 1:]; lds = lds[:cut[nin - 1] + 1]
            gp.place(lds, KLD0 + (w - 1) * 2, step=KLDE)
        for i in gp.weave(G0 + G2, nb + len(G2) - 1): a(i)
        a('s_waitcnt lgkmcnt(0)')
        TS(a, 7)
        a('s_barrier')
        for x in late:
            if x.startswith('buffer_'): a(f's_sleep {PACE}')
            a(x)
        if SPARE_PF and w == 3:
            Ls = a.newlabel('NPG')
            a(f's_cmp_lg_u32 {S(sRole)}, 0')
            a(f's_cbranch_scc1 {Ls}')
            a(f'v_mov_b32 {R(vT0)}, {S(sStep)}')
            a(f's_mov_b32 {S(sT0)}, {PROG}')
            a(f'buffer_store_dword {R(vT0)}, off, {S(sWS,4)}, {S(sT0)} {ST}')
            a.label(Ls)
        if A_PF == 1 and not NOSTREAM and w < 3:
            a(f's_min_u32 {S(sT0)}, {S(sRole)}, 13')
            a(f's_mul_i32 {S(sT0)}, {S(sT0)}, {2*V_J}')
            a(f's_add_u32 {S(sT1)}, {S(sStep)}, {PFD}')
            a(f's_mul_i32 {S(sT1)}, {S(sT1)}, {V_S}')
            a(f's_add_u32 {S(sT0)}, {S(sT0)}, {S(sT1)}')
            a(f's_add_u32 {S(sT0)}, {S(sT0)}, {VIMG + 8192 + (w-1)*V_J}')
            a(f'v_lshlrev_b32 {R(vT2)}, 7, {R(vLane)}')
            a(f'buffer_load_dword {R(vT3)}, {R(vT2)}, {S(sWS,4)}, {S(sT0)} offen sc1')
    step_end(a, L)
    if stamp: stamp(a, 1)
    a(f's_branch {EXIT}')
    for f in post: f()
BR = [0, 16, 24, 8, 32, 40, 48]
SPEC = [29, 34, 39, 44]; SCAP = 2; SXCAP = 4; SXAT = 21; FLEXCAP = 2

HL = [0, 2, 1, 3, 4, 6, 5, 7]
def cvdma():
    out = []
    for q in range(2):
        out += [f's_add_u32 {S(sT0)}, {S(sStr)}, {q*V_J}', f's_add_u32 m0, {S(sVX)}, {q*4096}']
        out += [f'buffer_load_dwordx4 {R(vL16)}, {S(sWS,4)}, {S(sT0)} offen offset:{k*1024} sc1 lds' for k in range(4)]
    return out

def gen_C(a, EXIT, stamp=None):
    common_lane_setup(a)
    n, g = vT0, vT1
    a(f's_and_b32 {S(sT0)}, {S(sWave)}, 1')
    a(f's_lshl_b32 {S(sJ)}, {S(sRole)}, 1')
    a(f's_add_u32 {S(sJ)}, {S(sJ)}, {S(sT0)}')
    a(f'v_and_b32 {R(n)}, 15, {R(vLane)}')
    a(f'v_lshrrev_b32 {R(g)}, 4, {R(vLane)}')
    a(f'v_and_b32 {R(vT2)}, 1, {R(g)}')
    a(f'v_lshlrev_b32 {R(vT2)}, 2, {R(vT2)}')
    a(f'v_and_b32 {R(vT3)}, 2, {R(g)}')
    a(f'v_add_u32 {R(vT2)}, {R(vT2)}, {R(vT3)}')
    a(f'v_and_b32 {R(vT3)}, 1, {R(n)}')
    a(f'v_cmp_eq_u32 s[36:37], 0, {R(vT3)}')
    a(f'v_add_u32 {R(vT2)}, {R(vT2)}, {R(vT3)}')
    a(f'v_bfe_u32 {R(vT3)}, {R(n)}, 1, 1')
    a(f'v_lshl_add_u32 {R(vA0)}, {R(vT3)}, 3, {R(vT2)}')
    a(f'v_lshlrev_b32 {R(vA0)}, 4, {R(vA0)}')
    a(f'v_and_b32 {R(vT3)}, 12, {R(n)}')
    a(f'v_add_u32 {R(vA0)}, {R(vA0)}, {R(vT3)}')
    a(f's_lshl_b32 {S(sT0)}, {S(sJ)}, 8')
    a(f'v_add_u32 {R(vA0)}, {S(sT0)}, {R(vA0)}')
    a(f'v_mul_u32_u24 {R(vA1)}, 896, {R(vT2)}')
    a(f'v_and_b32 {R(vT3)}, 14, {R(n)}')
    a(f'v_lshl_add_u32 {R(vA1)}, {R(vT3)}, 1, {R(vA1)}')
    a(f's_lshl_b32 {S(sT0)}, {S(sJ)}, 5')
    a(f'v_add_u32 {R(vA1)}, {S(sT0)}, {R(vA1)}')
    a(f's_lshl_b32 {S(sT0)}, {S(sWave)}, 11')
    a(f's_add_u32 {S(sT0)}, {S(sT0)}, {EB}')
    a(f'v_add_u32 {R(vA2)}, {S(sT0)}, {R(vL16)}')
    a(f'v_add_u32 {R(vA3)}, {PB}, {R(vL16)}')
    a(f's_mul_i32 {S(sT0)}, {S(sWave)}, 14336')
    a(f's_add_u32 {S(sT0)}, {S(sT0)}, {C_W}')
    a(f'v_add_u32 {R(vA5)}, {S(sT0)}, {R(vL16)}')
    a(f's_mov_b32 m0, {S(sT0)}')
    a(f's_and_b32 {S(sT0)}, {S(sWave)}, 1')
    a(f's_mul_i32 {S(sT0)}, {S(sT0)}, 6144')
    a(f's_add_u32 {S(sT0)}, {S(sT0)}, {C_X}')
    a(f'v_add_u32 {R(vA6)}, {S(sT0)}, {R(vL16)}')
    def toff(hl):
        a(f's_lshr_b32 {S(sT0)}, {S(sWave)}, 1')
        a(f's_lshl_b32 {S(sT0)}, {S(sT0)}, 3')
        a(f's_add_u32 {S(sT0)}, {S(sT0)}, {16 + hl}')
        a(f's_mul_i32 {S(sT0)}, {S(sT0)}, {MAT}')
        a(f's_mul_i32 {S(sT1)}, {S(sJ)}, 14336')
        a(f's_add_u32 {S(sT0)}, {S(sT0)}, {S(sT1)}')
    a(f's_mov_b32 {S(sSpin)}, 0')
    dispatch(a, [0, 2, 3], lambda hiw: gen_C_wave(a, hiw, EXIT, stamp), a.newlabel('CJ'))
    team_barrier(a, EXIT)
    if WAITW: WAITW(a, 'C')
    toff(HL[0])
    for q in range(4):
        for k in range(4):
            if 4 * q + k < 14:
                a(f'buffer_load_dwordx4 {R(vL16)}, {S(sWS,4)}, {S(sT0)} offen offset:{k*1024} sc1 lds')
        a(f's_add_u32 {S(sT0)}, {S(sT0)}, 4096')
        a(f's_add_u32 m0, m0, 4096')
    load_weights(a, lambda t: toff(HL[t + 1]))
    early_rdy(a)
    a(f's_mul_i32 {S(sStr)}, {S(sRole)}, {2*V_J}')
    a(f's_lshl_b32 {S(sT0)}, {S(sWave)}, 12')
    a(f's_add_u32 {S(sStr)}, {S(sStr)}, {S(sT0)}')
    a(f's_add_u32 {S(sStr)}, {S(sStr)}, {VIMG}')
    a(f's_lshl_b32 {S(sVX)}, {S(sWave)}, 13')
    a(f's_add_u32 {S(sVX)}, {S(sVX)}, {C_VX}')
    a(f's_mov_b32 {S(sSpin)}, 0')
    ensure_rdy(a, EXIT, 1, None)
    for i in cvdma(): a(i)
    a('s_waitcnt vmcnt(0)')
    Lm = a.newlabel('CM0')
    a(f's_cmp_ge_u32 {S(sWave)}, 2')
    a(f's_cbranch_scc1 {Lm}')
    a(f's_mov_b32 {S(sT0)}, {MBOX}')
    a(f'buffer_store_dword {R(vPoll)}, {R(vA1)}, {S(sWS,4)}, {S(sT0)} offen sc1')
    a.label(Lm)
    dispatch(a, [0, 2, 3], lambda hiw: both_modes(a, lambda: gen_C_loop(a, hiw, EXIT, stamp)))

def gen_C_wave(a, hiw, EXIT, stamp):
    ACC = [vAcc, vAcc + 4, vAcc + 8, vT0]
    UB = vPoll
    EF = vBig; VF = [vBig + 16 + 4 * i for i in range(8)]
    WACC = [vBig + 48, vBig + 52, vMem, vMem + 4]
    WBK = vAcc
    if hiw == 0:
        a(f'buffer_load_dword {R(vT0)}, {R(vA1)}, s[32:35], 0 offen')
        a(f'v_and_b32 {R(vA1)}, 0x70, {R(vA0)}')
        a(f'v_bfe_u32 {R(vT1)}, {R(vLane)}, 3, 1')
        a(f'v_lshl_add_u32 {R(vA1)}, {R(vT1)}, 8, {R(vA1)}')
        a(f'v_bfe_u32 {R(vT1)}, {R(vLane)}, 1, 2')
        a(f'v_lshl_add_u32 {R(vA1)}, {R(vT1)}, 2, {R(vA1)}')
        a(f's_lshl_b32 {S(sT0)}, {S(sJ)}, 9')
        a(f'v_add_u32 {R(vA1)}, {S(sT0)}, {R(vA1)}')
        a('s_waitcnt vmcnt(0)')
        a(f'v_min_u32 {R(vT0)}, -2, {R(vT0)}')
        a(f's_mov_b32 {S(sT0)}, {TBOX}')
        a(f'buffer_store_dword {R(vT0)}, {R(vA0)}, {S(sWS,4)}, {S(sT0)} offen sc1')
        a(f'v_mov_b32 {R(vPoll)}, {R(vT0)}')
    else:
        a(f'v_mov_b32 {R(vA1)}, -1')
        for sl in range(1, 4):
            a(f's_mov_b32 {S(sT0)}, {TBOX + sl*SLOT}')
            a(f'buffer_store_dword {R(vA1)}, {R(vA0)}, {S(sWS,4)}, {S(sT0)} offen sc1')
        a(f'v_mov_b32 {R(vT0)}, 0')
        a(f's_mov_b32 {S(sT0)}, {PROG}')
        a(f'buffer_store_dword {R(vT0)}, {R(vT0)}, {S(sWS,4)}, {S(sT0)} offen sc1')
    if not hiw:
        a(f'v_bfe_u32 {R(vT0)}, {R(vLane)}, 1, 2')
        for q in range(4): a(f'v_cmp_eq_u32 s[{84+2*q}:{85+2*q}], {q}, {R(vT0)}')
        a(f'v_lshlrev_b32 v0, 3, {R(vLane)}')
        a(f'v_add_u32 v0, {PB + 2048}, v0')

def gen_C_loop(a, hiw, EXIT, stamp):
    ACC = [vAcc, vAcc + 4, vAcc + 8, vT0]
    UB = vPoll
    EF = vBig; VF = [vBig + 16 + 4 * i for i in range(8)]
    WACC = [vBig + 48, vBig + 52, vMem, vMem + 4]
    WBK = vAcc
    a(f's_mov_b32 {S(sStep)}, 0')
    if stamp: stamp(a, 0)
    L = a.newlabel('CLOOP')
    a.label(L); a.reset_hist()
    if not hiw: a('s_barrier')
    slots(a)
    a(f's_mov_b32 {S(sSpin)}, 0')
    a(f'v_add_u32 {R(vA7)}, {S(sVX)}, {R(vL16)}')
    a(f's_sub_u32 {S(sT0)}, {S(sVX)}, {C_VX}')
    a(f's_xor_b32 {S(sT0)}, {S(sT0)}, 32768')
    a(f's_add_u32 {S(sVX)}, {S(sT0)}, {C_VX}')
    if STRM_MASK is None and not VFIX: a(f's_add_u32 {S(sStr)}, {S(sStr)}, {V_S}')
    ensure_rdy(a, EXIT, 2)
    wpre = [f'ds_read_b128 {R(vBig+4*k,4)}, {R(vA5)} offset:{k*1024}' for k in range(14)]
    own = {0: [], 2: [0, 1, 2, 3], 3: [4, 5, 6]}[hiw]
    if hiw:
        a(f's_add_u32 {S(sT3)}, {S(sCur)}, {own[0]*1024}')
        a('s_waitcnt vmcnt(0)')
        for x in wpre: a(x)
        for z in zero4(ACC[0]) + zero4(ACC[1]) + zero4(ACC[2]): a(z)
        a(f'v_lshlrev_b32 {R(vT1)}, 7, {R(vLane)}')
        a(f's_add_u32 {S(sT1)}, {S(sStr)}, {(PFD-1)*V_S}')
        a('s_barrier')
        for k in range(C_PF):
            if k: a(f's_xor_b32 {S(sT1)}, {S(sT1)}, 8192')
            a(f'buffer_load_dword {R(vT2)}, {R(vT1)}, {S(sWS,4)}, {S(sT1)} offen sc1')
        if C_SLEEP: a(f's_sleep {C_SLEEP}')
        Lp = a.newlabel('CPM')
        TS(a, 0)
        n = len(own)
        def rnd():
            for k, c in enumerate(own):
                a(f'buffer_load_dwordx4 {R(vMem+4*c,4)}, {R(vL16)}, {S(sWS,4)}, {S(sT3)} offen offset:{k*1024} sc1')
        for d in range(CMDEPTH - 1):
            rnd()
            a(f's_sleep {CMSTAG}')
        a.label(Lp)
        rnd()
        spin_guard(a, EXIT)
        for k, c in enumerate(own):
            a(f's_waitcnt vmcnt({n*(CMDEPTH-1) + n - 1 - k})')
            for x in acc_max(vA4, range(vMem+4*c, vMem+4*c+4), k == 0): a(x)
        a(f'v_cmp_eq_u32 vcc, -1, {R(vA4)}')
        a(f's_cbranch_vccnz {Lp}')
        TS(a, 2)
        for c in own: a(f'ds_write_b128 {R(vL16)}, {R(vMem+4*c,4)} offset:{c*1024}')
    else:
        a(f's_waitcnt vmcnt({3 if INSTR else 2})')
        for x in wpre: a(x)
        for z in zero4(ACC[0]) + zero4(ACC[1]) + zero4(ACC[2]): a(z)
        TS(a, 2)
    for z in zero4(ACC[3]): a(z)
    a('s_waitcnt lgkmcnt(0)')
    a('s_barrier')
    TS(a, 3)
    cord = own + [c for c in range(7) if c not in own]
    for c in cord[len(own):]:
        a(f'ds_read_b128 {R(vMem+4*c,4)}, {R(vL16)} offset:{c*1024}')
    def comb(p):
        x, y = ACC[(2*p) % 4], ACC[(2*p+1) % 4]
        r0 = UB + 4 * (p // 2) + (p % 2)
        o = [f'v_permlane32_swap_b32 {R(x+r)}, {R(y+r)}' for r in range(4)]
        o += [f'v_add_f32 {R(x+r)}, {R(x+r)}, {R(y+r)}' for r in range(4)]
        o += [f'v_cvt_pk_bf16_f32 {R(r0)}, {R(x)}, {R(x+1)}', f'v_cvt_pk_bf16_f32 {R(r0+2)}, {R(x+2)}, {R(x+3)}']
        return o
    G = []
    for t in range(8):
        for c in cord:
            wr = WREG(t - 1, c) if t else vBig + 8 * c
            G.append(f'{SM} {R(ACC[t%4],4)}, {R(vMem+4*c,4)}, {R(wr,8)}, {R(vIdx)}')
    gp = Gaps()
    k = gp.place(comb(0), 16); gp.fixed(26, zero4(ACC[0])); gp.place(zero4(ACC[1]), 27)
    k = gp.place(comb(1), 30); gp.fixed(40, zero4(ACC[2])); gp.place(zero4(ACC[3]), 41)
    gp.place(comb(2), 44)
    HV = [0, 2, 1, 3]
    def vread(i): return f'ds_read_b128 {R(VF[i],4)}, {R(vA7)} offset:{(i//4)*4096 + HV[i%4]*1024}'
    def eld(i): return f'buffer_load_dwordx4 {R(EF+4*i,4)}, {R(vA2)}, {S(sWS,4)}, {S(sCur)} offen offset:{i*1024} sc1'
    WACC = [vBig + 48, vBig + 52, vBig + 8, vBig + 12]
    if not NOSTREAM: gp.place(cvdma(), 0, step=CVLDE)
    if VR2:
        rr = []
        for j, r in enumerate((0, 2, 1, 3)):
            if j: rr.append(f'v_add_u32 {R(vA7)}, {(4*r - 4*(0,2,1,3)[j-1]) & 0xffffffff}, {R(vA7)}')
            for p in range(4):
                o = (p // 2) * 16 + (p % 2) * 4
                rr.append(f'ds_read2st64_b32 {R(VF[2*p]+2*j,2)}, {R(vA7)} offset0:{o} offset1:{o+8}')
        gp.place(rr, 7, cap=2, step=1)
    else:
        k = gp.place([vread(i) for i in range(8)], 7)
    sw = []
    for p in range(4):
        sw += [f'v_swap_b32 {R(VF[2*p]+1)}, {R(VF[2*p+1])}', f'v_swap_b32 {R(VF[2*p]+3)}, {R(VF[2*p+1]+2)}']
    for e in EP: gp.place([eld(0), eld(1)], e)
    gp.place([z for x in WACC for z in zero4(x)], 8)
    if VR2:
        gp.fixed(50, ['s_waitcnt lgkmcnt(0)'])
    else:
        gp.fixed(22, ['s_waitcnt lgkmcnt(0)'])
        gp.place(sw, 22, cap=2, step=4)
    if hiw: gp.place([f'buffer_store_dword {R(vA1)}, {R(vA0)}, {S(sWS,4)}, {S(sPrv)} offen {ST}'], 1)
    for i in gp.weave(first_waits(G), 55): a(i)
    TS(a, 4)
    a(f's_lshl_b32 {S(sT0)}, {S(sWave)}, 10')
    a(f's_add_u32 {S(sT0)}, {S(sT0)}, {C_X + 2048}')
    a(f'v_add_u32 {R(vMem)}, {S(sT0)}, {R(vL16)}')
    for x in comb(3): a(x)
    if hiw:
        a(f'ds_write_b128 {R(vA6)}, {R(UB,4)}')
        a(f'ds_write_b128 {R(vA6)}, {R(UB+4,4)} offset:1024')
    UB2 = vMem + 20; WB1 = vBig + 24; WB2 = vBig + 32; PF = vMem + 8; FR2 = vMem + 16; DG = vBig + 16; DD = vAcc + 8

    def pr():
        a(f'buffer_load_dwordx4 {R(PF,4)}, {R(vA3)}, {S(sWS,4)}, {S(sCur)} offen sc1')
        a(f'buffer_load_dwordx2 {R(FR2,2)}, v0, {S(sWS,4)}, {S(sCur)} offen sc1')
        a(f'buffer_load_dwordx4 {R(PF+4,4)}, {R(vA3)}, {S(sWS,4)}, {S(sCur)} offen offset:1024 sc1')
    Le = a.newlabel('CPE')
    TS(a, 11)
    if INSTR: a(f's_mov_b32 {S(sSpin)}, 0')
    Le1 = a.newlabel('CPE1')
    assert len(EP) >= EDEPTH
    a(f's_branch {Le1}')
    a.label(Le)
    a(eld(0)); a(eld(1))
    spin_guard(a, EXIT)
    a.label(Le1)
    a(f's_waitcnt vmcnt({2*(EDEPTH-1)})')
    TS(a, 9)
    check_regs(a, EF, 8, vA4)
    a(f's_cbranch_vccnz {Le}')
    TS(a, 5)
    if INSTR: a(f's_mov_b32 s64, {S(sSpin)}')
    def wcv(p):
        r0 = WBK + 4 * (p // 2) + (p % 2)
        return [f'v_cvt_pk_bf16_f32 {R(r0)}, {R(WACC[p])}, {R(WACC[p]+1)}', f'v_cvt_pk_bf16_f32 {R(r0+2)}, {R(WACC[p]+2)}, {R(WACC[p]+3)}']
    for p in range(4):
        a(f'{SM} {R(WACC[p],4)}, {R(EF+4*(p%2),4)}, {R(VF[2*p],8)}, {R(vIdx)}')
        if p == PRP and not hiw: pr()
    for x in wcv(0) + wcv(1): a(x)
    a(f'ds_write_b128 {R(vMem)}, {R(WBK,4)}')
    for x in wcv(2) + wcv(3): a(x)
    a(f'ds_write_b128 {R(vMem)}, {R(WBK+4,4)} offset:6144')
    if hiw:
        a('s_waitcnt lgkmcnt(0)')
        a('s_barrier')
    else:
        pr()
        for z in zero4(DD): a(z)
        a('s_waitcnt lgkmcnt(0)')
        a('s_barrier')
        for k in range(2): a(f'ds_read_b128 {R(UB2+4*k,4)}, {R(vA6)} offset:{k*1024}')
        for k in range(4):
            a(f'ds_read_b128 {R(WB1+4*k,4)}, {R(vA6)} offset:{2048 + k*1024}')
        TS(a, 6)
        Lq = a.newlabel('CPP')
        def dg(z): return [f'v_cndmask_b32 {R(DG+4*z+q)}, 0, {R(FR2+z)}, s[{84+2*q}:{85+2*q}]' for q in range(4)]
        nb = 3 * (CDEPTH - 1)
        if CSPEC:
            Lq1 = a.newlabel('CPP1')
            a(f's_branch {Lq1}') if CSKIP else None
            a.label(Lq); a.reset_hist()
            pr()
            spin_guard(a, EXIT)
            a('s_nop 2')
            for z in zero4(DD): a(z)
            a.label(Lq1)
            a(f's_waitcnt vmcnt({nb + 2})')
            for x in acc_max(vT0, range(PF, PF+4), True): a(x)
            a(f'{SM} {R(DD,4)}, {R(PF,4)}, {R(UB,8)}, {R(vIdx)}')
            a(f's_waitcnt vmcnt({nb})')
            for x in acc_max(vT0, list(range(PF+4, PF+8)) + [FR2, FR2+1], False): a(x)
            a(dg(0)[0])
            a('s_waitcnt lgkmcnt(4)')
            a(f'{SM} {R(DD,4)}, {R(PF+4,4)}, {R(UB2,8)}, {R(vIdx)}')
            a('s_waitcnt lgkmcnt(2)')
            for x in dg(0)[1:] + dg(1)[:2]: a(x)
            a(f'{SM} {R(DD,4)}, {R(DG,4)}, {R(WB1,8)}, {R(vIdx)}')
            a('s_waitcnt lgkmcnt(0)')
            for x in dg(1)[2:]: a(x)
            a(f'v_cmp_eq_u32 vcc, -1, {R(vT0)}')
            a(f'{SM} {R(DD,4)}, {R(DG+4,4)}, {R(WB2,8)}, {R(vIdx)}')
            a(f's_cbranch_vccnz {Lq}')
        else:
            Lq1 = a.newlabel('CPP1')
            if CSKIP: a(f's_branch {Lq1}')
            a.label(Lq)
            pr()
            spin_guard(a, EXIT)
            a.label(Lq1)
            a(f's_waitcnt vmcnt({nb + 2})')
            for x in acc_max(vT0, range(PF, PF+4), True): a(x)
            a(f's_waitcnt vmcnt({nb})')
            for x in acc_max(vT0, list(range(PF+4, PF+8)) + [FR2, FR2+1], False): a(x)
            a(f'v_cmp_eq_u32 vcc, -1, {R(vT0)}')
            a(f's_cbranch_vccnz {Lq}')
            a(f'{SM} {R(DD,4)}, {R(PF,4)}, {R(UB,8)}, {R(vIdx)}')
            a('s_waitcnt lgkmcnt(0)')
            for x in dg(0): a(x)
            a(f'{SM} {R(DD,4)}, {R(PF+4,4)}, {R(UB2,8)}, {R(vIdx)}')
            for x in dg(1)[:2]: a(x)
            a(f'{SM} {R(DD,4)}, {R(DG,4)}, {R(WB1,8)}, {R(vIdx)}')
            for x in dg(1)[2:]: a(x)
            a(f'{SM} {R(DD,4)}, {R(DG+4,4)}, {R(WB2,8)}, {R(vIdx)}')
        TS(a, 7)
        if INSTR: a(f's_mov_b32 s46, {S(sSpin)}')
        a(f'v_permlane32_swap_b32 {R(DD)}, {R(DD+2)}')
        a(f'v_permlane32_swap_b32 {R(DD+1)}, {R(DD+3)}')
        a(f'v_add_f32 {R(DD)}, {R(DD)}, {R(DD+2)}')
        a(f'v_add_f32 {R(DD+1)}, {R(DD+1)}, {R(DD+3)}')
        a(f'v_mov_b32_dpp {R(DD+2)}, {R(DD)} quad_perm:[1,0,3,2] {DP}')
        a(f'v_mov_b32_dpp {R(DD+3)}, {R(DD+1)} quad_perm:[1,0,3,2] {DP}')
        a(f'v_cvt_pk_bf16_f32 {R(DD)}, {R(DD)}, {R(DD+2)}')
        a(f'v_cvt_pk_bf16_f32 {R(DD+1)}, {R(DD+3)}, {R(DD+1)}')
        a(f'v_cndmask_b32 {R(DD)}, {R(DD+1)}, {R(DD)}, s[36:37]')
        a(f'v_min_u32 {R(DD)}, -2, {R(DD)}')
        TS(a, 8)
        a(f'buffer_store_dword {R(DD)}, {R(vA0)}, {S(sWS,4)}, {S(sNxt)} offen {ST}')
        a(f'buffer_store_dword {R(DD)}, {R(vA1)}, {S(sWS,4)}, {S(sMc)} offen {ST}')
    step_end(a, L)
    if stamp: stamp(a, 1)
    a(f's_branch {EXIT}')

def gen_PF(a, EXIT):
    a(f'v_and_b32 {R(vLane)}, 63, v0')
    a(f'v_lshlrev_b32 {R(vL16)}, 7, {R(vLane)}')
    a(f's_mov_b32 {S(sSpin)}, 0')
    team_barrier(a, EXIT, arrive=False)
    a(f's_lshl_b32 {S(sJ)}, {S(sRole)}, 2')
    a(f's_add_u32 {S(sJ)}, {S(sJ)}, {S(sWave)}')
    a(f's_mov_b32 {S(sStep)}, 1')
    a(f'v_mov_b32 {R(vT0)}, 0')
    a(f's_mov_b32 {S(sT3)}, {PROG}')
    L = a.newlabel('PFL'); Lw = a.newlabel('PFW'); Lgo = a.newlabel('PFG')
    a.label(L)
    a(f's_mov_b32 {S(sSpin)}, 0')
    a.label(Lw)
    a(f'buffer_load_dword {R(vT1)}, {R(vT0)}, {S(sWS,4)}, {S(sT3)} offen sc1')
    spin_guard(a, EXIT)
    a('s_waitcnt vmcnt(0)')
    a(f'v_readfirstlane_b32 {S(sT0)}, {R(vT1)}')
    a(f's_add_u32 {S(sT0)}, {S(sT0)}, {PFD}')
    a(f's_cmp_le_u32 {S(sStep)}, {S(sT0)}')
    a(f's_cbranch_scc1 {Lgo}')
    a('s_sleep 4')
    a(f's_branch {Lw}')
    a.label(Lgo)
    a(f's_mul_i32 {S(sT0)}, {S(sStep)}, {V_S}')
    a(f's_mul_i32 {S(sT1)}, {S(sJ)}, {V_J}')
    a(f's_add_u32 {S(sT0)}, {S(sT0)}, {S(sT1)}')
    a(f's_add_u32 {S(sT0)}, {S(sT0)}, {VIMG}')
    for i in range(4):
        if i == 3:
            Ls = a.newlabel('PFS')
            a(f's_cmp_ge_u32 {S(sJ)}, 4')
            a(f's_cbranch_scc1 {Ls}')
        a(f'buffer_load_dword {R(vT2)}, {R(vL16)}, {S(sWS,4)}, {S(sT0)} offen sc1')
        a(f's_add_u32 {S(sT0)}, {S(sT0)}, {8*V_J}')
    a.label(Ls)
    a(f's_add_u32 {S(sStep)}, {S(sStep)}, 1')
    a(f's_cmp_lt_u32 {S(sStep)}, 64')
    a(f's_cbranch_scc1 {L}')
    a(f's_branch {EXIT}')


def gen_spare(a, EXIT):
    a(f'v_and_b32 {R(vLane)}, 63, v0')
    a(f's_mov_b32 {S(sSpin)}, 0')
    Lpf = a.newlabel('SPF'); Lex = a.newlabel('SEX'); Lgk = a.newlabel('SGK'); Ltb = a.newlabel('STB')
    team_barrier(a, EXIT)
    a(f's_lshl_b32 {S(sJ)}, {S(sRole)}, 2')
    a(f's_add_u32 {S(sJ)}, {S(sJ)}, {S(sWave)}')
    a(f's_cmp_eq_u32 {S(sJ)}, 1')
    a(f's_cbranch_scc1 {Lgk}')
    a(f's_cmp_eq_u32 {S(sJ)}, 5')
    a(f's_cbranch_scc1 {Lex}')
    a(f's_cmp_gt_u32 {S(sJ)}, 5')
    a(f's_cselect_b32 {S(sT1)}, 2, 1')
    a(f's_cmp_eq_u32 {S(sJ)}, 0')
    a(f's_cselect_b32 {S(sT1)}, 0, {S(sT1)}')
    a(f's_sub_u32 {S(sJ)}, {S(sJ)}, {S(sT1)}')
    a(f'v_lshlrev_b32 {R(vL16)}, 7, {R(vLane)}')
    a(f's_mov_b32 {S(sStep)}, 1')
    a(f's_mov_b32 {S(sT3)}, {PROG}')
    L = a.newlabel('PFL'); Lw = a.newlabel('PFW'); Lgo = a.newlabel('PFG')
    a.label(L)
    a(f's_mov_b32 {S(sSpin)}, 0')
    ensure_rdy(a, EXIT, 1)
    a.label(Lw)
    a(f'buffer_load_dword {R(vT1)}, off, {S(sWS,4)}, {S(sT3)} sc1')
    spin_guard(a, EXIT)
    a('s_waitcnt vmcnt(0)')
    a(f'v_readfirstlane_b32 {S(sT0)}, {R(vT1)}')
    a(f's_add_u32 {S(sT0)}, {S(sT0)}, {PFD}')
    a(f's_cmp_le_u32 {S(sStep)}, {S(sT0)}')
    a(f's_cbranch_scc1 {Lgo}')
    a('s_sleep 4')
    a(f's_branch {Lw}')
    a.label(Lgo)
    a(f's_mul_i32 {S(sT0)}, {S(sStep)}, {V_S}')
    a(f's_mul_i32 {S(sT1)}, {S(sJ)}, {V_J}')
    a(f's_add_u32 {S(sT0)}, {S(sT0)}, {S(sT1)}')
    a(f's_add_u32 {S(sT0)}, {S(sT0)}, {VIMG}')
    for i in range(5):
        if i == 4:
            Ls = a.newlabel('PFS')
            a(f's_cmp_ge_u32 {S(sJ)}, 4')
            a(f's_cbranch_scc1 {Ls}')
        a(f'buffer_load_dword {R(vT2)}, {R(vL16)}, {S(sWS,4)}, {S(sT0)} offen sc1')
        a(f's_add_u32 {S(sT0)}, {S(sT0)}, {6*V_J}')
    a.label(Ls)
    a(f's_add_u32 {S(sStep)}, {S(sStep)}, 1')
    a(f's_cmp_lt_u32 {S(sStep)}, 64')
    a(f's_cbranch_scc1 {L}')
    a(f's_branch {EXIT}')
    a.label(Lgk); a.reset_hist()
    a(f'v_lshlrev_b32 {R(vL16)}, 3, {R(vLane)}')
    a(f's_mov_b32 {S(sStep)}, 0')
    a(f's_mov_b32 {S(sT3)}, {F_KV}')
    a(f's_mov_b32 {S(sT2)}, {F_RDY}')
    for ng in (7, 1):
        Lg = a.newlabel('GKL')
        a.label(Lg)
        for i in range(ng):
            a(f'buffer_load_dwordx2 {R(vMem+2*i,2)}, {R(vL16)}, {S(sWS,4)}, {S(sT3)} offen offset:{i*512} sc1')
        spin_guard(a, EXIT)
        a('s_sleep 2')
        a('s_waitcnt vmcnt(0)')
        a(f'v_min_u32 {R(vT0)}, {R(vMem)}, {R(vMem+1)}')
        for i in range(1, ng):
            a(f'v_min3_u32 {R(vT0)}, {R(vT0)}, {R(vMem+2*i)}, {R(vMem+2*i+1)}')
        a(f'v_cmp_eq_u32 vcc, 0, {R(vT0)}')
        a(f's_cbranch_vccnz {Lg}')
        a(f's_add_u32 {S(sStep)}, {S(sStep)}, {ng}')
        a(f'v_mov_b32 {R(vT2)}, {S(sStep)}')
        a('s_mov_b64 exec, 1')
        a(f'buffer_store_dword {R(vT2)}, off, {S(sWS,4)}, {S(sT2)} sc1')
        a('s_mov_b64 exec, -1')
        if ng == 7:
            a(f's_add_u32 {S(sT3)}, {S(sT3)}, {7*512}')
            a(f's_cmp_lt_u32 {S(sStep)}, 63')
            a(f's_cbranch_scc1 {Lg}')
    a(f's_branch {EXIT}')
    a.label(Lex); a.reset_hist()
    a(f'v_lshrrev_b32 {R(vT0)}, 3, {R(vLane)}')
    a(f'v_lshlrev_b32 {R(vT0)}, 8, {R(vT0)}')
    a(f'v_and_b32 {R(vT1)}, 7, {R(vLane)}')
    a(f'v_lshl_add_u32 {R(vA0)}, {R(vT1)}, 4, {R(vT0)}')
    for i in range(1, 4): a(f'v_add_u32 {R(vA0+i)}, {4096*i}, {R(vA0)}')
    a(f's_mov_b32 {S(sStep)}, 0')
    ensure_rdy(a, EXIT, 1, None)
    a(f's_mov_b32 {S(sT3)}, {MBOX}')
    Le = a.newlabel('EXL')
    a.label(Le)
    for c in range(7):
        a(f'buffer_load_dwordx4 {R(vMem+4*c,4)}, {R(vA0 + c//2)}, {S(sWS,4)}, {S(sT3)} offen offset:{(c%2)*2048} sc1')
    spin_guard(a, EXIT)
    a('s_waitcnt vmcnt(0)')
    check_regs(a, vMem, 28, vT0)
    a(f's_cbranch_vccnz {Le}')
    a(f's_add_u32 {S(sT2)}, {S(sT3)}, {MEMX - MBOX}')
    for c in range(7):
        a(f'buffer_store_dwordx4 {R(vMem+4*c,4)}, {R(vA0 + c//2)}, {S(sWS,4)}, {S(sT2)} offen offset:{(c%2)*2048} sc1')
    a(f's_mov_b32 {S(sSpin)}, 0')
    a(f's_bitcmp1_b32 {S(sStep)}, 0')
    a(f's_cselect_b32 {S(sT0)}, {14336 - 256}, 0')
    a(f's_add_u32 {S(sT3)}, {S(sT3)}, {S(sT0)}')
    a(f's_add_u32 {S(sT3)}, {S(sT3)}, 128')
    a(f's_add_u32 {S(sStep)}, {S(sStep)}, 1')
    a(f's_cmp_lt_u32 {S(sStep)}, 64')
    a(f's_cbranch_scc1 {Le}')
    a(f's_branch {EXIT}')


def gen_OBS(a, EXIT):
    a(f'v_and_b32 {R(vLane)}, 63, v0')
    a(f'v_lshlrev_b32 {R(vL16)}, 4, {R(vLane)}')
    a(f's_mov_b32 {S(sSpin)}, 0')
    team_barrier(a, EXIT, arrive=False)
    a(f's_cmp_eq_u32 {S(sWave)}, 3')
    a(f's_cbranch_scc1 {EXIT}')
    a(f'v_and_b32 {R(vT0)}, 15, {R(vLane)}')
    a(f'v_lshlrev_b32 {R(vA0)}, 7, {R(vT0)}')
    a(f'v_add_u32 {R(vA0)}, {PB}, {R(vA0)}')
    a(f'v_and_b32 {R(vT0)}, 7, {R(vLane)}')
    a(f'v_lshlrev_b32 {R(vA1)}, 10, {R(vT0)}')
    a(f'v_bfe_u32 {R(vT0)}, {R(vLane)}, 3, 1')
    a(f'v_lshl_add_u32 {R(vA1)}, {R(vT0)}, 7, {R(vA1)}')
    a(f'v_add_u32 {R(vA1)}, {EB}, {R(vA1)}')
    a(f'v_min_u32 {R(vA2)}, 27, {R(vLane)}')
    a(f'v_lshlrev_b32 {R(vA2)}, 8, {R(vA2)}')
    a(f's_cmp_eq_u32 {S(sWave)}, 1')
    a('s_cselect_b64 vcc, -1, 0')
    a(f'v_cndmask_b32 {R(vA0)}, {R(vA0)}, {R(vA1)}, vcc')
    a(f's_cmp_eq_u32 {S(sWave)}, 2')
    a('s_cselect_b64 vcc, -1, 0')
    a(f'v_cndmask_b32 {R(vA0)}, {R(vA0)}, {R(vA2)}, vcc')
    a('s_mov_b64 exec, 0xfffffff')
    a(f's_mov_b32 {S(sStep)}, 0')
    L = a.newlabel('OBL'); Lp = a.newlabel('OBP')
    a.label(L)
    slots(a)
    a(f's_cmp_eq_u32 {S(sWave)}, 2')
    a(f's_cselect_b32 {S(sCur)}, {S(sNxt)}, {S(sCur)}')
    a(f's_mov_b32 {S(sSpin)}, 0')
    a('s_waitcnt vmcnt(0)')
    for d in range(2):
        a(f'buffer_load_dword {R(vT2)}, {R(vA0)}, {S(sWS,4)}, {S(sCur)} offen sc1')
        a('s_sleep 1')
    a.label(Lp)
    a(f'buffer_load_dword {R(vT2)}, {R(vA0)}, {S(sWS,4)}, {S(sCur)} offen sc1')
    spin_guard(a, EXIT)
    a('s_waitcnt vmcnt(2)')
    a(f'v_cmp_eq_u32 vcc, -1, {R(vT2)}')
    a(f's_cbranch_vccnz {Lp}')
    a('s_mov_b64 exec, -1')
    step_end(a, L + 'X')
    a(f's_branch {EXIT}')
    a.label(L + 'X')
    a('s_mov_b64 exec, 0xfffffff')
    a(f's_branch {L}')
```

```python
import sys, os
from asmlib import *
from layout import *
import prep, workers, team2
from prep import srd
from team2 import F_KV, F_MIR, F_H, F_W, F_X
import phase0
team2.MEGA = True; team2.SPARE_PF = 1
for k_, v_ in dict(A_SLEEP=11, CDEPTH=3, PDEPTH=2, PSTAG=2, C_SLEEP=3, C_PF=0, SXAT=22, SPEC=[30,35,40,44], KLD0=2, KLDE=2, A_PF=2, PFW=['be', 2]).items(): setattr(team2, k_, v_)
OPT = dict(FORCE_SLOW=0, TIMING=0, STATIC=0, TOUCH=1, ROT=1)
for kv in sys.argv[1:]:
    if '=' in kv:
        k_, v_ = kv.split('=')
        if k_ in OPT: OPT[k_] = eval(v_)
        else: setattr(team2, k_, eval(v_))
workers.WINSTR = OPT['TIMING'] in (1, 2)
if OPT['TIMING'] == 2: phase0.WT = workers.WT
phase0.TOUCH = OPT['TOUCH']; phase0.ROT = OPT['ROT']
workers.WST = 'sc1'; workers.WLD = 'sc1'
REF = open('gated_mix__memory_aug_recurrent_mem_tr__swiglu_ffn__prompt.s.ref').read()
head_comments = ''.join(l + '\n' for l in REF.split('\n') if l.startswith(';') and '@launch' not in l and 'Override launch' not in l and 'grid=ceil' not in l)
def kbegin(name): return f".globl {name}\n.p2align 8\n.type {name},@function\n{name}:\n"
def kdesc(name, vg=512, acc=256, sg=96):
    return f""".amdhsa_kernel {name}
  .amdhsa_next_free_vgpr {vg}
  .amdhsa_next_free_sgpr {sg}
  .amdhsa_accum_offset {acc}
  .amdhsa_group_segment_fixed_size 0
  .amdhsa_kernarg_size 120
  .amdhsa_user_sgpr_count 2
  .amdhsa_user_sgpr_kernarg_segment_ptr 1
  .amdhsa_system_sgpr_workgroup_id_x 1
.end_amdhsa_kernel
"""
EXIT = 'MEGA_EXIT'
SPINW = 4000000
def tmark(a, k):
    if not OPT['TIMING']: return
    if OPT['TIMING'] == 3:
        L = a.newlabel('TM')
        a('s_cmp_eq_u32 s83, 0')
        a(f's_cselect_b32 s82, {4 + 4*k}, 0')
        a('s_cmp_eq_u32 s83, 106')
        a(f's_cselect_b32 s82, {32 + 4*k}, s82')
        a('s_cmp_eq_u32 s82, 0')
        a(f's_cbranch_scc1 {L}')
        a('s_memrealtime s[80:81]')
        a('s_waitcnt lgkmcnt(0)')
        a('s_and_b32 s80, s80, 0xfffff')
        a('v_mov_b32 v15, s80')
        a('v_mov_b32 v14, s82')
        a('global_store_dword v14, v15, s[4:5]')
        a.label(L)
        return
    a('s_memrealtime s[80:81]')
    a('s_waitcnt lgkmcnt(0)')
    a('s_lshl_b32 s82, s83, 6')
    a(f's_add_u32 s82, s82, {DBG + 4*k}')
    a('v_mov_b32 v15, s80')
    a('buffer_store_dword v15, off, s[8:11], s82')
class H(workers.Hooks):
    def guard(self, a):
        a('s_add_u32 s35, s35, 1')
        a(f's_cmp_gt_u32 s35, {SPINW}')
        a(f's_cbranch_scc1 {EXIT}')
    def flag(self, a, soff):
        a('v_mov_b32 v15, 1')
        a('s_mov_b64 exec, 1')
        a(f'buffer_store_dword v15, off, s[8:11], {soff} sc1')
        a('s_mov_b64 exec, -1')
    def poll(self, a, t, wide, addr, sleep):
        L = a.newlabel('WF')
        a('s_mov_b32 s35, 0')
        for x in addr: a(x)
        Lf = a.newlabel('WF0')
        a(f's_branch {Lf}')
        a.label(L)
        a(f's_sleep {sleep}')
        a.label(Lf)
        if wide: a(f'buffer_load_dwordx2 {R(t+2,2)}, {R(t)}, s[8:11], s30 offen sc1')
        else: a(f'buffer_load_dword {R(t+2)}, {R(t)}, s[8:11], s30 offen sc1')
        self.guard(a)
        a('s_waitcnt vmcnt(0)')
        if wide: a(f'v_min_u32 {R(t+2)}, {R(t+2)}, {R(t+3)}')
        a(f'v_cmp_eq_u32 vcc, 0, {R(t+2)}')
        a(f's_cbranch_vccnz {L}')
    def wait(self, a, what):
        k = what[0]
        if k == 'h':
            self.poll(a, 16, False, [f's_lshr_b32 s30, {what[1]}, 2', 's_lshl_b32 s30, s30, 8', f's_add_u32 s30, s30, {F_H}',
                                     'v_min_u32 v16, 55, v1', 'v_lshlrev_b32 v16, 2, v16'], 16)
        elif k == 'kv':
            self.poll(a, 16, True, [f's_lshl_b32 s30, {what[1]}, 9', f's_add_u32 s30, s30, {F_KV}', 'v_lshlrev_b32 v16, 3, v1'], 16)
        elif k == 'mir':
            self.poll(a, 112, True, [f's_lshr_b32 s30, {what[1]}, 1', 's_lshl_b32 s30, s30, 9', f's_add_u32 s30, s30, {F_MIR}',
                                     'v_lshlrev_b32 v112, 3, v1'], 4)
        elif k == 'mem0':
            L = a.newlabel('WM'); Lf = a.newlabel('WM0')
            r = what[1]
            a(f's_branch {Lf}')
            a.label(L)
            a('s_sleep 2')
            a.label(Lf)
            a(f'buffer_load_dwordx4 {R(r,4)}, v14, s[8:11], s26 offen offset:1024 sc1')
            self.guard(a)
            a('s_waitcnt vmcnt(0)')
            a(f'v_cmp_eq_u32 vcc, -1, {R(r+3)}')
            a(f's_cbranch_vccnz {L}')
        elif k == 'mem1':
            self.guard(a)
            first = True
            for ks in range(14):
                a(f's_waitcnt vmcnt({14-ks})')
                for x in team2.acc_max(15, range(workers.MFR[ks], workers.MFR[ks] + 4), first): a(x)
                first = False
            a('v_cmp_eq_u32 vcc, -1, v15')
            a(f's_cbranch_vccnz {what[1]}')
    def signal(self, a, what):
        k = what[0]
        if k == 'kv':
            a('s_lshl_b32 s34, s28, 9')
            a('s_lshl_b32 s33, s14, 4')
            a('s_add_u32 s34, s34, s33')
            a('s_lshl_b32 s33, s13, 2')
            a('s_add_u32 s34, s34, s33')
            a(f's_add_u32 s34, s34, {F_KV}')
        elif k == 'kvmid':
            L = a.newlabel('NF')
            a('s_cmp_eq_u32 s34, 0')
            a(f's_cbranch_scc1 {L}')
            a('s_waitcnt vmcnt(0)')
            self.flag(a, 's34')
            a('s_mov_b32 s34, 0')
            a.label(L)
        elif k == 'mir':
            a('s_lshl_b32 s34, s28, 9')
            a('s_lshl_b32 s33, s14, 4')
            a('s_add_u32 s34, s34, s33')
            a('s_lshl_b32 s33, s13, 2')
            a('s_add_u32 s34, s34, s33')
            a(f's_add_u32 s34, s34, {F_MIR}')
        elif k == 'pend':
            L = a.newlabel('NF')
            a('s_cmp_eq_u32 s34, 0')
            a(f's_cbranch_scc1 {L}')
            a(f's_waitcnt vmcnt({what[1]})')
            self.flag(a, 's34')
            a('s_mov_b32 s34, 0')
            if what[1]:
                L2 = a.newlabel('NF2')
                a(f's_branch {L2}')
                a.label(L)
                a('buffer_load_dword v11, off, s[8:11], s26 sc1')
                a.label(L2)
            else:
                a.label(L)
        elif k == 'h':
            a('s_lshl_b32 s34, s14, 1')
            a('s_lshr_b32 s33, s13, 1')
            a('s_add_u32 s34, s34, s33')
            a('s_lshl_b32 s34, s34, 8')
            a('s_lshl_b32 s33, s16, 2')
            a('s_add_u32 s34, s34, s33')
            a(f's_add_u32 s34, s34, {F_H}')
            a('s_waitcnt vmcnt(0)')
            self.flag(a, 's34')
hooks = H()
a = Asm()
NAME = 'gated_mix__memory_aug_recurrent_mem_tr__swiglu_ffn__prompt_kernel'
def wait_init(a, off=0):
    L = a.newlabel('WI')
    a('s_mov_b32 s35, 0')
    a('v_mov_b32 v16, 0')
    a.label(L)
    a(f'global_load_dword v17, v16, s[4:5] offset:{off} sc1')
    hooks.guard(a)
    a('s_waitcnt vmcnt(0)')
    a('v_and_b32 v17, 63, v17')
    a('v_cmp_gt_u32 vcc, 32, v17')
    a(f's_cbranch_vccnz {L}')
def wait_x(a):
    hooks.poll(a, 16, True, [f's_mov_b32 s30, {F_X}', 'v_lshlrev_b32 v16, 3, v1'], 2)
def wait_unit(a, us):
    hooks.poll(a, 16, False, [f's_lshl_b32 s30, {us}, 7', f's_add_u32 s30, s30, {F_W}', 'v_min_u32 v16, 27, v1', 'v_lshlrev_b32 v16, 2, v16'], 2)
a.raw(kbegin(NAME)); a.reset_hist()
a('s_cmp_ge_u32 s2, 256')
a(f's_cbranch_scc1 {EXIT}')
srd(a, 8, 112, WS_BYTES)
a('s_load_dwordx2 s[4:5], s[0:1], 104')
a('v_readfirstlane_b32 s13, v0')
a('s_lshr_b32 s13, s13, 6')
if OPT['FORCE_SLOW']:
    a('s_mov_b32 s12, s2')
else:
    a('s_and_b32 s12, s2, 7')
    a('s_lshl_b32 s12, s12, 5')
    a('s_lshr_b32 s3, s2, 3')
    a('s_add_u32 s12, s12, s3')
a('s_mov_b32 s83, s12')
a('s_waitcnt lgkmcnt(0)')
tmark(a, 0)
a('s_cmp_ge_u32 s12, 32')
a('s_cbranch_scc1 WORKER')
phase0.gen_misc1(a)
def prebar(a):
    phase0.gen_misc2(a, 1)
    tmark(a, 4)
team2.PREBAR = prebar
a('s_getreg_b32 s3, hwreg(HW_REG_XCC_ID)')
a('s_and_b32 s3, s3, 15')
a('s_mul_i32 s41, s3, s3')
a('s_lshl_b32 s41, s41, 16')
a('s_lshl_b32 s3, s3, 6')
a('s_add_u32 s41, s41, s3')
a('s_add_u32 s41, s41, 1')
a('s_cmp_lt_u32 s12, 16')
a('s_cbranch_scc1 ROLE_A')
a('s_mov_b32 s26, 0')
a('s_cmp_ge_u32 s12, 30')
a('s_cbranch_scc1 ROLE_P')
srd(a, 32, 8, 7168)
a('s_waitcnt lgkmcnt(0)')
a('s_branch ROLE_C')
a.label('ROLE_A'); a.reset_hist()
a('s_mov_b32 s26, 0')
def waitw(a, role):
    tmark(a, 5)
    if role == 'A':
        hooks.poll(a, 16, False, ['s_lshl_b32 s30, s12, 7', f's_add_u32 s30, s30, {F_W}', 'v_lshrrev_b32 v16, 2, v2', 'v_min_u32 v16, 108, v16'], 2)
    else:
        hooks.poll(a, 16, False, ['s_lshr_b32 s30, s12, 1', 's_lshl_b32 s30, s30, 4', f's_add_u32 s30, s30, {F_W + 16*128}',
                                  'v_lshrrev_b32 v16, 6, v2', 'v_lshlrev_b32 v16, 7, v16', 'v_bfe_u32 v17, v2, 4, 2', 'v_lshl_add_u32 v16, v17, 2, v16'], 2)
    tmark(a, 3)
team2.WAITW = waitw
stamp = (lambda a, k: tmark(a, 1 + k)) if OPT['TIMING'] else None
team2.gen_A(a, EXIT, stamp)
a.label('ROLE_C'); a.reset_hist()
a('s_sub_u32 s12, s12, 16')
team2.gen_C(a, EXIT, stamp)
a.label('ROLE_P'); a.reset_hist()
a('s_sub_u32 s12, s12, 30')
team2.gen_spare(a, EXIT)
a.label('WORKER'); a.reset_hist()
a('s_sub_u32 s12, s12, 32')
workers.kv_setup(a)
a('s_cmp_ge_u32 s14, 16')
a('s_cbranch_scc1 W_P0V')
phase0.gen_phase0(a, True)
a('s_branch W_P0D')
a.label('W_P0V'); a.reset_hist()
phase0.gen_phase0(a, False)
a.label('W_P0D'); a.reset_hist()
a('s_nop 1')
wait_init(a)
if OPT['TIMING'] == 2:
    workers.WT(a, 8); workers.wdump(a, 's13', 's13'); workers.WINSTR = False
a('s_lshl_b32 s34, s14, 7')
a('s_lshl_b32 s33, s15, 4')
a('s_add_u32 s34, s34, s33')
a('s_lshl_b32 s33, s13, 2')
a('s_add_u32 s34, s34, s33')
a(f's_add_u32 s34, s34, {F_W}')
hooks.flag(a, 's34')
tmark(a, 4)
wait_init(a, 128)
wait_unit(a, 's14')
tmark(a, 5)
a('s_barrier')
workers.kv_weights(a)
a('s_cmp_ge_u32 s14, 16')
a('s_cbranch_scc1 W_V')
workers.gen_kv(a, hooks, True)
tmark(a, 1)
a('s_cmp_lg_u32 s15, 6')
a('s_cbranch_scc1 W_H')
workers.gen_mirror(a, hooks, True, 0, 1, MEMX)
tmark(a, 2)
a(f's_branch {EXIT}')
a.label('W_V'); a.reset_hist()
workers.gen_kv(a, hooks, False)
tmark(a, 1)
a('s_cmp_lg_u32 s15, 6')
a('s_cbranch_scc1 W_H')
workers.gen_mirror(a, hooks, False, 0, 1, MEMX)
tmark(a, 2)
a(f's_branch {EXIT}')
a.label('W_H'); a.reset_hist(); a.flush()
a('s_mul_i32 s12, s14, 6')
a('s_add_u32 s12, s12, s15')
a('s_mov_b32 s58, s12')
a.label('W_HL'); a.reset_hist()
workers.gen_H(a, hooks, 's58')
a('s_add_u32 s58, s58, 32')
a('s_cmp_lt_u32 s58, 192')
a('s_cbranch_scc1 W_T')
a('s_cmp_lt_u32 s58, 224')
a('s_cbranch_scc1 W_HL')
a.label('W_T'); a.reset_hist()
tmark(a, 2)
a('s_cmp_ge_u32 s12, 189')
a(f's_cbranch_scc1 {EXIT}')
srd(a, 36, 96, 2048 * 896)
a('s_mul_i32 s14, s12, 9363')
a('s_lshr_b32 s14, s14, 16')
a('s_mul_i32 s15, s14, 7')
a('s_sub_u32 s15, s12, s15')
a('s_waitcnt lgkmcnt(0)')
a('s_barrier')
workers.gen_token(a, hooks, 0, 's14', 27)
tmark(a, 3)
a.label(EXIT); a('s_endpgm')

out = head_comments + f'; @launch grid=(256,1,1) block=(256,1,1) lds={phase0.P0_LDS}\n'
out += '.amdgcn_target "amdgcn-amd-amdhsa--gfx950"\n.text\n' + a.text() + '.section .rodata,"a"\n.p2align 6\n' + kdesc(NAME)
open(os.environ.get('OUT', 'mega.s'), 'w').write(out)
print('lines', len(a.lines), 'nops', a.nops_added, 'bytes', len(out))
```
